```python
import torch

def _softmax(x, axis=-1):
    return torch.softmax(x, dim=axis)
def _gelu(x):
    return torch.nn.functional.gelu(x, approximate="tanh")
def _silu(x):
    return torch.nn.functional.silu(x)
def _sigmoid(x):
    return torch.sigmoid(x)
def _layernorm(x, axis=-1, eps=1e-5):
    m = x.mean(dim=axis, keepdim=True)
    v = x.var(dim=axis, keepdim=True, unbiased=False)
    return (x - m) / torch.sqrt(v + eps)
def _scatter_add(tgt, idx, src, axis=0):
    return tgt.clone().index_add_(axis, idx, src)
def _segment_sum(src, seg, n):
    out = torch.zeros((n,) + src.shape[1:], dtype=src.dtype)
    return out.index_add_(0, seg, src)
def _pad(x, pw):
    flat = tuple(v for pair in reversed(pw) for v in pair)
    return torch.nn.functional.pad(x, flat)

kernel_name = 'recurrent_scan__sliding_block_cached__swiglu_ffn__prompt'

def setup_inputs():

    _w = (lambda a: (lambda t: t.to(torch.bfloat16) if t.is_floating_point() else t)(torch.as_tensor(a)))
    def _A_setup():
        B, Sq, D = 1, 2048, 576
        Hq, Hkv, Sk, Dh = 32, 16, 2048, 128
        assert Hq % Hkv == 0, (Hq, Hkv)
        return {
            "x": _w((lambda *s: torch.randn(*s, dtype=torch.bfloat16) * 0.05)(B, Sq, D)),
            "k_cache": _w((lambda *s: torch.randn(*s, dtype=torch.bfloat16) * 0.8)(B, Hkv, Sk, Dh)),
            "v_cache": _w((lambda *s: torch.randn(*s, dtype=torch.bfloat16) * 0.2)(B, Hkv, Sk, Dh)),
            "wq": _w((lambda *s: torch.randn(*s, dtype=torch.bfloat16) * 0.8)(D, Hq * Dh) * (D ** -0.5)),
            "wo": _w((lambda *s: torch.randn(*s, dtype=torch.bfloat16) * 0.2)(Hq * Dh, D) * ((Hq * Dh) ** -0.5)),
        }
    _A_in = _A_setup()

    def _B_setup():
        B, S, D, F = 1, 2048, 576, 4608
        return {
            "x": _w((lambda *s: torch.randn(*s, dtype=torch.bfloat16) * 0.05)(B, S, D)),
            "w_gate": _w((lambda *s: torch.randn(*s, dtype=torch.bfloat16) * 0.1)(D, F)),
            "w_up": _w((lambda *s: torch.randn(*s, dtype=torch.bfloat16) * 0.1)(D, F)),
            "w_down": _w((lambda *s: torch.randn(*s, dtype=torch.bfloat16) * 0.1)(F, D)),
        }
    _B_in = _B_setup()

    return {
        "A_x": _A_in["x"],
        "A_k_cache": _A_in["k_cache"],
        "A_v_cache": _A_in["v_cache"],
        "A_wq": _A_in["wq"],
        "A_wo": _A_in["wo"],
        "B_x": _B_in["x"],
        "B_w_gate": _B_in["w_gate"],
        "B_w_up": _B_in["w_up"],
        "B_w_down": _B_in["w_down"],
    }

def reference(A_x, A_k_cache, A_v_cache, A_wq, A_wo, B_x, B_w_gate, B_w_up, B_w_down):
    def _A_ref(x, k_cache, v_cache, wq, wo):
        B, Sq, D = x.shape
        Hq, Dh = 32, 128
        Hkv, Sk = k_cache.shape[1], k_cache.shape[2]
        W = min(4096, max(256, Sk // 4))
        rep = Hq // Hkv
        q = (lambda x, *d: x.permute(*d))((x @ wq).reshape(B, Sq, Hq, Dh), 0, 2, 1, 3)
        k = (lambda x, n, axis: torch.repeat_interleave(x, n, dim=axis))(k_cache[:, :, Sk - W:, :], rep, axis=1)
        v = (lambda x, n, axis: torch.repeat_interleave(x, n, dim=axis))(v_cache[:, :, Sk - W:, :], rep, axis=1)
        scores = torch.einsum("bhqd,bhkd->bhqk", q, k) * (Dh ** -0.5)
        p = _softmax(scores, axis=-1)
        o = torch.einsum("bhqk,bhkd->bhqd", p, v)
        return (lambda x, *d: x.permute(*d))(o, 0, 2, 1, 3).reshape(B, Sq, Hq * Dh) @ wo

    def _B_ref(x, w_gate, w_up, w_down):
        g = _silu(x @ w_gate)
        u = x @ w_up
        return (g * u) @ w_down

    x = A_x
    xn = _layernorm(x, axis=-1)
    s = _A_ref(xn, A_k_cache, A_v_cache, A_wq, A_wo)
    g = _silu(_B_ref(xn, B_w_gate, B_w_up, B_w_down))
    return x + s * g
```

```python
import re

REG_RE = re.compile(r'(?<![\w.])([vas])(?:\[(\d+):(\d+)\]|(\d+))(?![\w])')


def regs_of(tok):
    out = []
    for m in REG_RE.finditer(tok):
        k = m.group(1)
        if m.group(2) is not None:
            out += [(k, i) for i in range(int(m.group(2)), int(m.group(3)) + 1)]
        else:
            out.append((k, int(m.group(4))))
    if re.search(r'\bvcc(_lo|_hi)?\b', tok): out.append(('x', 'vcc'))
    if re.search(r'\bm0\b', tok): out.append(('x', 'm0'))
    if re.search(r'\bexec\b', tok): out.append(('x', 'exec'))
    return out


TRANS = ('v_exp_f32', 'v_rcp_f32', 'v_rsq_f32', 'v_log_f32', 'v_sqrt_f32')


class Ins:
    __slots__ = ('text', 'kind', 'rd', 'wr', 'cost', 'meta', 'op', 'A', 'B', 'C', 'D', 'pre_lgkm', 'pre_vm', 'pre_nop', 'uid')
    _uid = 0

    def __init__(self, text, **meta):
        self.text = text
        self.meta = meta
        self.pre_lgkm = None
        self.pre_vm = None
        self.pre_nop = 0
        Ins._uid += 1
        self.uid = Ins._uid
        self.A = self.B = self.C = self.D = ()
        t = text.strip()
        op = t.split()[0] if t else ''
        self.op = op
        rest = t[len(op):]
        ops = [o.strip() for o in rest.split(',')] if rest.strip() else []
        rd, wr = [], []
        cost = 1
        if op == 'WAIT':
            kind = 'pseudo'
            rd = regs_of(rest)
            cost = meta.get('cost', 1)
        elif op.endswith(':'):
            kind = 'label'; cost = 0
        elif op.startswith('.'):
            kind = 'directive'; cost = 0
        elif op.startswith('v_mfma'):
            kind = 'mfma'
            self.D = regs_of(ops[0]); self.A = regs_of(ops[1]); self.B = regs_of(ops[2]); self.C = regs_of(ops[3])
            wr = list(self.D); rd = list(self.A) + list(self.B) + list(self.C)
            cost = 2
        elif op.startswith('ds_read'):
            kind = 'dsr'; wr = regs_of(ops[0]); rd = regs_of(ops[1])
        elif op.startswith('ds_write'):
            kind = 'dsw'
            for o in ops: rd += regs_of(o)
            cost = 2
        elif op.startswith('buffer_load') or op.startswith('global_load'):
            if re.search(r'\blds\b', t):
                kind = 'dma'
                for o in ops: rd += regs_of(o)
                rd.append(('x', 'm0'))
                cost = 2
            else:
                kind = 'vld'; wr = regs_of(ops[0])
                for o in ops[1:]: rd += regs_of(o)
                cost = 2
            m = re.search(r'offset:(\d+)', t)
            assert not m or int(m.group(1)) < 4096, t
        elif op.startswith('buffer_store') or op.startswith('global_store') or op.startswith('buffer_atomic'):
            kind = 'vst'
            for o in ops: rd += regs_of(o)
            cost = 2
            m = re.search(r'offset:(\d+)', t)
            assert not m or int(m.group(1)) < 4096, t
        elif op.startswith('s_load') or op.startswith('s_memtime') or op.startswith('s_memrealtime'):
            kind = 'smem'; wr = regs_of(ops[0])
            for o in ops[1:]: rd += regs_of(o)
        elif op == 's_waitcnt':
            kind = 'wait'
        elif op == 's_barrier':
            kind = 'bar'
        elif op == 's_nop':
            kind = 'nop'
        elif op in ('s_endpgm', 's_sleep', 's_setprio'):
            kind = 'misc'
        elif op.startswith('s_cbranch') or op == 's_branch':
            kind = 'branch'
            if 'scc' in op: rd = [('x', 'scc')]
            if 'vcc' in op: rd = [('x', 'vcc')]
            if 'exec' in op: rd = [('x', 'exec')]
        elif op == 's_getpc_b64':
            kind = 'salu'; wr = regs_of(ops[0])
        elif op.startswith('s_cmp'):
            kind = 'salu'; wr = [('x', 'scc')]
            for o in ops: rd += regs_of(o)
        elif op.startswith('s_'):
            kind = 'salu'; wr = regs_of(ops[0])
            for o in ops[1:]: rd += regs_of(o)
            if not (op.startswith('s_mov') or op.startswith('s_cselect') or op.startswith('s_mul') or op.startswith('s_movk')):
                wr.append(('x', 'scc'))
            if op.startswith('s_cselect') or op.startswith('s_addc') or op.startswith('s_subb'): rd.append(('x', 'scc'))
            if 'saveexec' in op:
                wr.append(('x', 'exec')); rd.append(('x', 'exec'))
        elif op.startswith('v_'):
            kind = 'trans' if op.replace('_e32', '').replace('_e64', '') in TRANS else 'valu'
            if kind == 'trans': cost = 2
            wr = regs_of(ops[0])
            for o in ops[1:]: rd += regs_of(o)
            if op.startswith('v_fmac') or op.startswith('v_dot2c') or op.startswith('v_writelane'): rd += wr
            if 'permlane' in op and 'swap' in op:
                wr = regs_of(ops[0]) + regs_of(ops[1]); rd = list(wr)
            if op.startswith('v_cndmask') and len(ops) == 3: rd.append(('x', 'vcc'))
            if op.startswith('v_add_co') or op.startswith('v_addc') or op.startswith('v_sub_co'):
                wr = regs_of(ops[0]) + regs_of(ops[1]); rd = []
                for o in ops[2:]: rd += regs_of(o)
        else:
            raise ValueError("unknown op: " + text)
        if kind in ('dsr', 'dsw'):
            for m in re.finditer(r'offset:(\d+)', t):
                assert int(m.group(1)) < 65536, t
            for m in re.finditer(r'offset[01]:(\d+)', t):
                assert int(m.group(1)) < 256, t
        self.kind = kind
        self.rd = set(rd); self.wr = set(wr)
        self.cost = meta.get('cost', cost)
        if meta.get('pair'):
            o = Ins(meta['pair'])
            self.rd |= (o.rd - self.wr); self.wr |= o.wr

    def __repr__(self):
        return "Ins(%s)" % self.text


class Loop:
    def __init__(self, label, count, body):
        self.label = label; self.count = count; self.body = body


class Item:
    __slots__ = ('ins', 'lo', 'hi', 'tgt', 'stream', 'fixed')

    def __init__(self, ins, lo, hi, tgt=None, stream='a', fixed=False):
        self.ins = ins if isinstance(ins, Ins) else Ins(ins)
        self.lo = lo; self.hi = hi; self.tgt = lo if tgt is None else tgt
        self.stream = stream; self.fixed = fixed
        assert lo <= hi, (self.ins.text, lo, hi)


LOOKAHEAD = {'valu': 14, 'exp': 14}


def schedule(backbone, items, g0, g1, cap=2, verbose=False, name=''):
    streams = {}
    fixed = {}
    for it in items:
        lo = max(it.lo, g0 - 1); hi = min(it.hi, g1 - 1)
        assert lo <= hi, ("item outside region", it.ins.text, it.lo, it.hi, g0, g1)
        if it.fixed:
            fixed.setdefault(lo, []).append(it)
        else:
            streams.setdefault(it.stream, []).append((it, lo, hi, min(max(it.tgt, lo), hi)))
    for k, lst in streams.items():
        h = 1 << 60
        for i in range(len(lst) - 1, -1, -1):
            it, lo, hi, tg = lst[i]
            h = min(h, hi)
            assert lo <= h, ("stream order infeasible", k, it.ins.text, lo, h)
            lst[i] = (it, lo, h, min(tg, h))
    pos = {k: 0 for k in streams}
    out = []
    over = 0
    used_total = 0
    MEM = ('dsr', 'dsw', 'dma', 'vld', 'vst')
    VAL = ('valu', 'trans')

    def gap_cost(lst):
        c = 0
        nmem = 0
        seen_valu = False
        others = sum(1 for x in lst if x.kind in MEM + VAL)
        for x in lst:
            if x.kind in MEM:
                nmem += 1
                if x.kind == 'dsr': c += 1 if nmem == 1 else 2
                elif x.kind in ('dma', 'vld'): c += 1 if others == 1 else 2
                else: c += 5
                if seen_valu: c += 2
            else:
                c += x.cost
                if x.kind in VAL: seen_valu = True
        return c

    def insert(lst, x):
        if x.kind in MEM or (x.kind == 'salu' and x.meta.get('hoist')):
            p = len(lst)
            while p > 0 and lst[p - 1].kind in VAL and not (lst[p - 1].wr & (x.rd | x.wr)) and not (lst[p - 1].rd & x.wr):
                p -= 1
            return lst[:p] + [x] + lst[p:]
        return lst + [x]

    for g in range(g0 - 1, g1):
        if g >= g0:
            out.append(backbone[g])
        cur = []
        tailfix = []
        for it in fixed.get(g, []):
            if it.ins.meta.get('last'):
                tailfix.append(it.ins)
            else:
                cur.append(it.ins)
        while True:
            best = None
            load = gap_cost(cur + tailfix)
            for k, lst in streams.items():
                la = LOOKAHEAD.get(k, 1)
                skipped = []
                for p in range(0, min(la, len(lst))):
                    it, lo, hi, tg = lst[p]
                    x = it.ins
                    ok = lo <= g
                    if ok:
                        for y in skipped:
                            if (y.wr & (x.rd | x.wr)) or (y.rd & x.wr) or (x.kind in MEM and y.kind in MEM):
                                ok = False; break
                    forced = hi <= g and p == 0
                    if ok and not forced:
                        if tg > g + (1 if p == 0 else la): ok = False
                        else:
                            nl = gap_cost(insert(cur, x) + tailfix)
                            if nl > cap:
                                alone = gap_cost([x])
                                if not (alone > cap and load == 0 and tg <= g): ok = False
                        if ok and cur and cur[-1].kind == 'trans' and (cur[-1].wr & x.rd): ok = False
                    if ok:
                        late = g - tg
                        pref = 0 if (x.kind == 'trans' and load == 0) else 1
                        key = (0 if forced else 1, 0 if x.kind in MEM else 1, pref, -late, hi)
                        if best is None or key < best[0]:
                            best = (key, k, p)
                    skipped.append(x)
            if best is None: break
            it = streams[best[1]].pop(best[2])[0]
            cur = insert(cur, it.ins)
        cur += tailfix
        out += cur
        load = gap_cost(cur)
        if g >= g0 and load > cap: over += load - cap
        used_total += load
    for k, lst in streams.items():
        assert not lst, ("unplaced", k, lst[0][0].ins.text)
    if verbose:
        print("sched %s: %d mfma, filler slots %d (cap %d), overflow slots %d" % (name, g1 - g0, used_total, cap * (g1 - g0), over))
    return out


CUR_ITER = [0]


def expand(prog):
    for n in prog:
        if isinstance(n, Loop):
            for i in range(n.count):
                CUR_ITER[0] = i + getattr(n, 'iter0', 0)
                for x in expand(n.body):
                    yield x
            CUR_ITER[0] = 0
        else:
            yield n


def cid_of(ins):
    c = ins.meta.get('cid')
    if c is None: return None
    st = ins.meta.get('cstep', 0)
    if st: return (c[0], c[1] + st * CUR_ITER[0])
    return c


def states(ins):
    if ins.kind in ('pseudo', 'label', 'directive'): return 0
    if ins.kind == 'nop': return int(ins.text.split()[1]) + 1
    return 2 if ins.meta.get('pair') else 1


def analyze(prog, check_lds=True, alias={}):
    lg = []
    vm = []
    hist = []
    t = 0
    epoch = 0
    content = {}
    lastread = {}
    pend_reads = {}
    nwarn = 0

    def retire_lg(n):
        while len(lg) > n:
            i, _ = lg.pop(0)
            loc = i.meta.get('rloc')
            if loc is not None: lastread[loc] = epoch
            loc = i.meta.get('wloc')
            if loc is not None:
                c = content.get(loc)
                if c is not None:
                    c[3] -= 1
                    if c[3] == 0: c[1] = 'landed'

    def retire_vm(n):
        while len(vm) > n:
            i, _, _ = vm.pop(0)
            loc = i.meta.get('wloc')
            if loc is not None:
                c = content.get(loc)
                if c is not None:
                    c[3] -= 1
                    if c[3] == 0: c[1] = 'landed'

    for ins in expand(prog):
        k = ins.kind
        if k in ('label', 'directive'): continue
        touched = ins.rd | ins.wr
        need_lg = None
        for idx in range(len(lg) - 1, -1, -1):
            i, d = lg[idx]
            if (d & touched) or (k == 'bar' and i.meta.get('tag') in ins.meta.get('ds_tags', ())) or (i.kind == 'smem' and (d & touched)):
                need_lg = len(lg) - 1 - idx
                break
        if need_lg is not None and any(i.kind == 'smem' for i, _ in lg): need_lg = 0
        if k == 'bar' and ins.meta.get('ds_all'): need_lg = 0 if lg else None
        need_vm = None
        vmt = ins.meta.get('vm_tags')
        if vmt is not None and ins.meta.get('cstep'):
            vmt = {(a, b + ins.meta['cstep'] * CUR_ITER[0]) for (a, b) in vmt}
        for idx in range(len(vm) - 1, -1, -1):
            i, d, tg_ = vm[idx]
            if (d & touched) or (vmt is not None and tg_ in vmt):
                need_vm = len(vm) - 1 - idx
                break
        if need_lg is not None:
            need_lg = min(need_lg, 15)
            ins.pre_lgkm = need_lg if ins.pre_lgkm is None else min(ins.pre_lgkm, need_lg)
        if need_vm is not None:
            need_vm = min(need_vm, 63)
            ins.pre_vm = need_vm if ins.pre_vm is None else min(ins.pre_vm, need_vm)
        if ins.pre_lgkm is not None: retire_lg(ins.pre_lgkm)
        if ins.pre_vm is not None: retire_vm(ins.pre_vm)
        if ins.pre_lgkm is not None or ins.pre_vm is not None: t += 1
        if k == 'wait':
            m = re.search(r'vmcnt\((\d+)\)', ins.text)
            if m: retire_vm(int(m.group(1)))
            m = re.search(r'lgkmcnt\((\d+)\)', ins.text)
            if m: retire_lg(int(m.group(1)))
        if k == 'pseudo': continue
        need = 0
        isvalu = k in ('valu', 'trans')
        for (tp, p) in reversed(hist):
            dist = t - tp - 1 + 0
            if dist >= 20: break
            req = 0
            pv = p.kind in ('valu', 'trans')
            if p.kind == 'mfma':
                D = p.wr
                if k == 'mfma':
                    if D & (set(ins.A) | set(ins.B)): req = 8
                    elif D & set(ins.C):
                        req = 0 if list(p.D) == list(ins.C) else 6
                elif D & touched and k in ('valu', 'trans', 'dsr', 'dsw', 'vld', 'vst', 'dma'):
                    req = 8
                if isvalu and (set(p.C) & ins.wr): req = max(req, 3)
            if pv:
                W = p.wr
                if k == 'mfma' and (W & ins.rd): req = max(req, 2)
                if p.kind == 'trans' and k == 'valu' and (W & ins.rd): req = max(req, 1)
                if p.op.startswith('v_dot') and (W & touched) and not (p.op == ins.op and p.op.startswith('v_dot2c') and W == ins.wr and ins.text.count(ins.text.split()[1].rstrip(',')) == 1): req = max(req, 3)
                if 'permlane' in ins.op and (W & ins.rd): req = max(req, 2)
                if ('dpp' in ins.op or 'row_' in ins.text) and (W & ins.rd): req = max(req, 2)
                if (ins.op.startswith('v_readfirstlane') or ins.op.startswith('v_readlane')) and (W & ins.rd): req = max(req, 1)
                sw = {r for r in W if r[0] == 's' or r == ('x', 'vcc')}
                if sw & ins.rd:
                    if k in ('vld', 'vst', 'dma'): req = max(req, 5)
                    elif isvalu: req = max(req, 2)
                    elif k in ('salu', 'branch'): req = max(req, 1)
                if ('x', 'exec') in W and k == 'mfma': req = max(req, 4)
            if p.kind == 'salu' and ('x', 'm0') in p.wr and k == 'dma': req = max(req, 1)
            if p.kind == 'vst' and isvalu and ('x4' in p.op or 'x3' in p.op) and (p.rd & ins.wr): req = max(req, 2)
            if req > dist: need = max(need, req - dist)
        if need > ins.pre_nop: ins.pre_nop = need
        t += ins.pre_nop
        if check_lds:
            if k == 'bar':
                epoch += 1
                for loc, c in content.items():
                    if c[1] == 'landed': c[1] = 'valid'
            loc = ins.meta.get('wloc')
            if loc is not None:
                cid = cid_of(ins)
                private = ins.meta.get('private')
                c = content.get(loc)
                if c is None or c[0] != cid or c[1] != 'issued' or c[4] <= 0:
                    for l2 in [loc] + alias.get(loc, []):
                        if private and l2 == loc: continue
                        for i, _ in lg:
                            if i.meta.get('rloc') == l2:
                                print("LDS WAR: write %s issued while read %s outstanding (%s)" % (ins.text, i.text, l2)); nwarn += 1
                        if l2 in lastread and lastread[l2] >= epoch:
                            print("LDS WAR: write %s in same epoch as last read of %s" % (ins.text, l2)); nwarn += 1
                        c2 = content.get(l2)
                        if c2 is not None and c2[1] == 'issued' and c2[3] > 0 and c2[2].kind == 'dma':
                            print("LDS WAW: write %s while fill %s of %s in flight" % (ins.text, c2[0], l2)); nwarn += 1
                        if l2 != loc: content.pop(l2, None)
                    n = ins.meta.get('nparts', 1)
                    content[loc] = [cid, 'issued', ins, n, n]
                content[loc][4] -= 1
            loc = ins.meta.get('rloc')
            if loc is not None and ins.meta.get('cid') is not None:
                c = content.get(loc)
                ok = c is not None and c[0] == cid_of(ins) and (c[1] == 'valid' or ins.meta.get('private'))
                if not ok and not ins.meta.get('junk_ok'):
                    print("LDS RAW: read %s of %s expects %s has %s" % (ins.text, loc, cid_of(ins), c and c[:2])); nwarn += 1
        if k in ('dsr', 'dsw', 'smem'):
            lg.append((ins, ins.wr if k != 'dsw' else set()))
        if k in ('dma', 'vld', 'vst'):
            vm.append((ins, ins.wr if k == 'vld' else set(), cid_of(ins) if ins.meta.get('cid') is not None else ins.meta.get('tag')))
            assert len(vm) <= 63, "vmcnt overflow"
        hist.append((t, ins))
        if len(hist) > 40: hist.pop(0)
        t += states(ins)
    return nwarn


def emit(prog, out, short=True):
    for n in prog:
        if isinstance(n, Loop):
            out.append(n.label + ":")
            emit(n.body, out)
        else:
            w = []
            if n.pre_vm is not None: w.append("vmcnt(%d)" % n.pre_vm)
            if n.pre_lgkm is not None: w.append("lgkmcnt(%d)" % n.pre_lgkm)
            if w: out.append("s_waitcnt " + " ".join(w))
            nn = n.pre_nop
            while nn > 0:
                c = min(nn, 16)
                out.append("s_nop %d" % (c - 1)); nn -= c
            if n.kind != 'pseudo':
                out.append(n.text)
                if n.meta.get('pair'): out.append(n.meta['pair'])


def stats(prog):
    from collections import Counter
    c = Counter()
    for i in expand(prog):
        c[i.kind] += 1
        if i.pre_lgkm is not None or i.pre_vm is not None: c['autowait'] += 1
        if i.pre_nop: c['autonop'] += 1; c['nopstates'] += i.pre_nop
    return dict(c)
```

```python
import sys, math
from asmlib import *

KNAME = "recurrent_scan__sliding_block_cached__swiglu_ffn__prompt"
LOG2E = 1.4426950408889634


def f2h(x):
    import struct
    return "0x%08x" % struct.unpack("<I", struct.pack("<f", x))[0]


def V(n, cnt=1):
    return "v%d" % n if cnt == 1 else "v[%d:%d]" % (n, n + cnt - 1)


def A(n, cnt=1):
    return "a%d" % n if cnt == 1 else "a[%d:%d]" % (n, n + cnt - 1)


def mfma(d, a, b, c):
    return Ins("v_mfma_f32_16x16x32_bf16 %s, %s, %s, %s" % (d, a, b, c))


OPT = dict(st="sc1", stamps=False, map=1, lead=6)

S_X, S_W0, S_W1, S_W2, S_W3, S_P = 40, 44, 48, 52, 56, 60
S_W, S_M0B, S_OA, S_OB, S_CNT, S_ST = 64, 65, 66, 67, 68, 69
S_SL, S_J, S_RT, S_TY, S_TG, S_HH = 70, 71, 72, 73, 74, 75
S_LO, S_HI = 76, 77
S_T = 78
S_MODE, S_BAD = 88, 89
S_MK = 90


def srd(n):
    return "s[%d:%d]" % (n, n + 3)


V_LANE, V_T0 = 1, 2
V_TID = 0
V_D0, V_D1 = 4, 5
V_RD = 6
V_TMP = 24
V_FR = 32
V_TAIL = 56
V_RAW = 88
PART_BYTES = 147456


def Breg(ks, tt):
    if ks < 16:
        return A((ks * 4 + tt) * 4, 4)
    return V(V_TAIL + ((ks - 16) * 4 + tt) * 4, 4)


class Code:
    def __init__(self):
        self.p = []

    def __call__(self, text, **meta):
        for l in text.split("\n"):
            l = l.strip()
            if l:
                self.p.append(Ins(l, **meta))

    def add(self, x):
        if isinstance(x, list):
            self.p += x
        else:
            self.p.append(x)


def build_srd(c, n, lo, hi, add_sgpr=None, add_const=0, size=None, size_sub=None):
    if add_sgpr is not None:
        c("s_add_u32 s%d, s%d, s%d\ns_addc_u32 s%d, s%d, 0" % (n, lo, add_sgpr, n + 1, hi))
    else:
        c("s_mov_b32 s%d, s%d\ns_mov_b32 s%d, s%d" % (n, lo, n + 1, hi))
    if add_const > 0:
        c("s_add_u32 s%d, s%d, %d\ns_addc_u32 s%d, s%d, 0" % (n, n, add_const, n + 1, n + 1))
    elif add_const < 0:
        c("s_sub_u32 s%d, s%d, %d\ns_subb_u32 s%d, s%d, 0" % (n, n, -add_const, n + 1, n + 1))
    if size_sub is not None:
        c("s_sub_u32 s%d, %d, s%d" % (n + 2, size, size_sub))
    else:
        c("s_mov_b32 s%d, %d" % (n + 2, size))
    c("s_mov_b32 s%d, 0x20000" % (n + 3))


def unit_voff(c, dst, rs, corder, t0=V_TMP):
    rho, pos, h, row = t0, t0 + 1, t0 + 2, t0 + 3
    c("v_lshrrev_b32 v%d, 3, v%d" % (rho, V_LANE))
    c("v_and_b32 v%d, 7, v%d" % (pos, V_LANE))
    c("v_bfe_u32 v%d, v%d, 1, 1" % (h, rho))
    c("s_and_b32 s%d, s%d, 1\ns_lshl_b32 s%d, s%d, 1" % (S_T, S_W, S_T, S_T))
    c("v_or_b32 v%d, s%d, v%d" % (h, S_T, h))
    c("v_lshlrev_b32 v%d, 1, v%d" % (h, h))
    c("v_xor_b32 v%d, v%d, v%d" % (pos, pos, h))
    if not corder:
        c("s_lshl_b32 s%d, s%d, 3" % (S_T, S_W))
        c("v_add_u32 v%d, s%d, v%d" % (row, S_T, rho))
    else:
        c("s_lshl_b32 s%d, s%d, 2" % (S_T, S_W))
        c("v_and_b32 v%d, 3, v%d" % (row, rho))
        c("v_add_u32 v%d, s%d, v%d" % (row, S_T, row))
        c("v_lshrrev_b32 v%d, 2, v%d" % (rho, rho))
        c("v_lshl_add_u32 v%d, v%d, 4, v%d" % (row, rho, row))
    c("v_mul_u32_u24 v%d, %d, v%d" % (row, rs, row))
    c("v_lshl_add_u32 v%d, v%d, 4, v%d" % (dst, pos, row))


def reader_addr(c, dst, t0=V_TMP):
    g, r4, h = t0, t0 + 1, t0 + 2
    c("v_lshrrev_b32 v%d, 4, v%d" % (g, V_LANE))
    c("v_bfe_u32 v%d, v%d, 2, 2" % (r4, V_LANE))
    c("v_lshrrev_b32 v%d, 1, v%d" % (h, r4))
    c("v_and_b32 v%d, 1, v%d" % (dst, g))
    c("v_lshl_or_b32 v%d, v%d, 1, v%d" % (h, dst, h))
    c("v_lshlrev_b32 v%d, 11, v%d" % (dst, g))
    c("v_lshl_or_b32 v%d, v%d, 7, v%d" % (dst, r4, dst))
    c("v_lshl_or_b32 v%d, v%d, 5, v%d" % (dst, h, dst))
    c("v_and_b32 v%d, 3, v%d" % (g, V_LANE))
    c("v_lshl_or_b32 v%d, v%d, 3, v%d" % (dst, g, dst))


V_XO = 52


def xloads(rb):
    return [Ins("buffer_load_dwordx4 %s, v%d, %s, s%d offen offset:%d" % (V(V_RAW + (rb * 9 + kb) * 4, 4), V_XO, srd(S_X), S_MK + rb, kb * 128)) for kb in range(9)]


def weave(c, start, extra):
    body = c.p[start:]
    del c.p[start:]
    n = len(extra)
    k = 0
    for i, x in enumerate(body):
        while k < n and k * len(body) <= i * n:
            c.p += extra[k]; k += 1
        c.p.append(x)
    for e in extra[k:]: c.p += e


def prologue_common(c):
    c("s_cmp_ge_u32 s2, 256\ns_cbranch_scc1 L_exit")
    c("s_mov_b32 s%d, 0" % S_MODE)
    c("L_restart:")
    c("s_load_dwordx16 s[16:31], s[0:1], 0\ns_load_dwordx8 s[32:39], s[0:1], 64")
    if OPT['stamps']:
        c("s_memrealtime s[100:101]")
    c("v_and_b32 v%d, 63, v%d\nv_lshrrev_b32 v2, 6, v%d" % (V_LANE, V_TID, V_TID))
    c("v_readfirstlane_b32 s%d, v2" % S_W)
    m = int(OPT['map'])
    c("s_and_b32 s%d, s2, 7\ns_lshr_b32 s%d, s2, 3" % (S_T, S_J))
    c("s_lshr_b32 s%d, s%d, 4\ns_and_b32 s%d, s%d, 15" % (S_TY, S_J, S_J, S_J))
    if m == 0:
        c("s_mov_b32 s%d, s%d\ns_mov_b32 s%d, s%d" % (S_SL, S_T, S_RT, S_J))
    else:
        c("s_andn2_b32 s%d, s%d, %d\ns_and_b32 s%d, s%d, %d\ns_or_b32 s%d, s%d, s%d" % (S_SL, S_T, (1 << m) - 1, S_T + 1, S_J, (1 << m) - 1, S_SL, S_SL, S_T + 1))
        c("s_and_b32 s%d, s%d, %d\ns_lshl_b32 s%d, s%d, %d\ns_lshr_b32 s%d, s%d, %d\ns_or_b32 s%d, s%d, s%d" %
          (S_T, S_T, (1 << m) - 1, S_T, S_T, 4 - m, S_RT, S_J, m, S_RT, S_RT, S_T))
    c("s_and_b32 s%d, s%d, 1\ns_lshr_b32 s%d, s%d, 1\ns_lshl_b32 s%d, s%d, 11" % (S_TG, S_W, S_HH, S_W, S_M0B, S_W))
    c("s_lshl_b32 s%d, s%d, 2\ns_lshl_b32 s%d, s%d, 1\ns_add_u32 s%d, s%d, s%d\ns_add_u32 s%d, s%d, s%d" %
      (S_T, S_RT, S_T + 1, S_TG, S_T, S_T, S_T + 1, S_T, S_T, S_HH))
    c("s_mul_i32 s%d, s%d, %d" % (S_MK, S_T, 32 * 1152))
    for rb in range(1, 4):
        c("s_add_u32 s%d, s%d, %d" % (S_MK + rb, S_MK, rb * 8 * 1152))
    c("v_lshrrev_b32 v2, 3, v%d\nv_mul_u32_u24 v2, 1152, v2\nv_and_b32 v3, 7, v%d\nv_lshl_add_u32 v%d, v3, 4, v2" % (V_LANE, V_LANE, V_XO))
    c("s_waitcnt lgkmcnt(0)")
    build_srd(c, S_X, 16, 17, size=2048 * 1152)
    for rb in range(2):
        c.add(xloads(rb))
    c("s_lshl_b32 s%d, s%d, 3\ns_add_u32 s%d, s%d, s%d\ns_lshl_b32 s%d, s%d, 4\ns_add_u32 s%d, s%d, s%d" %
      (S_T, S_TY, S_T, S_T, S_SL, S_T, S_T, S_T, S_T, S_RT))
    c("s_mul_i32 s%d, s%d, %d" % (S_T, S_T, PART_BYTES))
    build_srd(c, S_P, 38, 39, add_sgpr=S_T, size=PART_BYTES)


V_KK = 20
XBUF = 90112
KTAB = 89088
NPRE = 10


def layernorm(c, first_tags, setup, pre):
    T = V_TMP
    XW, XR, KW, KR, ONE, SM, NMU = V_FR, V_FR + 1, V_FR + 5, V_FR + 6, V_FR + 8, V_FR + 9, V_FR + 13
    c.add(setup)
    c("v_mov_b32 v%d, 0x3f803f80" % ONE)
    c("s_mov_b32 s%d, 0x3f80\ns_mov_b32 s%d, 0x3f800000" % (S_LO, S_HI))
    c("s_mul_i32 s%d, s%d, 18432\ns_add_u32 s%d, s%d, %d" % (S_T, S_W, S_T, S_T, XBUF))
    c("v_and_b32 v%d, 7, v%d\nv_lshrrev_b32 v%d, 3, v%d" % (T, V_LANE, T + 1, V_LANE))
    c("v_xor_b32 v%d, v%d, v%d\nv_lshlrev_b32 v%d, 4, v%d" % (XW, T, T + 1, XW, XW))
    c("v_and_b32 v%d, 3, v%d\nv_lshl_or_b32 v%d, v%d, 8, v%d" % (T + 2, T, XW, T + 2, XW))
    c("v_lshrrev_b32 v%d, 2, v%d\nv_lshl_or_b32 v%d, v%d, 10, v%d" % (T + 2, T, XW, T + 2, XW))
    c("v_add_u32 v%d, s%d, v%d" % (XW, S_T, XW))
    c("s_lshl_b32 s%d, s%d, 8\ns_lshl_b32 s%d, s%d, 7\ns_add_u32 s%d, s%d, %d" % (S_T + 1, S_TG, S_T + 2, S_HH, S_T + 1, S_T + 1, KTAB))
    c("s_add_u32 s%d, s%d, s%d" % (S_T + 3, S_T + 1, S_T + 2))
    c("v_lshlrev_b32 v%d, 2, v%d\nv_add_u32 v%d, s%d, v%d" % (KW, T + 1, KW, S_T + 3, KW))
    c("v_and_b32 v%d, 15, v%d\nv_lshlrev_b32 v%d, 2, v%d" % (T, V_LANE, KR, T))
    c("s_xor_b32 s%d, s%d, 128\ns_add_u32 s%d, s%d, s%d" % (S_T + 2, S_T + 2, S_T + 2, S_T + 2, S_T + 1))
    c("v_add_u32 v%d, s%d, v%d\nv_add_u32 v%d, s%d, v%d" % (KR + 1, S_T + 2, KR, KR, S_T + 3, KR))
    c("v_lshrrev_b32 v%d, 4, v%d\nv_xor_b32 v%d, v%d, v%d" % (T + 1, V_LANE, XR, T, T + 1))
    c("v_lshl_or_b32 v%d, v%d, 4, v%d\nv_lshlrev_b32 v%d, 4, v%d" % (XR, T + 1, XR, XR, XR))
    c("v_xor_b32 v%d, 64, v%d" % (XR + 1, XR))
    c("s_xor_b32 s%d, s%d, 2\ns_mul_i32 s%d, s%d, 18432\ns_add_u32 s%d, s%d, %d" % (S_T + 1, S_W, S_T + 1, S_T + 1, S_T + 1, S_T + 1, XBUF))
    c("v_add_u32 v%d, s%d, v%d\nv_add_u32 v%d, s%d, v%d" % (XR + 2, S_T + 1, XR, XR + 3, S_T + 1, XR + 1))
    c("v_add_u32 v%d, s%d, v%d\nv_add_u32 v%d, s%d, v%d" % (XR, S_T, XR, XR + 1, S_T, XR + 1))

    def stats(rb):
        for i in range(4): c("v_mov_b32 v%d, 0" % (SM + i))
        for kb in range(9):
            r = V_RAW + (rb * 9 + kb) * 4
            for q in range(4):
                c("v_dot2c_f32_bf16 v%d, v%d, v%d" % (SM + (q & 1), r + q, ONE))
                c("v_dot2c_f32_bf16 v%d, v%d, v%d" % (SM + 2 + (q & 1), r + q, r + q))
        c("v_add_f32 v%d, v%d, v%d\nv_add_f32 v%d, v%d, v%d" % (SM, SM, SM + 1, SM + 2, SM + 2, SM + 3))
        for d in ("quad_perm:[1,0,3,2]", "quad_perm:[2,3,0,1]", "row_half_mirror"):
            for a in (SM, SM + 2):
                c("v_add_f32_dpp v%d, v%d, v%d %s row_mask:0xf bank_mask:0xf" % (a, a, a, d))
        c("v_mul_f32 v%d, %s, v%d" % (NMU, f2h(-1.0 / 576), SM))
        c("v_mul_f32 v%d, %s, v%d" % (SM + 2, f2h(1.0 / 576), SM + 2))
        c("v_fma_f32 v%d, -v%d, v%d, v%d" % (SM + 2, NMU, NMU, SM + 2))
        c("v_max_f32 v%d, 0, v%d" % (SM + 2, SM + 2))
        c("v_add_f32 v%d, %s, v%d" % (SM + 2, f2h(1e-5), SM + 2))
        c("ds_write_b32 v%d, v%d offset:%d" % (KW, SM + 2, rb * 32), wloc=('KK', 0), cid=('KK', 0), nparts=4)

    def wr(rb, kb):
        r = V_RAW + (rb * 9 + kb) * 4
        c("ds_write_b128 v%d, %s offset:%d" % (XW, V(r, 4), kb * 2048 + (rb & 1) * 128), wloc=('X', 0), cid=('X', rb >> 1), nparts=18)

    def centre(rb, write):
        for kb in range(9):
            r = V_RAW + (rb * 9 + kb) * 4
            for q in range(4):
                t = T + 2 * q
                c("v_dot2_f32_bf16 v%d, v%d, s%d, v%d" % (t, r + q, S_LO, NMU))
                c("v_dot2_f32_bf16 v%d, v%d, s%d, v%d" % (t + 1, r + q, S_HI, NMU))
            if write and kb: wr(rb, kb - 1)
            for q in range(4):
                t = T + 2 * q
                c("v_cvt_pk_bf16_f32 v%d, v%d, v%d" % (r + q, t, t + 1))
        if write: wr(rb, 8)

    def reads(tile):
        for ks in range(18):
            for o in range(2):
                c("ds_read_b128 %s, v%d offset:%d" % (Breg(ks, 2 * o + tile), XR + 2 * o + (ks & 1), ks * 1024), rloc=('X', 0), cid=('X', tile), tag='xr')

    grp = []
    for x in pre:
        if grp and grp[-1][-1].kind != 'dma': grp[-1].append(x)
        else: grp.append([x])
    ng = len(grp)
    st = len(c.p); stats(0); weave(c, st, [[x] for x in xloads(2)])
    st = len(c.p); centre(0, True); weave(c, st, [[x] for x in xloads(3)])
    st = len(c.p); stats(1); centre(1, True); weave(c, st, grp[:ng // 2])
    c("s_barrier", ds_all=True)
    reads(0)
    st = len(c.p); stats(2); centre(2, False); weave(c, st, grp[ng // 2:])
    c("s_barrier", ds_all=True)
    for kb in range(9): wr(2, kb)
    stats(3); centre(3, True)
    c.add(stamp_ins())
    c("s_barrier", ds_all=True, vm_tags=first_tags)
    for tt in range(4):
        c("ds_read_b32 v%d, v%d offset:%d" % (V_KK + tt, KR + (tt >> 1), (tt & 1) * 64), rloc=('KK', 0), cid=('KK', 0), tag='xr')
    reads(1)


class Ring:
    def __init__(self, bars):
        self.bars = bars
        self.free = {}
        self.until = {}
        self.jobs = []
        self.need = {}
        self.loc = {}

    def bar_after(self, pos):
        for i, p in enumerate(self.bars):
            if p > pos: return i
        return len(self.bars)

    def bar_before(self, pos):
        r = -1
        for i, p in enumerate(self.bars):
            if p <= pos: r = i
        return r

    def add(self, q, need, done, make, loc=None):
        self.jobs.append(dict(q=q, need=need, done=done, make=make, loc=loc))
        self.need.setdefault(need, set()).add(('G', q))

    def pick(self, job, w):
        if job['loc'] is not None:
            return job['loc'] if self.free.get(job['loc'], -1) <= w else None
        rel = self.bar_after(job['done'])
        c = [l for l in self.pool if self.free.get(l, -1) <= w and rel <= self.until.get(l, 1 << 30)]
        if not c: return None
        return min(c, key=lambda l: (self.until.get(l, 1 << 30), self.free.get(l, -1), l))

    def plan(self, items, npre, nmax, lead, last_pos, frac=1.0):
        pre = []
        k = 0
        for job in self.jobs[:npre]:
            l = self.pick(job, -1)
            assert l is not None
            self.loc[job['q']] = l; self.free[l] = self.bar_after(job['done'])
            pre += job['make'](l)
            k += 1
        for w in range(len(self.bars)):
            p0 = self.bars[w]
            p1 = self.bars[w + 1] if w + 1 < len(self.bars) else last_pos
            sel = []
            while k < len(self.jobs) and len(sel) < nmax(w):
                job = self.jobs[k]
                if job['need'] - w > lead(w): break
                l = self.pick(job, w)
                if l is None: break
                assert job['need'] > w, ("job late", job['q'], w)
                self.loc[job['q']] = l; self.free[l] = self.bar_after(job['done'])
                sel.append((job, l)); k += 1
            if not sel: continue
            wd = (p1 - p0 - 1) * frac / len(sel)
            for i, (job, l) in enumerate(sel):
                ins = job['make'](l)
                t0 = p0 + 1 + int(i * wd)
                n = len(ins)
                for jx, x in enumerate(ins):
                    tg = t0 + (int(wd / 2) + 1 if jx == n - 1 else max(0, jx - (n - 4)) if jx < n - 2 else 1)
                    items.append(Item(x, p0, p1 - 1, tgt=tg, stream='dma'))
            if k < len(self.jobs): assert self.jobs[k]['need'] > w + 1 or True
        self.left = len(self.jobs) - k
        return pre


def dma_job(q, loc, srdn, soff_ins, vd0=V_D0, vd1=V_D1, cstep=0, soff=S_OA):
    meta = dict(wloc=('R', loc), cid=('G', q), nparts=2)
    if cstep: meta['cstep'] = cstep
    out = []
    if soff_ins: out.append(Ins(soff_ins))
    out.append(Ins("s_add_u32 m0, s%d, %d" % (S_M0B, loc), hoist=True))
    out.append(Ins("buffer_load_dwordx4 v%d, %s, s%d offen lds" % (vd0, srd(srdn), soff), **meta))
    out.append(Ins("buffer_load_dwordx4 v%d, %s, s%d offen offset:1024 lds" % (vd1, srd(srdn), soff), **meta))
    return out


def frag_items(items, f, first_use, slot_free, bar_pos, dst, areg, imm, loc, q, cstep=0, junk=False, lead=17, stream='fr'):
    meta = dict(rloc=('R', loc), cid=('G', q))
    if cstep: meta['cstep'] = cstep
    if junk: meta['junk_ok'] = True
    lo = max(slot_free, bar_pos)
    k = dst[0]
    n = dst[1]
    for h in range(2):
        reg = (V if k == 'v' else A)(n + 2 * h, 2)
        items.append(Item(Ins("ds_read_b64_tr_b16 %s, v%d offset:%d" % (reg, areg, imm + 512 * h), **meta),
                          lo, max(lo, first_use - 6), tgt=first_use - lead + 2 * h, stream=stream))


def part_store(acc, pk, va, vb, soff):
    out = []
    for tt in range(4):
        p = pk + 4 * tt
        for tile in range(2):
            a = acc + (tile * 4 + tt) * 4
            out.append(Ins("v_cvt_pk_bf16_f32 v%d, v%d, v%d" % (p + 2 * tile, a, a + 1)))
            out.append(Ins("v_cvt_pk_bf16_f32 v%d, v%d, v%d" % (p + 2 * tile + 1, a + 2, a + 3)))
        out.append(Ins("buffer_store_dwordx4 %s, v%d, %s, s%d offen offset:%d %s" %
                       (V(p, 4), va if tt < 2 else vb, srd(S_P), soff, (tt & 1) * 1024, OPT['st']), tag='st'))
    out.append(Ins("s_add_u32 s%d, s%d, 16384" % (soff, soff)))
    return out


def split_regions(items, bounds):
    regs = [[] for _ in range(len(bounds) - 1)]
    for it in items:
        g = min(max(it.tgt, it.lo), it.hi)
        g = max(g, bounds[0])
        for i in range(len(bounds) - 1):
            if bounds[i] <= g < bounds[i + 1] or (i == len(bounds) - 2 and g >= bounds[i + 1]):
                regs[i].append(it)
                break
    return regs


def clip_items(items, g0, g1):
    out = []
    for it in items:
        lo = max(it.lo, g0); hi = min(it.hi, g1 - 1)
        n = Item(it.ins, lo, max(lo, hi), tgt=it.tgt, stream=it.stream, fixed=it.fixed)
        out.append(n)
    return out


def set_cstep(items, st):
    for it in items:
        if it.ins.meta.get('cid') is not None or it.ins.meta.get('vm_tags') is not None:
            it.ins.meta['cstep'] = st


def same_period(a, b, shift):
    ka = [(i.ins.text, i.tgt, i.stream) for i in a]
    kb = [(i.ins.text, i.tgt - shift, i.stream) for i in b]
    if sorted(ka) != sorted(kb):
        sa, sb = set(ka), set(kb)
        print("only in first:", sorted(sa - sb)[:12]); print("only in other:", sorted(sb - sa)[:12])
        return False
    return True


def emit_regions(c, bb, items, plan, name):
    bounds = []
    for r in plan:
        if r[0] == 's': bounds.append(r[1])
        else: bounds += [r[1] + r[2] * k for k in range(r[3])]
    last = plan[-1]
    bounds.append(last[2] if last[0] == 's' else last[1] + last[2] * last[3])
    items = [it for it in items if min(max(it.tgt, it.lo), it.hi) < bounds[-1]]
    regs = split_regions(items, bounds)
    k = 0
    out = []
    first = True
    for r in plan:
        if r[0] == 's':
            its = regs[k]
            if first: its = [Item(it.ins, it.lo, min(it.hi, r[2] - 1), it.tgt, it.stream, it.fixed) for it in its]
            else: its = clip_items(its, r[1], r[2])
            out.append(schedule(bb, its, r[1], r[2], verbose=True, name=name + ' straight'))
            k += 1
        else:
            _, g0, ln, cnt, label, cstep = r
            for x in range(1, cnt):
                assert same_period(regs[k], regs[k + x], ln * x), "%s loop %s not periodic (%d)" % (name, label, x)
            set_cstep(regs[k], cstep)
            body = schedule(bb, clip_items(regs[k], g0, g0 + ln), g0, g0 + ln, verbose=True, name=name + ' loop')
            body += [Ins("s_sub_u32 s%d, s%d, 1" % (S_CNT, S_CNT)), Ins("s_cbranch_scc0 " + label)]
            out.append([Ins("s_mov_b32 s%d, %d" % (S_CNT, cnt - 1)), Ins(".p2align 3"), Loop(label, cnt, body)])
            k += cnt
        first = False
    return out


def spread(items, seq, lo, end, stream='valu', los=None, his=None):
    tot = sum(x.cost for x in seq)
    a = 0
    for i, x in enumerate(seq):
        l = lo if los is None else max(lo, los[i])
        h = end if his is None else min(end, his[i])
        tg = lo + int(a * (end - lo) / tot)
        a += x.cost
        items.append(Item(x, l, max(l, h), tgt=min(max(tg, l), max(l, h)), stream=stream))


def gen_ffn(c):
    V_HA, V_HB, V_RA, V_RB = 12, 13, 14, 15
    V_C1 = 16
    GA, GB, U, HREG = 88, 120, 152, 184
    V_SA, V_SB = 248, 249
    V_DD0, V_DD1 = 250, 251
    V_H4 = 252
    HB = 98304
    T = V_TMP
    NU_U = 324
    NU = NU_U + 9 * 18
    NUV = NU + 40
    NM = NU * 8
    LOOP0 = (NU_U + 3 * 18) * 8
    LOOPL = 36 * 8
    eU8 = NU_U * 8 - 1
    BX2 = eU8 + 62
    bars = sorted([32 * s + 13 for s in range(NUV // 4)] + [BX2])
    R = Ring(bars)
    R.pool = [i * 8192 for i in range(20)]
    for i in range(10, 20): R.free[i * 8192] = 0
    bx1 = R.bar_after(eU8 - 41)
    bx2 = bars.index(BX2)
    bx3 = R.bar_after(BX2 + 39)

    def hslot(gam):
        sl = gam if gam < 5 else gam - 5
        return (3 - sl) * 16384

    for gam in range(5):
        for h in range(2):
            R.until[HB + hslot(gam) + 8192 * h] = R.bar_before((2 * gam + 2) * 144 + 3)

    def mk_u(q):
        hg, kp = divmod(q, 9)
        gam, isu = divmod(hg, 2)
        return lambda loc: dma_job(q, loc, S_W1 if isu else S_W0, "s_mov_b32 s%d, %d" % (S_OA, kp * 64 * 9216 + gam * 128))

    def mk_d(q):
        dq = q - 162
        if dq == 0: so = "s_mov_b32 s%d, 0" % S_OA
        elif dq % 9 == 0: so = "s_sub_u32 s%d, s%d, %d" % (S_OA, S_OA, 8 * 73728 - 128)
        else: so = "s_add_u32 s%d, s%d, 73728" % (S_OA, S_OA)
        return lambda loc: dma_job(q, loc, S_W2, so, V_DD0, V_DD1)

    for q in range(NUV // 2 - 4):
        need = bars.index(32 * (q // 2 - 1) + 13) if q >= 2 else -1
        R.add(q, need, 16 * q + 15, mk_u(q) if q < 162 else mk_d(q))
    items = []
    orig_pick = R.pick

    def pick(job, w):
        if w >= bx1:
            for h in range(2):
                l = HB + hslot(4) + 8192 * h
                if R.until.pop(l, None) is not None: R.free[l] = bx1
        if w >= bx3:
            for gam in range(1, 4):
                for h in range(2):
                    l = HB + hslot(gam) + 8192 * h
                    if R.until.pop(l, None) is not None: R.free[l] = bx3
        return orig_pick(job, w)
    R.pick = pick
    pre = R.plan(items, NPRE, lambda w: 2 if bars[w] >= LOOP0 - 32 else 3, lambda w: int(OPT['lead']), NUV * 8)

    c("s_mul_i32 s%d, s%d, 1152" % (S_T + 2, S_SL))
    build_srd(c, S_W0, 28, 29, add_sgpr=S_T + 2, size=576 * 9216, size_sub=S_T + 2)
    build_srd(c, S_W1, 30, 31, add_sgpr=S_T + 2, size=576 * 9216, size_sub=S_T + 2)
    c("s_mul_i32 s%d, s%d, %d" % (S_T + 2, S_SL, 576 * 1152))
    build_srd(c, S_W2, 32, 33, add_sgpr=S_T + 2, size=576 * 1152)
    unit_voff(c, V_D0, 9216, False)
    c("v_add_u32 v%d, %d, v%d" % (V_D1, 32 * 9216 - 1024, V_D0))
    main = c
    c = Code()
    unit_voff(c, V_DD0, 1152, True)
    c("v_add_u32 v%d, %d, v%d" % (V_DD1, 32 * 1152 - 1024, V_DD0))
    reader_addr(c, V_RD)
    c("s_lshl_b32 s%d, s%d, 6" % (S_T, S_HH))
    c("v_xor_b32 v%d, s%d, v%d" % (V_RD, S_T, V_RD))
    c("v_xor_b32 v%d, 32, v%d" % (V_RD + 1, V_RD))
    for s in (1, 2):
        for t in range(2):
            c("v_add_u32 v%d, 0x%x, v%d" % (V_RD + 2 * s + t, 65536 * s, V_RD + t))
    c("s_lshl_b32 s%d, s%d, 12\ns_lshl_b32 s%d, s%d, 11\ns_add_u32 s%d, s%d, s%d\ns_add_u32 s%d, s%d, %d" %
      (S_T, S_TG, S_T + 1, S_HH, S_T, S_T, S_T + 1, S_T, S_T, HB))
    c("v_lshlrev_b32 v%d, 4, v%d\nv_add_u32 v%d, s%d, v%d" % (V_RA, V_LANE, V_RA, S_T, V_RA))
    c("v_xor_b32 v%d, 0x800, v%d" % (V_RB, V_RA))
    c("s_lshl_b32 s%d, s%d, 13" % (S_T, S_HH))
    c("v_add_u32 v%d, s%d, v%d\nv_add_u32 v%d, s%d, v%d" % (V_HA, S_T, V_RA, V_HB, S_T, V_RB))
    for i in range(4):
        c("v_subrev_u32 v%d, 16384, v%d" % (V_H4 + i, V_HA + i))
    c("v_subrev_u32 v%d, %d, v%d\nv_subrev_u32 v%d, %d, v%d" % (V_SA, HB, V_HA, V_SB, HB, V_HB))
    c("s_mov_b32 s%d, 0" % S_ST)
    setup = c.p
    c = main
    c.add(stamp_ins())
    layernorm(c, {('G', 0), ('G', 1)}, setup, pre)
    c.add(stamp_ins())
    seq = [Ins("v_rsq_f32 v%d, v%d" % (V_C1 + tt, V_KK + tt)) for tt in range(4)]
    seq += [Ins("v_mul_f32 v%d, %s, v%d" % (V_C1 + tt, f2h(-LOG2E), V_C1 + tt)) for tt in range(4)]
    spread(items, seq, 40, 100)

    bb = []
    for u in range(NUV):
        if u < NU_U:
            hg, ks = divmod(u, 18)
            gam, isu = divmod(hg, 2)
            acc = U if isu else (GA if gam % 2 == 0 else GB)
        else:
            beta, ks = divmod(u - NU_U, 18)
            acc = GB if beta % 2 == 0 else GA
        for tile in range(2):
            fr = V(V_FR + 4 * ((2 * u + tile) % 6), 4)
            for tt in range(4):
                d = V(acc + (tile * 4 + tt) * 4, 4)
                bb.append(mfma(d, fr, Breg(ks, tt), d if ks else "0"))
    for i, p in enumerate(bars):
        tags = {'hw'}
        if i == 0: tags.add('xr')
        if i == bx1: tags.add('r1')
        if i == bx3: tags.add('r2')
        items.append(Item(Ins("s_barrier", vm_tags=R.need.get(i, set()), ds_tags=tags, cost=2), p, p, fixed=True))
    for f in range(2 * (NU + 4)):
        u, tile = divmod(f, 2)
        q = u >> 1
        loc = R.loc[q]
        fu = 4 * f
        bp = 32 * (u // 4 - 1) + 13 if u >= 4 else -1
        frag_items(items, f, fu, fu - 21, bp, ('v', V_FR + 4 * (f % 6)), V_RD + 2 * (loc >> 16) + tile, (loc & 65535) + (u & 1) * 1024,
                   loc, q, junk=(u >= NU))
        if f % 2 == 0 and fu <= NM:
            items.append(Item(Ins("WAIT %s, %s" % (V(V_FR + 4 * (f % 6), 4), V(V_FR + 4 * ((f + 1) % 6), 4)), last=True), fu - 1, fu - 1, fixed=True))

    def haddr(base, gam, tt, extra=0):
        o = hslot(gam)
        r = base + (tt >> 1)
        if o < 0:
            r += V_H4 - V_HA; o += 16384
        return r, o + (tt & 1) * 1024 + extra

    def hwrite(gam, tt, src):
        r, o = haddr(V_HA, gam, tt)
        return Ins("ds_write_b128 v%d, %s offset:%d" % (r, V(src, 4), o), tag='hw', wloc=('H', hslot(gam)), cid=('H', gam), nparts=4)

    for gam in range(9):
        G = GA if gam % 2 == 0 else GB
        eG = (2 * gam + 1) * 144 - 1
        eU = eG + 144
        seq = []
        for tt in range(4):
            for tile in range(2):
                g = G + (tile * 4 + tt) * 4
                t = T + 4 * tile
                for e in range(4): seq.append(Ins("v_mul_f32 v%d, v%d, v%d" % (t + e, V_C1 + tt, g + e)))
                for e in range(4): seq.append(Ins("v_exp_f32 v%d, v%d" % (t + e, t + e)))
                for e in range(4): seq.append(Ins("v_fma_f32 v%d, v%d, v%d, v%d" % (t + e, t + e, V_KK + tt, V_KK + tt)))
                for e in range(4): seq.append(Ins("v_rcp_f32 v%d, v%d" % (t + e, t + e)))
                for e in range(4): seq.append(Ins("v_mul_f32 v%d, v%d, v%d" % (g + e, t + e, g + e)))
        nA = len(seq)
        for tt in range(4):
            for tile in range(2):
                g = G + (tile * 4 + tt) * 4
                uu = U + (tile * 4 + tt) * 4
                for e in range(4): seq.append(Ins("v_mul_f32 v%d, v%d, v%d" % (uu + e, g + e, uu + e)))
            dst = G + tt * 4 if gam < 5 else HREG + ((gam - 5) * 4 + tt) * 4
            for tile in range(2):
                uu = U + (tile * 4 + tt) * 4
                seq.append(Ins("v_cvt_pk_bf16_f32 v%d, v%d, v%d" % (dst + 2 * tile, uu, uu + 1)))
                seq.append(Ins("v_cvt_pk_bf16_f32 v%d, v%d, v%d" % (dst + 2 * tile + 1, uu + 2, uu + 3)))
            if gam < 5 or gam == 8:
                seq.append(hwrite(gam, tt, dst))
        end = eU + 139 if gam < 8 else BX2 - 1
        spread(items, seq, eG + 4, end, los=[eG + 4] * nA + [eU + 4] * (len(seq) - nA))
    u8 = 17 * 18

    def hread(kap, tt, tag):
        gam, hp = divmod(kap, 2)
        r, o = haddr(V_RA, gam, tt, hp * 8192)
        return Ins("ds_read_b128 %s, v%d offset:%d" % (Breg(kap, tt), r, o), rloc=('H', hslot(gam)), cid=('H', gam), tag=tag)

    for kap in range(10):
        p = (u8 + kap) * 8 + 7
        for tt in range(4):
            items.append(Item(hread(kap, tt, 'r1'), p, bars[bx1] - 6, tgt=p + 2 * tt, stream='xch'))
    p = bars[bx1]
    for gam in range(5, 8):
        for tt in range(4):
            items.append(Item(hwrite(gam, tt, HREG + ((gam - 5) * 4 + tt) * 4), p, BX2 - 1, tgt=p + 2 + 4 * ((gam - 5) * 4 + tt), stream='xch'))
    for kap in range(10, 18):
        for tt in range(4):
            fu = NU_U * 8 + kap * 8
            items.append(Item(hread(kap, tt, 'r2'), BX2, min(fu - 4, bars[bx3] - 4), tgt=BX2 + (kap - 10) * 4 + tt, stream='xch'))
    for beta in range(9):
        acc = GB if beta % 2 == 0 else GA
        e = (NU_U + 18 * (beta + 1)) * 8 - 1
        seq = part_store(acc, U + 16 * (beta % 2), V_SA, V_SB, S_ST)
        if beta == 8:
            tail = seq
            break
        spread(items, seq, e + 4, e + 110)
    for g in (143, 143 + 288 * 4, eU8, LOOP0 - 2):
        for x in stamp_ins(): items.append(Item(x, g, g, fixed=True))
    for r in emit_regions(c, bb, items, [('s', 0, LOOP0), ('l', LOOP0, LOOPL, 3, "L_ffn_d", 18)], 'ffn'):
        c.add(r)
    c.add(tail)


STAMPS = [0]


def dump_regs(c, quads, tmp=2):
    c("s_waitcnt vmcnt(0) lgkmcnt(0)\ns_nop 7\ns_nop 7")
    c("s_lshl_b32 s3, s2, 2\ns_add_u32 s3, s3, s%d\ns_lshl_b32 s3, s3, 17\ns_add_u32 s3, s3, 0x3000000" % S_W)
    c("s_mov_b32 s40, s38\ns_mov_b32 s41, s39\ns_mov_b32 s42, 0x10000000\ns_mov_b32 s43, 0x20000")
    c("v_lshlrev_b32 v%d, 4, v%d" % (tmp, V_LANE))
    for q in quads:
        c("buffer_store_dwordx4 %s, v%d, s[40:43], s3 offen" % (q, tmp))
        c("s_add_u32 s3, s3, 1024\ns_waitcnt vmcnt(0)")
    c("s_endpgm")


def stamp_ins():
    if not OPT['stamps']: return []
    i = STAMPS[0]
    STAMPS[0] += 1
    assert i < 8
    return [Ins("s_memtime s[%d:%d]" % (4 + 4 * i, 5 + 4 * i), cost=0), Ins("s_memrealtime s[%d:%d]" % (6 + 4 * i, 7 + 4 * i), cost=0)]


def finish(c):
    if OPT['stamps']:
        c("s_waitcnt vmcnt(0)")
        c.add(stamp_ins())
        c("s_waitcnt lgkmcnt(0)")
        n = STAMPS[0]
        for i in range(n):
            c("v_mov_b32 v%d, s%d\nv_mov_b32 v%d, s%d" % (32 + 2 * i, 4 + 4 * i, 33 + 2 * i, 6 + 4 * i))
        c("s_lshl_b32 s3, s2, 7\ns_add_u32 s3, s3, 0x8001000\nv_mov_b32 v7, s3")
        c("s_mov_b32 s40, s38\ns_mov_b32 s41, s39\ns_mov_b32 s42, 0x10000000\ns_mov_b32 s43, 0x20000")
        for i in range(n):
            c("buffer_store_dwordx2 v[%d:%d], v7, s[40:43], 0 offen offset:%d" % (32 + 2 * i, 33 + 2 * i, 8 * i))
        STAMPS[0] = 0
    if OPT['stamps']:
        c("s_waitcnt vmcnt(0)")
        c("s_memrealtime s[98:99]\ns_waitcnt lgkmcnt(0)")
        c("v_mov_b32 v8, s100\nv_mov_b32 v9, s101\nv_mov_b32 v10, s98\nv_mov_b32 v11, s99")
        c("s_lshl_b32 s3, s2, 4\ns_add_u32 s3, s3, 0x8000000\nv_mov_b32 v7, s3")
        c("s_mov_b32 s12, s38\ns_mov_b32 s13, s39\ns_mov_b32 s14, 0x10000000\ns_mov_b32 s15, 0x20000")
        c("buffer_store_dwordx4 v[8:11], v7, s[12:15], 0 offen")
    c("s_endpgm")


def gen_reduce():
    c = Code()
    c("s_cmp_ge_u32 s2, 576\ns_cbranch_scc1 L_rexit")
    c("s_load_dwordx2 s[4:5], s[0:1], 0\ns_load_dwordx2 s[6:7], s[0:1], 72\ns_load_dwordx2 s[8:9], s[0:1], 88")
    c("s_mul_hi_u32 s10, s2, %d" % ((1 << 32) // 36 + 1))
    c("s_mul_i32 s11, s10, 36\ns_sub_u32 s11, s2, s11")
    c("s_lshr_b32 s12, s11, 2\ns_and_b32 s13, s11, 3")
    c("s_and_b32 s14, s13, 1\ns_lshr_b32 s15, s13, 1")
    c("s_mul_i32 s16, s10, %d\ns_lshl_b32 s17, s11, 12\ns_add_u32 s16, s16, s17" % PART_BYTES)
    c("v_lshlrev_b32 v1, 4, v0\nv_add_u32 v1, s16, v1")
    c("s_lshl_b32 s18, s10, 7\ns_lshl_b32 s19, s14, 6\ns_add_u32 s18, s18, s19")
    c("v_lshrrev_b32 v2, 6, v0\nv_lshlrev_b32 v2, 4, v2\nv_and_b32 v3, 15, v0\nv_add3_u32 v2, v2, v3, s18")
    c("v_mul_u32_u24 v2, 1152, v2")
    c("s_lshl_b32 s18, s12, 7\ns_lshl_b32 s19, s15, 6\ns_add_u32 s18, s18, s19")
    c("v_bfe_u32 v3, v0, 4, 2\nv_lshlrev_b32 v3, 3, v3\nv_add3_u32 v2, v2, v3, s18")
    c("s_waitcnt lgkmcnt(0)")
    c("s_mov_b32 s20, s8\ns_mov_b32 s21, s9\ns_mov_b32 s22, %d\ns_mov_b32 s23, 0x20000" % (256 * PART_BYTES))
    c("s_mov_b32 s24, s4\ns_mov_b32 s25, s5\ns_mov_b32 s26, %d\ns_mov_b32 s27, 0x20000" % (2048 * 1152))
    c("s_mov_b32 s28, s6\ns_mov_b32 s29, s7\ns_mov_b32 s30, %d\ns_mov_b32 s31, 0x20000" % (2048 * 1152))
    order = list(range(8, 16)) + list(range(8))
    for i, p in enumerate(order):
        c("s_mov_b32 s%d, %d" % (32 + i, p * 16 * PART_BYTES))
        c("buffer_load_dwordx4 %s, v1, s[20:23], s%d offen" % (V(16 + 4 * p, 4), 32 + i))
    c("buffer_load_dwordx2 v[4:5], v2, s[24:27], 0 offen\nbuffer_load_dwordx2 v[6:7], v2, s[24:27], 0 offen offset:32")
    c("s_mov_b32 s3, 0xffff0000")
    D, S = 80, 88
    for base, ps in ((D, range(8, 16)), (S, range(8))):
        for n, p in enumerate(ps):
            for q in range(4):
                r = 16 + 4 * p + q
                if n == 0:
                    c("v_lshlrev_b32 v%d, 16, v%d\nv_and_b32 v%d, s3, v%d" % (base + 2 * q, r, base + 2 * q + 1, r))
                else:
                    c("v_lshlrev_b32 v8, 16, v%d\nv_and_b32 v9, s3, v%d" % (r, r))
                    c("v_add_f32 v%d, v8, v%d\nv_add_f32 v%d, v9, v%d" % (base + 2 * q, base + 2 * q, base + 2 * q + 1, base + 2 * q + 1))
        if base == D:
            for e in range(8): c("v_mul_f32 v%d, %s, v%d" % (96 + e, f2h(-LOG2E), D + e))
            for e in range(8): c("v_exp_f32 v%d, v%d" % (96 + e, 96 + e))
            for e in range(8): c("v_add_f32 v%d, 1.0, v%d" % (96 + e, 96 + e))
            for e in range(8): c("v_rcp_f32 v%d, v%d" % (96 + e, 96 + e))
            for e in range(8): c("v_mul_f32 v%d, v%d, v%d" % (D + e, 96 + e, D + e))
    for q in range(4):
        c("v_lshlrev_b32 v8, 16, v%d\nv_and_b32 v9, s3, v%d" % (4 + q, 4 + q))
        c("v_fma_f32 v8, v%d, v%d, v8\nv_fma_f32 v9, v%d, v%d, v9" % (S + 2 * q, D + 2 * q, S + 2 * q + 1, D + 2 * q + 1))
        c("v_cvt_pk_bf16_f32 v%d, v8, v9" % (10 + q))
    c("buffer_store_dwordx2 v[10:11], v2, s[28:31], 0 offen\nbuffer_store_dwordx2 v[12:13], v2, s[28:31], 0 offen offset:32")
    c("L_rexit:\ns_endpgm")
    return c


def kd(name, nv, ao, ns=102):
    return """.p2align 6
.amdhsa_kernel %s
  .amdhsa_next_free_vgpr %d
  .amdhsa_next_free_sgpr %d
  .amdhsa_accum_offset %d
  .amdhsa_group_segment_fixed_size 0
  .amdhsa_kernarg_size 96
  .amdhsa_user_sgpr_count 2
  .amdhsa_user_sgpr_kernarg_segment_ptr 1
  .amdhsa_system_sgpr_workgroup_id_x 1
.end_amdhsa_kernel""" % (name, nv, ns, ao)


def alias_map(regions):
    rg = dict(regions)
    for i in range(20): rg[('R', i * 8192)] = (i * 8192, i * 8192 + 8192)
    al = {}
    for a, (s0, e0) in rg.items():
        al[a] = [b for b, (s1, e1) in rg.items() if b != a and s0 < e1 and s1 < e0]
    return al


def build_all():
    import gen_attn as GA_
    GA_.G.OPT.update(OPT); gen_attn = GA_.gen_attn
    main = KNAME + "_kernel"
    out = ["; @launch kernel=%s grid=(256,1,1) block=(256,1,1) lds=163840" % main,
           "; @launch kernel=reduce_kernel grid=(576,1,1) block=(256,1,1) lds=0",
           '.amdgcn_target "amdgcn-amd-amdhsa--gfx950"', ".text",
           ".globl %s" % main, ".p2align 8", ".type %s,@function" % main, main + ":"]
    pro = Code(); prologue_common(pro)
    pro("s_cmp_eq_u32 s%d, 0\ns_cbranch_scc0 L_ffn" % S_TY)
    att = Code(); gen_attn(att); finish(att)
    ffn = Code(); gen_ffn(ffn); finish(ffn)
    base = {('X', 0): (XBUF, 163840), ('KK', 0): (KTAB, KTAB + 512)}
    fa = dict(base)
    for o in (-16384, 0, 16384, 32768, 49152): fa[('H', o)] = (98304 + o, 98304 + o + 16384)
    aa = dict(base)
    aa[('Q', 0)] = (98304, 163840)
    aa[('FL', 0)] = (98304 - 64, 98304)
    w = 0
    for tr in att.traces: w += analyze(pro.p + tr, alias=alias_map(aa))
    w += analyze(pro.p + ffn.p, alias=alias_map(fa))
    print("attn", stats(att.p)); print("ffn", stats(ffn.p))
    assert w == 0, "LDS model warnings"
    emit(pro.p, out); emit(att.p, out)
    redo = Code()
    redo("L_redo:\ns_waitcnt vmcnt(0) lgkmcnt(0)\ns_barrier\ns_mov_b32 s%d, 1" % S_MODE)
    redo("v_mbcnt_lo_u32_b32 v0, -1, 0\nv_mbcnt_hi_u32_b32 v0, -1, v0\ns_lshl_b32 s%d, s%d, 6\nv_or_b32 v0, s%d, v0\ns_branch L_restart" % (S_T, S_W, S_T))
    if OPT.get('dbg'): redo.p = [Ins("L_redo:"), Ins("s_endpgm")]
    emit(redo.p, out)
    out.append("L_slow:")
    if att.slow: emit(att.slow, out)
    else: out.append("s_endpgm")
    out.append(".p2align 6\nL_ffn:")
    emit(ffn.p, out)
    out.append("L_exit:\ns_endpgm")
    red = gen_reduce()
    analyze(red.p)
    out += [".globl reduce_kernel", ".p2align 8", ".type reduce_kernel,@function", "reduce_kernel:"]
    emit(red.p, out)
    out.append('.section .rodata,"a"')
    out.append(kd(main, 512, 256))
    out.append(kd("reduce_kernel", 104, 104, 64))
    return "\n".join(out) + "\n"


if __name__ == "__main__":
    for a in sys.argv[2:]:
        k, v = a.split("=")
        OPT[k] = {'True': True, 'False': False}.get(v, v)
    t = build_all()
    open(sys.argv[1], "w").write(t)
    print("bytes", len(t))
```

```python
from gen import *
import gen as G

V_QW, V_QR = 0, 1
V_VD0, V_VD1 = 2, 3
V_KD0, V_KD1 = 14, 15
V_KR = 16
V_QS = 20
V_OWA, V_OWB, V_ORA, V_ORB, V_SA, V_SB, V_DD0, V_DD1 = 24, 25, 26, 27, 28, 29, 30, 31
V_VR = 6
V_DR = 10
X, Y = 88, 152
S0, P0, O = 32, 96, 128
A_Q, A_KF, A_VF, A_L, A_ONE = 0, 64, 128, 224, 240
QB = 98304
FLG = QB - 64
S_KO, S_VO, S_JMP = 80, 81, 82
ACC = (64, 96)
PK = 128


def build(slow):
    bb = []
    items = []
    for q in range(72):
        gi, ks = divmod(q, 18)
        acc = X if gi % 2 == 0 else Y
        for t in range(4):
            fr = V(V_FR + 4 * ((4 * q + t) % 6), 4)
            for tt in range(4):
                d = V(acc + (t * 4 + tt) * 4, 4)
                bb.append(mfma(d, fr, Breg(ks, tt), d if ks else "0"))
    EQ = len(bb)
    it0 = {}
    kpos = {}
    vpos = {}
    spos = {}

    def kgroup(m, i):
        kt, ds = divmod(i, 4)
        kpos[(m, i)] = len(bb)
        for tt in range(4):
            d = V(S0 + 32 * (m & 1) + (kt * 4 + tt) * 4, 4)
            bb.append(mfma(d, A(A_KF + 4 * i, 4), A(A_Q + (ds * 4 + tt) * 4, 4), d if ds else "0"))

    def vgroup(m, dt):
        vpos[(m, dt)] = len(bb)
        for tt in range(4):
            d = V(O + (dt * 4 + tt) * 4, 4)
            bb.append(mfma(d, A(A_VF + 4 * dt, 4), V(P0 + 16 * (m & 1) + 4 * tt, 4), d if m % 16 else "0"))

    def sgroup(m):
        spos[m] = len(bb)
        for tt in range(4):
            d = A(A_L + 4 * tt, 4)
            bb.append(mfma(d, A(A_ONE, 4), V(P0 + 16 * (m & 1) + 4 * tt, 4), d if m % 16 else "0"))

    for n in range(-1, 33):
        it0[n] = len(bb)
        k, v = n + 1 <= 31, n - 1 >= 0
        if n == 16:
            sgroup(n - 1)
            for i in range(8): vgroup(n - 1, i)
            for i in range(8): kgroup(n + 1, i)
        elif n == 17:
            for i in range(8): kgroup(n + 1, i)
            for i in range(8): vgroup(n - 1, i)
            sgroup(n - 1)
        elif n == 32:
            sgroup(n - 1)
            for i in range(8): vgroup(n - 1, i)
        else:
            for i in range(8):
                if k: kgroup(n + 1, i)
                if v: vgroup(n - 1, i)
            if v: sgroup(n - 1)
    it0[33] = EA = len(bb)
    units = [(0, k) for k in range(8)] + [(1, k) for k in range(8)] + [(0, k) for k in range(8, 16)] + [(1, k) for k in range(8, 16)]
    units += [(b, k) for b in range(2, 12) for k in range(16)]
    for u, (beta, kap) in enumerate(units):
        for tile in range(2):
            fr = V(V_FR + 4 * ((2 * u + tile) % 8), 4)
            for tt in range(4):
                d = V(ACC[beta % 2] + (tile * 4 + tt) * 4, 4)
                bb.append(mfma(d, fr, A((kap * 4 + tt) * 4, 4), d if kap else "0"))
    NM = EA + 9 * 128
    LOOP0 = EA + 48 * 8
    LEAD = 24
    barsQ = [32 * s + 13 for s in range(36)]
    barA = {}
    for n in range(-1, 32):
        barA[n] = it0[n + 1] - LEAD - 2
    barA[-1] = it0[0] - 20
    barA[30] = it0[31] - LEAD - 2
    barA[31] = it0[32] - 20
    BD0 = EA - 19
    X1 = EA + 13
    X2 = EA + 104
    barsD = [EA + 32 * s + 13 for s in range(len(units) // 4 - 1)]
    bars = sorted(set(barsQ + list(barA.values()) + [BD0, X2] + barsD))
    R = Ring(bars)
    bi = {p: i for i, p in enumerate(bars)}
    x1, x2 = bi[X1], bi[X2]
    x3 = R.bar_after(X2 + 44)
    R.pool = [i * 8192 for i in range(12)]
    for i in (10, 11): R.free[i * 8192] = 0

    def mk_q(q):
        gi, ks = divmod(q, 18)
        return lambda loc: dma_job(q, loc, S_W0, "s_mov_b32 s%d, %d" % (S_OA, ks * 32 * 8192 + (gi >> 1) * 512 + (gi & 1) * 128))

    for q in range(72):
        R.add(q, bi[32 * (q // 2 - 1) + 13] if q >= 2 else -1, 16 * q + 15, mk_q(q))

    def mk_k(m):
        if m == 0: so = "s_mov_b32 s%d, 0" % S_KO
        elif m % 4 == 0 and m >= 8: so = "s_add_u32 s%d, s%d, s%d" % (S_KO, S_KO, S_JMP)
        else: so = "s_add_u32 s%d, s%d, 8192" % (S_KO, S_KO)
        return lambda loc: dma_job(100 + 2 * m, loc, S_W1, so, V_KD0, V_KD1, soff=S_KO)

    def mk_v(m):
        if m == 0: so = "s_mov_b32 s%d, 0" % S_VO
        elif m == 16: so = "s_add_u32 s%d, s%d, %d" % (S_VO, S_VO, 524288 - 15 * 8192)
        else: so = "s_add_u32 s%d, s%d, 8192" % (S_VO, S_VO)
        return lambda loc: dma_job(101 + 2 * m, loc, S_W3, so, V_VD0, V_VD1, soff=S_VO)

    def kneed(m): return bi[barsQ[35]] if m == 0 else bi[barA[min(m - 2, 31)]]
    def kdone(m): return kpos[(m, 7)] + 3 if m <= 31 else bars[bi[barA[31]]] - 1
    order = [('k', 0), ('k', 1), ('k', 2), ('v', 0)]
    for n in range(-1, 30):
        order += [('k', n + 4), ('v', n + 2)]
    for kind, m in order:
        if kind == 'k':
            R.add(100 + 2 * m, kneed(m), kdone(m), mk_k(m), loc=(m % 4) * 8192)
        else:
            R.add(101 + 2 * m, bi[barA[m]], max(vpos[(m, 7)] + 3, spos[m]), mk_v(m), loc=32768 + (m % 4) * 8192)

    def mk_d(dq):
        beta, kap = units[2 * dq]
        off = (kap // 2) * 73728 + beta * 128
        if dq < 16:
            so = "s_mov_b32 s%d, %d" % (S_OA, off)
        elif kap == 0:
            so = "s_sub_u32 s%d, s%d, %d" % (S_OA, S_OA, 7 * 73728 - 128)
        else:
            so = "s_add_u32 s%d, s%d, 73728" % (S_OA, S_OA)
        return lambda loc: dma_job(200 + dq, loc, S_W2, so, V_DD0, V_DD1)

    ND = len(units) // 2 - 6
    for dq in range(ND):
        R.add(200 + dq, bi[BD0] if dq < 2 else bi[EA + 32 * (dq // 2 - 1) + 13], EA + 16 * dq + 15, mk_d(dq))
    orig_pick = R.pick
    aw0, aw1 = bi[barA[-1]], bi[barA[30]]

    def pick(job, w):
        if job['q'] >= 200:
            if w < aw1: return None
            R.pool = [i * 8192 for i in range(16)]
            if 12 * 8192 not in R.free:
                for i in range(11, 16): R.free[i * 8192] = x3
        return orig_pick(job, w)
    R.pick = pick

    def nmax(w):
        if aw0 <= w < aw1: return 2
        if w == aw1: return 4
        return 2 if bars[w] >= LOOP0 - 32 else 3

    def lead(w):
        if aw0 <= w < aw1: return 2
        return int(OPT['lead'])

    pre = R.plan(items, NPRE, nmax, lead, len(bb), frac=0.8)
    for i, p in enumerate(bars):
        tags = {'ow'}
        if i == 0: tags.add('xr')
        if i == x1: tags.add('r1')
        if i == x3: tags.add('r2')
        items.append(Item(Ins("s_barrier", vm_tags=R.need.get(i, set()), ds_tags=tags, cost=2), p, p, fixed=True))
    for n in range(2, 30, 4):
        if 14 <= n < 18: continue
        p = it0[n] + 4
        items.append(Item(Ins("s_cmp_eq_u32 s%d, 0" % S_CNT, cost=2, pair="s_cselect_b32 s%d, %d, s87" % (S_JMP, 524288 - 15 * 8192)), p, p + 40, tgt=p, stream='jmp'))
    items.append(Item(Ins("s_mov_b32 s%d, 8192" % S_JMP), it0[14], it0[14] + 40, stream='jmp2'))
    for f in range(288):
        q, t = divmod(f, 4)
        loc = R.loc[q]
        fu = 4 * f
        bp = 32 * (q // 2 - 1) + 13 if q >= 2 else -1
        frag_items(items, f, fu, fu - 21, bp, ('v', V_FR + 4 * (f % 6)), V_RD + 4 * (loc >> 16) + t, loc & 65535, loc, q)
        if f % 2 == 0:
            items.append(Item(Ins("WAIT %s, %s" % (V(V_FR + 4 * (f % 6), 4), V(V_FR + 4 * ((f + 1) % 6), 4)), last=True), fu - 1, fu - 1, fixed=True))
    T = S_T + 5
    su = []
    for tt in range(4): su.append("v_rsq_f32 v%d, v%d" % (V_QS + tt, V_QS + tt))
    for tt in range(4): su.append("v_mul_f32 v%d, %s, v%d" % (V_QS + tt, f2h(LOG2E / 128 ** 0.5), V_QS + tt))
    su += ["v_lshlrev_b32 v%d, 4, v%d" % (V_QR, V_LANE),
           "s_lshl_b32 s%d, s%d, 12" % (T, S_W), "s_lshl_b32 s%d, s%d, 11" % (T + 1, S_HH), "s_add_u32 s%d, s%d, s%d" % (T, T, T + 1),
           "v_add_u32 v%d, s%d, v%d" % (V_SA, T, V_QR), "v_xor_b32 v%d, 0x800, v%d" % (V_SB, V_SA),
           "s_lshl_b32 s%d, s%d, 14" % (T, S_TG), "s_add_u32 s%d, s%d, s%d" % (T, T, T + 1), "s_add_u32 s%d, s%d, %d" % (T, T, QB),
           "v_add_u32 v%d, s%d, v%d" % (V_ORA, T, V_QR), "v_xor_b32 v%d, 0x800, v%d" % (V_ORB, V_ORA),
           "s_lshl_b32 s%d, s%d, 15" % (T + 1, S_HH),
           "v_add_u32 v%d, s%d, v%d" % (V_OWA, T + 1, V_ORA), "v_add_u32 v%d, s%d, v%d" % (V_OWB, T + 1, V_ORB),
           "s_lshl_b32 s%d, s%d, 14" % (T, S_W), "s_add_u32 s%d, s%d, %d" % (T, T, QB),
           "v_add_u32 v%d, s%d, v%d" % (V_QR, T, V_QR),
           "v_mov_b32 v%d, v%d" % (V_DD0, 248), "v_add_u32 v%d, %d, v%d" % (V_DD1, 32 * 1152 - 1024, 248)]
    spread(items, [Ins(x) for x in su], 30, 200, stream='misc')
    qwrites = {}
    yepi = None
    for gi in range(4):
        acc = X if gi % 2 == 0 else Y
        dh = gi & 1
        e = 288 * (gi + 1) - 1
        seq = []
        wr = []
        for i in range(2):
            for tt in range(4):
                for t in (2 * i, 2 * i + 1):
                    a = acc + (t * 4 + tt) * 4
                    for x in range(4): seq.append(Ins("v_mul_f32 v%d, v%d, v%d" % (a + x, V_QS + tt, a + x)))
                    seq.append(Ins("v_cvt_pk_bf16_f32 v%d, v%d, v%d" % (a, a, a + 1)))
                    seq.append(Ins("v_cvt_pk_bf16_f32 v%d, v%d, v%d" % (a + 1, a + 2, a + 3)))
                F = (2 * dh + i) * 4 + tt
                w = Ins("ds_write2st64_b64 v%d, %s, %s offset0:%d offset1:%d" %
                        (V_QW, V(acc + (2 * i * 4 + tt) * 4, 2), V(acc + ((2 * i + 1) * 4 + tt) * 4, 2), 2 * F, 2 * F + 1),
                        wloc=('Q', 0), cid=('Q', gi >> 1), nparts=16, private=(gi >= 1), tag='qw')
                if gi == 2: wr.append(w)
                else: seq.append(w)
        if gi < 3:
            spread(items, seq, e + 4, e + 200)
            if gi == 2: q1a = wr
        else:
            yepi = seq
    p = 864 + 4 * 16
    for F in range(16):
        items.append(Item(Ins("ds_read_b128 %s, v%d offset:%d" % (A(A_Q + 4 * F, 4), V_QR, F * 1024), rloc=('Q', 0), cid=('Q', 0), private=True),
                          p, EQ - 30, tgt=p + 4 * F, stream='xch'))
    for i, w in enumerate(q1a):
        items.append(Item(w, 863 + 202, EQ + 20, tgt=863 + 204 + 8 * i, stream='xch'))
    su = ["s_lshl_b32 s%d, s%d, 10" % (T, S_HH), "s_sub_u32 s%d, 0x8000, s%d" % (T + 1, T), "s_lshl_b32 s%d, s%d, 6" % (T + 2, S_HH)]
    for x in su: items.append(Item(Ins(x), 700, 800, stream='misc'))
    su = ["v_subrev_u32 v%d, s%d, v%d" % (V_DR, T, V_RD), "v_xor_b32 v%d, s%d, v%d" % (V_DR, T + 2, V_DR)]
    su += ["v_add_u32 v%d, s%d, v%d" % (V_VR + t, T + 1, V_RD + t) for t in range(4)]
    late = ["v_xor_b32 v%d, 32, v%d" % (V_DR + 1, V_DR), "v_add_u32 v%d, 0x10000, v%d" % (V_DR + 2, V_DR), "v_add_u32 v%d, 0x10000, v%d" % (V_DR + 3, V_DR + 1)]
    su += ["v_mov_b32 v%d, v%d" % (4, V_DR)]
    for x in su: items.append(Item(Ins(x), EQ - 5, EQ + 12, stream='misc'))
    for i in range(4):
        items.append(Item(Ins("v_accvgpr_write_b32 a%d, s%d" % (A_ONE + i, S_LO)), EQ + 8, it0[1] - 4, tgt=EQ + 30 + i, stream='misc'))
    items.append(Item(Ins("s_mov_b32 s%d, 0x3f803f80" % S_LO), 600, 650, stream='misc2'))
    items.append(Item(Ins("s_mov_b32 s%d, 0" % S_BAD), 600, 650, stream='misc2'))
    items.append(Item(Ins("s_mov_b32 s87, 8192"), 600, 650, stream='misc2'))
    items.append(Item(Ins("s_mov_b32 s%d, 0" % S_ST), 600, 650, stream='misc2'))
    if not slow:
        spread(items, yepi, EQ + 3, it0[1] - 3)
    for m in range(32):
        bp = bars[kneed(m)]
        loc = (m % 4) * 8192
        for i in range(8):
            kt, ds = divmod(i, 4)
            fu = kpos[(m, i)]
            fr = kpos[(m - 1, i)] + 3 if m else 864 + (4 + i // 4) * 16 + 15
            lo = max(bp, fr)
            items.append(Item(Ins("ds_read_b128 %s, v%d offset:%d" % (A(A_KF + 4 * i, 4), V_KR + ds, loc + kt * 4096), rloc=('R', loc), cid=('G', 100 + 2 * m)),
                              lo, max(lo, fu - 6), tgt=fu - LEAD, stream='kf'))
        bp = barA[m]
        loc = 32768 + (m % 4) * 8192
        for dt in range(8):
            fu = vpos[(m, dt)]
            fr = vpos[(m - 1, dt)] + 3 if m else EQ + 13
            frag_items(items, 0, fu, fr, bp, ('a', A_VF + 4 * dt), V_VR + (dt & 3), (m % 4) * 8192 + (dt >> 2) * 1024, loc, 101 + 2 * m, lead=LEAD, stream='vf')
    g = EQ
    while g < EA:
        regs = []
        n_it = max(n for n in it0 if it0[n] <= g)
        nxt = min(g + 8, it0[n_it + 1])
        for x in bb[g:nxt]:
            r = "a[%d:%d]" % (x.A[0][1], x.A[-1][1])
            if r not in regs and x.A[0][1] != A_ONE: regs.append(r)
        if regs: items.append(Item(Ins("WAIT " + ", ".join(regs), last=True), g - 1, g - 1, fixed=True))
        g = nxt
    for ds in range(4):
        for tt in range(4):
            p = kpos[(15, 4 + ds)] + 3
            items.append(Item(Ins("ds_read_b128 %s, v%d offset:%d" % (A(A_Q + (ds * 4 + tt) * 4, 4), V_QR, (ds * 4 + tt) * 1024), rloc=('Q', 0), cid=('Q', 1), private=True),
                              p, kpos[(16, ds)] - 5, tgt=p + 2 * tt, stream='xch'))
    for n in range(32):
        S = S0 + 32 * (n & 1)
        P = P0 + 16 * (n & 1)
        seq, los = [], []
        for kt in range(2):
            rdy = kpos[(n, 4 * kt + 3)] + 3 + 4
            for tt in range(4):
                s = S + (kt * 4 + tt) * 4
                if slow:
                    for x in range(4): seq.append(Ins("v_add_f32 v%d, v%d, v%d" % (s + x, V_QS + tt, s + x)))
                for x in range(4): seq.append(Ins("v_exp_f32 v%d, v%d" % (s + x, s + x)))
                seq.append(Ins("v_cvt_pk_bf16_f32 v%d, v%d, v%d" % (P + 4 * tt + 2 * kt, s, s + 1)))
                seq.append(Ins("v_cvt_pk_bf16_f32 v%d, v%d, v%d" % (P + 4 * tt + 2 * kt + 1, s + 2, s + 3)))
                los += [rdy] * (len(seq) - len(los))
        lo = it0[n] - 1
        pfree = max(vpos[(n - 2, 7)], spos[n - 2]) + 3 if n >= 2 else 0
        first_pv = min(vpos[(n, 0)], spos[n])
        end = min(it0[n + 1] - 1, first_pv - 2)
        if n == 16: end = first_pv - 2 - 20
        if n + 2 <= 31: end = min(end, kpos[(n + 2, 0)] - 1)
        spread(items, seq, max(lo, 0), end, stream='exp', los=los)
    for hd in range(2):
        m = 15 + 16 * hd
        RL = V_DR if hd == 0 else V_KR
        p0 = spos[m] + 3 + 4
        seq, los, his = [], [], []
        for tt in range(4): seq.append(Ins("v_accvgpr_read_b32 v%d, a%d" % (RL + tt, A_L + 4 * tt)))
        if not slow:
            seq.append(Ins("v_max3_f32 v5, v%d, v%d, v%d" % (RL, RL + 1, RL + 2)))
            seq.append(Ins("v_max_f32 v5, v5, v%d" % (RL + 3)))
            seq.append(Ins("v_cmp_nlt_f32 vcc, v5, %s" % "s%d" % S_HI))
            seq.append(Ins("s_or_b32 s%d, s%d, vcc_lo" % (S_BAD, S_BAD), rdx='vcc'))
            seq.append(Ins("s_or_b32 s%d, s%d, vcc_hi" % (S_BAD, S_BAD), rdx='vcc'))
            seq.append(Ins("v_add_f32 v5, v%d, v%d" % (RL, RL + 1)))
            seq.append(Ins("v_add_f32 v5, v5, v%d" % (RL + 2)))
            seq.append(Ins("v_add_f32 v5, v5, v%d" % (RL + 3)))
            seq.append(Ins("v_cmp_u_f32 vcc, v5, v5"))
            seq.append(Ins("s_or_b32 s%d, s%d, vcc_lo" % (S_BAD, S_BAD), rdx='vcc'))
            seq.append(Ins("s_or_b32 s%d, s%d, vcc_hi" % (S_BAD, S_BAD), rdx='vcc'))
            seq.append(Ins("v_min3_f32 v5, v%d, v%d, v%d" % (RL, RL + 1, RL + 2)))
            seq.append(Ins("v_min_f32 v5, v5, v%d" % (RL + 3)))
            seq.append(Ins("v_cmp_ngt_f32 vcc, v5, %s" % "s%d" % (S_HI + 7)))
            seq.append(Ins("s_or_b32 s%d, s%d, vcc_lo" % (S_BAD, S_BAD), rdx='vcc'))
            seq.append(Ins("s_or_b32 s%d, s%d, vcc_hi" % (S_BAD, S_BAD), rdx='vcc'))
        for tt in range(4): seq.append(Ins("v_rcp_f32 v%d, v%d" % (RL + tt, RL + tt)))
        n0 = len(seq)
        lim = spos[16] - 1 if hd == 0 else X2 - 1
        los += [p0] * n0; his += [lim] * n0
        for dq in range(4):
            rdy = vpos[(m, 2 * dq + 1)] + 3 + 4
            dl = vpos[(16, 2 * dq)] - 1 if hd == 0 else X2 - 1
            for tt in range(4):
                a0, a1 = O + (2 * dq * 4 + tt) * 4, O + ((2 * dq + 1) * 4 + tt) * 4
                for a in (a0, a1):
                    for x in range(4): seq.append(Ins("v_mul_f32 v%d, v%d, v%d" % (a + x, RL + tt, a + x)))
                seq.append(Ins("v_cvt_pk_bf16_f32 v%d, v%d, v%d" % (a0, a0, a0 + 1)))
                seq.append(Ins("v_cvt_pk_bf16_f32 v%d, v%d, v%d" % (a0 + 1, a0 + 2, a0 + 3)))
                seq.append(Ins("v_cvt_pk_bf16_f32 v%d, v%d, v%d" % (a0 + 2, a1, a1 + 1)))
                seq.append(Ins("v_cvt_pk_bf16_f32 v%d, v%d, v%d" % (a0 + 3, a1 + 2, a1 + 3)))
                los += [rdy] * (len(seq) - len(los))
                seq.append(Ins("ds_write_b128 v%d, %s offset:%d" % (V_OWA + (tt >> 1), V(a0, 4), dq * 4096 + (tt & 1) * 1024),
                               wloc=('Q', 0), cid=('Q', 2 + hd), nparts=16, private=(hd == 0), tag='ow', cost=5))
                los.append(rdy if hd == 0 else max(rdy, X1))
                his += [dl] * (len(seq) - len(his))
        if hd == 1 and not slow:
            seq.append(Ins("v_mov_b32 v5, s%d" % S_BAD))
            seq.append(Ins("v_mov_b32 v4, s%d" % (S_HI + 8)))
            seq.append(Ins("ds_write_b32 v4, v5", wloc=('FL', 0), cid=('FL', 0), tag='ow'))
            los += [p0] * 3; his += [X2 - 1] * 3
        spread(items, seq, p0, max(his), stream='valu', los=los, his=his)
        if hd == 0:
            items.append(Item(Ins("v_mov_b32 v%d, v4" % V_DR), it0[18] - 2, it0[18] - 1, stream='valu'))
            if slow:
                for tt in range(4):
                    items.append(Item(Ins("v_accvgpr_read_b32 v%d, a%d" % (V_QS + tt, 96 + tt)), it0[16] - 1, it0[16] - 1, fixed=True))
    for x in late: items.append(Item(Ins(x), it0[30], it0[31], stream='misc'))
    for x in ("s_mov_b32 s%d, %s" % (S_HI, f2h(2.0 ** 60)), "s_mov_b32 s%d, %s" % (S_HI + 7, f2h(2.0 ** -60)),
              "s_lshl_b32 s%d, s%d, 2" % (S_HI + 8, S_W), "s_add_u32 s%d, s%d, %d" % (S_HI + 8, S_HI + 8, FLG)):
        items.append(Item(Ins(x), it0[14], it0[15], stream='misc'))
    def oread(kap, tt, tag):
        hp, dq = divmod(kap & 7, 4)
        return Ins("ds_read_b128 %s, v%d offset:%d" % (A((kap * 4 + tt) * 4, 4), V_ORA + (tt >> 1), hp * 32768 + dq * 4096 + (tt & 1) * 1024),
                   rloc=('Q', 0), cid=('Q', 2 + (kap >> 3)), tag=tag)
    p = it0[31]
    for kap in range(8):
        for tt in range(4):
            items.append(Item(oread(kap, tt, 'r1'), p, min(EA + kap * 8 - 5, X1 - 4), tgt=p + 2 + 2 * (kap * 4 + tt), stream='xch'))
    if not slow:
        items.append(Item(Ins("v_mov_b32 v4, %d" % FLG), X2, X2 + 2, stream='flg'))
        items.append(Item(Ins("ds_read_b128 v[%d:%d], v4" % (V_QS, V_QS + 3), rloc=('FL', 0), cid=('FL', 0), tag='r2'), X2 + 1, X2 + 4, stream='flg'))
    for kap in range(8, 16):
        for tt in range(4):
            items.append(Item(oread(kap, tt, 'r2'), X2, min(EA + 128 + (kap - 8) * 8 - 5, bars[x3] - 4), tgt=X2 + 1 + (kap - 8) * 4 + tt, stream='xch'))
    CHK = X2 + 16
    if not slow:
        for x in ("v_or3_b32 v%d, v%d, v%d, v%d" % (V_QS, V_QS, V_QS + 1, V_QS + 2), "v_or_b32 v%d, v%d, v%d" % (V_QS, V_QS, V_QS + 3),
                  "v_readfirstlane_b32 s%d, v%d" % (S_BAD, V_QS)):
            items.append(Item(Ins(x), CHK - 5, CHK - 1, stream='misc'))
        items.append(Item(Ins("s_cmp_lg_u32 s%d, 0" % S_BAD, cost=2, pair="s_cbranch_scc1 L_redo"), CHK + 1, CHK + 1, fixed=True))
    for f in range(2 * (9 * 16 + 4)):
        u, tile = divmod(f, 2)
        dq = u >> 1
        loc = R.loc[200 + dq]
        fu = EA + 4 * f
        bp = BD0 if u < 4 else EA + 32 * (u // 4 - 1) + 13
        frag_items(items, f, fu, fu - 29, bp, ('v', V_FR + 4 * (f % 8)), V_DR + 2 * (loc >> 16) + tile, (loc & 65535) + (u & 1) * 1024,
                   loc, 200 + dq, junk=(u >= 144))
        if f % 2 == 0 and fu <= NM:
            items.append(Item(Ins("WAIT %s, %s" % (V(V_FR + 4 * (f % 8), 4), V(V_FR + 4 * ((f + 1) % 8), 4)), last=True), fu - 1, fu - 1, fixed=True))
    for beta in range(9):
        e = EA + (24 * 8 if beta == 0 else 128 * (beta + 1)) - 1
        seq = part_store(ACC[beta % 2], PK + 16 * (beta % 2), V_SA, V_SB, S_ST)
        if beta == 8:
            tail = seq
            break
        spread(items, seq, e + 4, e + (56 if beta == 0 else 100))
    return bb, items, dict(pre=pre, EQ=EQ, EA=EA, it0=it0, LOOP0=LOOP0, NM=NM, tail=tail, yepi=yepi, CHK=CHK)


def gen_attn(c):
    T = V_TMP
    c("s_lshl_b32 s%d, s%d, 10" % (S_T + 2, S_SL))
    build_srd(c, S_W0, 22, 23, add_sgpr=S_T + 2, add_const=-1024, size=576 * 8192 + 1024, size_sub=S_T + 2)
    c("s_lshl_b32 s%d, s%d, 20\ns_add_u32 s%d, s%d, %d" % (S_T + 2, S_SL, S_T + 2, S_T + 2, 1536 * 256))
    build_srd(c, S_W1, 18, 19, add_sgpr=S_T + 2, size=8388608, size_sub=S_T + 2)
    build_srd(c, S_W3, 20, 21, add_sgpr=S_T + 2, add_const=-1024, size=8388608 + 1024, size_sub=S_T + 2)
    c("s_mul_i32 s%d, s%d, %d" % (S_T + 2, S_SL, 512 * 1152))
    build_srd(c, S_W2, 24, 25, add_sgpr=S_T + 2, size=512 * 1152)
    unit_voff(c, V_D1, 8192, False)
    c("v_add_u32 v%d, 1024, v%d\nv_add_u32 v%d, 256, v%d" % (V_D0, V_D1, V_D1, V_D1))
    bb, items, mk = build(False)
    setup = Code()
    s = setup
    unit_voff(s, V_VD1, 256, True)
    s("v_add_u32 v%d, 1024, v%d\nv_add_u32 v%d, 128, v%d" % (V_VD0, V_VD1, V_VD1, V_VD1))
    unit_voff(s, 248, 1152, True)
    reader_addr(s, V_RD)
    s("s_lshl_b32 s%d, s%d, 10" % (S_T, S_HH))
    s("v_add_u32 v%d, s%d, v%d" % (V_RD, S_T, V_RD))
    for t in range(1, 4): s("v_xor_b32 v%d, %d, v%d" % (V_RD + t, 32 * t, V_RD))
    for t in range(4): s("v_add_u32 v%d, 0x10000, v%d" % (V_RD + 4 + t, V_RD + t))
    s("v_lshrrev_b32 v%d, 4, v%d\ns_lshl_b32 s%d, s%d, 3\nv_add_u32 v%d, s%d, v%d" % (T, V_LANE, S_T, S_W, T, S_T, T))
    s("v_xor_b32 v%d, v%d, v%d\nv_and_b32 v%d, 15, v%d" % (T + 1, T, V_LANE, T + 1, T + 1))
    s("v_lshlrev_b32 v%d, 8, v%d\nv_lshl_or_b32 v%d, v%d, 4, v%d" % (T, T, V_KD0, T + 1, T))
    s("v_xor_b32 v%d, 64, v%d" % (V_KD1, V_KD0))
    s("v_and_b32 v%d, 15, v%d\nv_lshrrev_b32 v%d, 4, v%d" % (T, V_LANE, T + 1, V_LANE))
    s("v_xor_b32 v%d, v%d, v%d\nv_lshlrev_b32 v%d, 4, v%d\nv_lshl_or_b32 v%d, v%d, 8, v%d" % (T + 2, T, T + 1, T + 2, T + 2, V_KR, T, T + 2))
    for ds in range(1, 4): s("v_xor_b32 v%d, %d, v%d" % (V_KR + ds, 64 * ds, V_KR))
    s("v_lshrrev_b32 v%d, 1, v%d\nv_lshl_add_u32 v%d, v%d, 4, v%d\nv_lshlrev_b32 v%d, 4, v%d" % (T + 2, T + 1, T + 2, T + 2, T, T + 2, T + 2))
    s("v_and_b32 v%d, 1, v%d\nv_lshl_or_b32 v%d, v%d, 3, v%d" % (T + 1, T + 1, T + 2, T + 1, T + 2))
    s("s_lshl_b32 s%d, s%d, 14\ns_add_u32 s%d, s%d, %d\nv_add_u32 v%d, s%d, v%d" % (S_T, S_W, S_T, S_T, QB, V_QW, S_T, T + 2))
    c.add(G.stamp_ins())
    layernorm(c, {('G', 0), ('G', 1)}, setup.p, mk['pre'])
    c.add(G.stamp_ins())
    it0, EQ, EA = mk['it0'], mk['EQ'], mk['EA']
    for g in (EQ - 1, it0[14], EA - 1, mk['LOOP0'] - 2):
        for x in G.stamp_ins(): items.append(Item(x, g, g, fixed=True))
    L4 = it0[6] - it0[2]
    MERGE = mk['CHK'] + 8
    plan = [('s', 0, EQ), ('s', EQ, it0[2]), ('l', it0[2], L4, 3, "L_att", 8), ('s', it0[14], it0[18]), ('l', it0[18], L4, 3, "L_att2", 8),
            ('s', it0[30], MERGE), ('s', MERGE, mk['LOOP0']), ('l', mk['LOOP0'], 256, 3, "L_att_d", 16)]
    regs = emit_regions(c, bb, items, plan, 'attn')
    head = list(c.p)
    fast_mid = regs[1] + regs[2] + regs[3] + regs[4] + regs[5]
    common_tail = [Ins("L_merge:")] + regs[6] + regs[7] + mk['tail']
    c.add(regs[0])
    c.slow = None
    if OPT.get('dbg') == 'q':
        c("v_mbcnt_lo_u32_b32 v1, -1, 0\nv_mbcnt_hi_u32_b32 v1, -1, v1")
        G.dump_regs(c, [A(4 * i, 4) for i in range(16)] + [A(A_KF + 4 * i, 4) for i in range(8)] + [V(Y + 4 * i, 4) for i in range(16)] + [V(20, 4)], tmp=5)
        c("L_merge:"); c.traces = [c.p]
        return
    if OPT.get('dbg') == 'it':
        c.add(regs[1])
        c("v_mbcnt_lo_u32_b32 v1, -1, 0\nv_mbcnt_hi_u32_b32 v1, -1, v1")
        G.dump_regs(c, [V(S0 + 4 * i, 4) for i in range(16)] + [V(P0 + 4 * i, 4) for i in range(8)] + [V(O + 4 * i, 4) for i in range(32)] + [A(A_L + 4 * i, 4) for i in range(5)], tmp=5)
        c("L_merge:"); c.traces = [c.p]
        return
    if str(OPT.get('dbg', '')).startswith('r'):
        for r in regs[1:int(OPT['dbg'][1:]) + 1]: c.add(r)
        c("v_mbcnt_lo_u32_b32 v1, -1, 0\nv_mbcnt_hi_u32_b32 v1, -1, v1")
        c("v_mov_b32 v2, s%d" % S_BAD)
        G.dump_regs(c, [A(4 * i, 4) for i in range(64)] + [V(O + 4 * i, 4) for i in range(32)] + [V(64 + 4 * i, 4) for i in range(16)] + [V(4 * i, 4) for i in range(8)], tmp=5)
        c("L_merge:"); c.traces = [c.p]
        return
    c("s_cmp_lg_u32 s%d, 0\ns_cbranch_scc1 L_slow" % S_MODE)
    c.add(fast_mid)
    c.add(common_tail)
    c.traces = [c.p]
    c.slow = None
```

```python
import sys
import gen
for a in sys.argv[2:]:
    k, v = a.split("=")
    gen.OPT[k] = {'True': True, 'False': False}.get(v, v)
t = gen.build_all()
open(sys.argv[1], "w").write(t)
print("bytes", len(t))
```

```python
import sys, math
from asmlib import *

KNAME = "recurrent_scan__sliding_block_cached__swiglu_ffn__prompt"
LOG2E = 1.4426950408889634


def f2h(x):
    import struct
    return "0x%08x" % struct.unpack("<I", struct.pack("<f", x))[0]


def V(n, cnt=1):
    return "v%d" % n if cnt == 1 else "v[%d:%d]" % (n, n + cnt - 1)


def A(n, cnt=1):
    return "a%d" % n if cnt == 1 else "a[%d:%d]" % (n, n + cnt - 1)


def mfma(d, a, b, c):
    return Ins("v_mfma_f32_16x16x32_bf16 %s, %s, %s, %s" % (d, a, b, c))


OPT = dict(st="sc1", stamps=False, map=1, lead=6)

S_X, S_W0, S_W1, S_W2, S_W3, S_P = 40, 44, 48, 52, 56, 60
S_W, S_M0B, S_OA, S_OB, S_CNT, S_ST = 64, 65, 66, 67, 68, 69
S_SL, S_J, S_RT, S_TY, S_TG, S_HH = 70, 71, 72, 73, 74, 75
S_LO, S_HI = 76, 77
S_T = 78
S_MODE, S_BAD = 88, 89
S_MK = 90


def srd(n):
    return "s[%d:%d]" % (n, n + 3)


V_LANE, V_T0 = 1, 2
V_TID = 0
V_D0, V_D1 = 4, 5
V_RD = 6
V_TMP = 24
V_FR = 32
V_TAIL = 56
V_RAW = 88
PART_BYTES = 147456


def Breg(ks, tt):
    if ks < 16:
        return A((ks * 4 + tt) * 4, 4)
    return V(V_TAIL + ((ks - 16) * 4 + tt) * 4, 4)


class Code:
    def __init__(self):
        self.p = []

    def __call__(self, text, **meta):
        for l in text.split("\n"):
            l = l.strip()
            if l:
                self.p.append(Ins(l, **meta))

    def add(self, x):
        if isinstance(x, list):
            self.p += x
        else:
            self.p.append(x)


def build_srd(c, n, lo, hi, add_sgpr=None, add_const=0, size=None, size_sub=None):
    if add_sgpr is not None:
        c("s_add_u32 s%d, s%d, s%d\ns_addc_u32 s%d, s%d, 0" % (n, lo, add_sgpr, n + 1, hi))
    else:
        c("s_mov_b32 s%d, s%d\ns_mov_b32 s%d, s%d" % (n, lo, n + 1, hi))
    if add_const > 0:
        c("s_add_u32 s%d, s%d, %d\ns_addc_u32 s%d, s%d, 0" % (n, n, add_const, n + 1, n + 1))
    elif add_const < 0:
        c("s_sub_u32 s%d, s%d, %d\ns_subb_u32 s%d, s%d, 0" % (n, n, -add_const, n + 1, n + 1))
    if size_sub is not None:
        c("s_sub_u32 s%d, %d, s%d" % (n + 2, size, size_sub))
    else:
        c("s_mov_b32 s%d, %d" % (n + 2, size))
    c("s_mov_b32 s%d, 0x20000" % (n + 3))


def unit_voff(c, dst, rs, corder, t0=V_TMP):
    rho, pos, h, row = t0, t0 + 1, t0 + 2, t0 + 3
    c("v_lshrrev_b32 v%d, 3, v%d" % (rho, V_LANE))
    c("v_and_b32 v%d, 7, v%d" % (pos, V_LANE))
    c("v_bfe_u32 v%d, v%d, 1, 1" % (h, rho))
    c("s_and_b32 s%d, s%d, 1\ns_lshl_b32 s%d, s%d, 1" % (S_T, S_W, S_T, S_T))
    c("v_or_b32 v%d, s%d, v%d" % (h, S_T, h))
    c("v_lshlrev_b32 v%d, 1, v%d" % (h, h))
    c("v_xor_b32 v%d, v%d, v%d" % (pos, pos, h))
    if not corder:
        c("s_lshl_b32 s%d, s%d, 3" % (S_T, S_W))
        c("v_add_u32 v%d, s%d, v%d" % (row, S_T, rho))
    else:
        c("s_lshl_b32 s%d, s%d, 2" % (S_T, S_W))
        c("v_and_b32 v%d, 3, v%d" % (row, rho))
        c("v_add_u32 v%d, s%d, v%d" % (row, S_T, row))
        c("v_lshrrev_b32 v%d, 2, v%d" % (rho, rho))
        c("v_lshl_add_u32 v%d, v%d, 4, v%d" % (row, rho, row))
    c("v_mul_u32_u24 v%d, %d, v%d" % (row, rs, row))
    c("v_lshl_add_u32 v%d, v%d, 4, v%d" % (dst, pos, row))


def reader_addr(c, dst, t0=V_TMP):
    g, r4, h = t0, t0 + 1, t0 + 2
    c("v_lshrrev_b32 v%d, 4, v%d" % (g, V_LANE))
    c("v_bfe_u32 v%d, v%d, 2, 2" % (r4, V_LANE))
    c("v_lshrrev_b32 v%d, 1, v%d" % (h, r4))
    c("v_and_b32 v%d, 1, v%d" % (dst, g))
    c("v_lshl_or_b32 v%d, v%d, 1, v%d" % (h, dst, h))
    c("v_lshlrev_b32 v%d, 11, v%d" % (dst, g))
    c("v_lshl_or_b32 v%d, v%d, 7, v%d" % (dst, r4, dst))
    c("v_lshl_or_b32 v%d, v%d, 5, v%d" % (dst, h, dst))
    c("v_and_b32 v%d, 3, v%d" % (g, V_LANE))
    c("v_lshl_or_b32 v%d, v%d, 3, v%d" % (dst, g, dst))


V_XO = 52


def xloads(rb):
    return [Ins("buffer_load_dwordx4 %s, v%d, %s, s%d offen offset:%d" % (V(V_RAW + (rb * 9 + kb) * 4, 4), V_XO, srd(S_X), S_MK + rb, kb * 128)) for kb in range(9)]


def weave(c, start, extra):
    body = c.p[start:]
    del c.p[start:]
    n = len(extra)
    k = 0
    for i, x in enumerate(body):
        while k < n and k * len(body) <= i * n:
            c.p += extra[k]; k += 1
        c.p.append(x)
    for e in extra[k:]: c.p += e


def prologue_common(c):
    c("s_cmp_ge_u32 s2, 256\ns_cbranch_scc1 L_exit")
    c("s_mov_b32 s%d, 0" % S_MODE)
    c("L_restart:")
    c("s_load_dwordx16 s[16:31], s[0:1], 0\ns_load_dwordx8 s[32:39], s[0:1], 64")
    if OPT['stamps']:
        c("s_memrealtime s[100:101]")
    c("v_and_b32 v%d, 63, v%d\nv_lshrrev_b32 v2, 6, v%d" % (V_LANE, V_TID, V_TID))
    c("v_readfirstlane_b32 s%d, v2" % S_W)
    m = int(OPT['map'])
    c("s_and_b32 s%d, s2, 7\ns_lshr_b32 s%d, s2, 3" % (S_T, S_J))
    c("s_lshr_b32 s%d, s%d, 4\ns_and_b32 s%d, s%d, 15" % (S_TY, S_J, S_J, S_J))
    if m == 0:
        c("s_mov_b32 s%d, s%d\ns_mov_b32 s%d, s%d" % (S_SL, S_T, S_RT, S_J))
    else:
        c("s_andn2_b32 s%d, s%d, %d\ns_and_b32 s%d, s%d, %d\ns_or_b32 s%d, s%d, s%d" % (S_SL, S_T, (1 << m) - 1, S_T + 1, S_J, (1 << m) - 1, S_SL, S_SL, S_T + 1))
        c("s_and_b32 s%d, s%d, %d\ns_lshl_b32 s%d, s%d, %d\ns_lshr_b32 s%d, s%d, %d\ns_or_b32 s%d, s%d, s%d" %
          (S_T, S_T, (1 << m) - 1, S_T, S_T, 4 - m, S_RT, S_J, m, S_RT, S_RT, S_T))
    c("s_and_b32 s%d, s%d, 1\ns_lshr_b32 s%d, s%d, 1\ns_lshl_b32 s%d, s%d, 11" % (S_TG, S_W, S_HH, S_W, S_M0B, S_W))
    c("s_lshl_b32 s%d, s%d, 2\ns_lshl_b32 s%d, s%d, 1\ns_add_u32 s%d, s%d, s%d\ns_add_u32 s%d, s%d, s%d" %
      (S_T, S_RT, S_T + 1, S_TG, S_T, S_T, S_T + 1, S_T, S_T, S_HH))
    c("s_mul_i32 s%d, s%d, %d" % (S_MK, S_T, 32 * 1152))
    for rb in range(1, 4):
        c("s_add_u32 s%d, s%d, %d" % (S_MK + rb, S_MK, rb * 8 * 1152))
    c("v_lshrrev_b32 v2, 3, v%d\nv_mul_u32_u24 v2, 1152, v2\nv_and_b32 v3, 7, v%d\nv_lshl_add_u32 v%d, v3, 4, v2" % (V_LANE, V_LANE, V_XO))
    c("s_waitcnt lgkmcnt(0)")
    build_srd(c, S_X, 16, 17, size=2048 * 1152)
    for rb in range(2):
        c.add(xloads(rb))
    c("s_lshl_b32 s%d, s%d, 3\ns_add_u32 s%d, s%d, s%d\ns_lshl_b32 s%d, s%d, 4\ns_add_u32 s%d, s%d, s%d" %
      (S_T, S_TY, S_T, S_T, S_SL, S_T, S_T, S_T, S_T, S_RT))
    c("s_mul_i32 s%d, s%d, %d" % (S_T, S_T, PART_BYTES))
    build_srd(c, S_P, 38, 39, add_sgpr=S_T, size=PART_BYTES)


V_KK = 20
XBUF = 90112
KTAB = 89088
NPRE = 10


def layernorm(c, first_tags, setup, pre):
    T = V_TMP
    XW, XR, KW, KR, ONE, SM, NMU = V_FR, V_FR + 1, V_FR + 5, V_FR + 6, V_FR + 8, V_FR + 9, V_FR + 13
    c.add(setup)
    c("v_mov_b32 v%d, 0x3f803f80" % ONE)
    c("s_mov_b32 s%d, 0x3f80\ns_mov_b32 s%d, 0x3f800000" % (S_LO, S_HI))
    c("s_mul_i32 s%d, s%d, 18432\ns_add_u32 s%d, s%d, %d" % (S_T, S_W, S_T, S_T, XBUF))
    c("v_and_b32 v%d, 7, v%d\nv_lshrrev_b32 v%d, 3, v%d" % (T, V_LANE, T + 1, V_LANE))
    c("v_xor_b32 v%d, v%d, v%d\nv_lshlrev_b32 v%d, 4, v%d" % (XW, T, T + 1, XW, XW))
    c("v_and_b32 v%d, 3, v%d\nv_lshl_or_b32 v%d, v%d, 8, v%d" % (T + 2, T, XW, T + 2, XW))
    c("v_lshrrev_b32 v%d, 2, v%d\nv_lshl_or_b32 v%d, v%d, 10, v%d" % (T + 2, T, XW, T + 2, XW))
    c("v_add_u32 v%d, s%d, v%d" % (XW, S_T, XW))
    c("s_lshl_b32 s%d, s%d, 8\ns_lshl_b32 s%d, s%d, 7\ns_add_u32 s%d, s%d, %d" % (S_T + 1, S_TG, S_T + 2, S_HH, S_T + 1, S_T + 1, KTAB))
    c("s_add_u32 s%d, s%d, s%d" % (S_T + 3, S_T + 1, S_T + 2))
    c("v_lshlrev_b32 v%d, 2, v%d\nv_add_u32 v%d, s%d, v%d" % (KW, T + 1, KW, S_T + 3, KW))
    c("v_and_b32 v%d, 15, v%d\nv_lshlrev_b32 v%d, 2, v%d" % (T, V_LANE, KR, T))
    c("s_xor_b32 s%d, s%d, 128\ns_add_u32 s%d, s%d, s%d" % (S_T + 2, S_T + 2, S_T + 2, S_T + 2, S_T + 1))
    c("v_add_u32 v%d, s%d, v%d\nv_add_u32 v%d, s%d, v%d" % (KR + 1, S_T + 2, KR, KR, S_T + 3, KR))
    c("v_lshrrev_b32 v%d, 4, v%d\nv_xor_b32 v%d, v%d, v%d" % (T + 1, V_LANE, XR, T, T + 1))
    c("v_lshl_or_b32 v%d, v%d, 4, v%d\nv_lshlrev_b32 v%d, 4, v%d" % (XR, T + 1, XR, XR, XR))
    c("v_xor_b32 v%d, 64, v%d" % (XR + 1, XR))
    c("s_xor_b32 s%d, s%d, 2\ns_mul_i32 s%d, s%d, 18432\ns_add_u32 s%d, s%d, %d" % (S_T + 1, S_W, S_T + 1, S_T + 1, S_T + 1, S_T + 1, XBUF))
    c("v_add_u32 v%d, s%d, v%d\nv_add_u32 v%d, s%d, v%d" % (XR + 2, S_T + 1, XR, XR + 3, S_T + 1, XR + 1))
    c("v_add_u32 v%d, s%d, v%d\nv_add_u32 v%d, s%d, v%d" % (XR, S_T, XR, XR + 1, S_T, XR + 1))

    def stats(rb):
        for i in range(4): c("v_mov_b32 v%d, 0" % (SM + i))
        for kb in range(9):
            r = V_RAW + (rb * 9 + kb) * 4
            for q in range(4):
                c("v_dot2c_f32_bf16 v%d, v%d, v%d" % (SM + (q & 1), r + q, ONE))
                c("v_dot2c_f32_bf16 v%d, v%d, v%d" % (SM + 2 + (q & 1), r + q, r + q))
        c("v_add_f32 v%d, v%d, v%d\nv_add_f32 v%d, v%d, v%d" % (SM, SM, SM + 1, SM + 2, SM + 2, SM + 3))
        for d in ("quad_perm:[1,0,3,2]", "quad_perm:[2,3,0,1]", "row_half_mirror"):
            for a in (SM, SM + 2):
                c("v_add_f32_dpp v%d, v%d, v%d %s row_mask:0xf bank_mask:0xf" % (a, a, a, d))
        c("v_mul_f32 v%d, %s, v%d" % (NMU, f2h(-1.0 / 576), SM))
        c("v_mul_f32 v%d, %s, v%d" % (SM + 2, f2h(1.0 / 576), SM + 2))
        c("v_fma_f32 v%d, -v%d, v%d, v%d" % (SM + 2, NMU, NMU, SM + 2))
        c("v_max_f32 v%d, 0, v%d" % (SM + 2, SM + 2))
        c("v_add_f32 v%d, %s, v%d" % (SM + 2, f2h(1e-5), SM + 2))
        c("ds_write_b32 v%d, v%d offset:%d" % (KW, SM + 2, rb * 32), wloc=('KK', 0), cid=('KK', 0), nparts=4)

    def wr(rb, kb):
        r = V_RAW + (rb * 9 + kb) * 4
        c("ds_write_b128 v%d, %s offset:%d" % (XW, V(r, 4), kb * 2048 + (rb & 1) * 128), wloc=('X', 0), cid=('X', rb >> 1), nparts=18)

    def centre(rb, write):
        for kb in range(9):
            r = V_RAW + (rb * 9 + kb) * 4
            for q in range(4):
                t = T + 2 * q
                c("v_dot2_f32_bf16 v%d, v%d, s%d, v%d" % (t, r + q, S_LO, NMU))
                c("v_dot2_f32_bf16 v%d, v%d, s%d, v%d" % (t + 1, r + q, S_HI, NMU))
            if write and kb: wr(rb, kb - 1)
            for q in range(4):
                t = T + 2 * q
                c("v_cvt_pk_bf16_f32 v%d, v%d, v%d" % (r + q, t, t + 1))
        if write: wr(rb, 8)

    def reads(tile):
        for ks in range(18):
            for o in range(2):
                c("ds_read_b128 %s, v%d offset:%d" % (Breg(ks, 2 * o + tile), XR + 2 * o + (ks & 1), ks * 1024), rloc=('X', 0), cid=('X', tile), tag='xr')

    grp = []
    for x in pre:
        if grp and grp[-1][-1].kind != 'dma': grp[-1].append(x)
        else: grp.append([x])
    ng = len(grp)
    st = len(c.p); stats(0); weave(c, st, [[x] for x in xloads(2)])
    st = len(c.p); centre(0, True); weave(c, st, [[x] for x in xloads(3)])
    st = len(c.p); stats(1); centre(1, True); weave(c, st, grp[:ng // 2])
    c("s_barrier", ds_all=True)
    reads(0)
    st = len(c.p); stats(2); centre(2, False); weave(c, st, grp[ng // 2:])
    c("s_barrier", ds_all=True)
    for kb in range(9): wr(2, kb)
    stats(3); centre(3, True)
    c.add(stamp_ins())
    c("s_barrier", ds_all=True, vm_tags=first_tags)
    for tt in range(4):
        c("ds_read_b32 v%d, v%d offset:%d" % (V_KK + tt, KR + (tt >> 1), (tt & 1) * 64), rloc=('KK', 0), cid=('KK', 0), tag='xr')
    reads(1)


class Ring:
    def __init__(self, bars):
        self.bars = bars
        self.free = {}
        self.until = {}
        self.jobs = []
        self.need = {}
        self.loc = {}

    def bar_after(self, pos):
        for i, p in enumerate(self.bars):
            if p > pos: return i
        return len(self.bars)

    def bar_before(self, pos):
        r = -1
        for i, p in enumerate(self.bars):
            if p <= pos: r = i
        return r

    def add(self, q, need, done, make, loc=None):
        self.jobs.append(dict(q=q, need=need, done=done, make=make, loc=loc))
        self.need.setdefault(need, set()).add(('G', q))

    def pick(self, job, w):
        if job['loc'] is not None:
            return job['loc'] if self.free.get(job['loc'], -1) <= w else None
        rel = self.bar_after(job['done'])
        c = [l for l in self.pool if self.free.get(l, -1) <= w and rel <= self.until.get(l, 1 << 30)]
        if not c: return None
        return min(c, key=lambda l: (self.until.get(l, 1 << 30), self.free.get(l, -1), l))

    def plan(self, items, npre, nmax, lead, last_pos, frac=1.0):
        pre = []
        k = 0
        for job in self.jobs[:npre]:
            l = self.pick(job, -1)
            assert l is not None
            self.loc[job['q']] = l; self.free[l] = self.bar_after(job['done'])
            pre += job['make'](l)
            k += 1
        for w in range(len(self.bars)):
            p0 = self.bars[w]
            p1 = self.bars[w + 1] if w + 1 < len(self.bars) else last_pos
            sel = []
            while k < len(self.jobs) and len(sel) < nmax(w):
                job = self.jobs[k]
                if job['need'] - w > lead(w): break
                l = self.pick(job, w)
                if l is None: break
                assert job['need'] > w, ("job late", job['q'], w)
                self.loc[job['q']] = l; self.free[l] = self.bar_after(job['done'])
                sel.append((job, l)); k += 1
            if not sel: continue
            wd = (p1 - p0 - 1) * frac / len(sel)
            for i, (job, l) in enumerate(sel):
                ins = job['make'](l)
                t0 = p0 + 1 + int(i * wd)
                n = len(ins)
                for jx, x in enumerate(ins):
                    tg = t0 + (int(wd / 2) + 1 if jx == n - 1 else max(0, jx - (n - 4)) if jx < n - 2 else 1)
                    items.append(Item(x, p0, p1 - 1, tgt=tg, stream='dma'))
            if k < len(self.jobs): assert self.jobs[k]['need'] > w + 1 or True
        self.left = len(self.jobs) - k
        return pre


def dma_job(q, loc, srdn, soff_ins, vd0=V_D0, vd1=V_D1, cstep=0, soff=S_OA):
    meta = dict(wloc=('R', loc), cid=('G', q), nparts=2)
    if cstep: meta['cstep'] = cstep
    out = []
    if soff_ins: out.append(Ins(soff_ins))
    out.append(Ins("s_add_u32 m0, s%d, %d" % (S_M0B, loc), hoist=True))
    out.append(Ins("buffer_load_dwordx4 v%d, %s, s%d offen lds" % (vd0, srd(srdn), soff), **meta))
    out.append(Ins("buffer_load_dwordx4 v%d, %s, s%d offen offset:1024 lds" % (vd1, srd(srdn), soff), **meta))
    return out


def frag_items(items, f, first_use, slot_free, bar_pos, dst, areg, imm, loc, q, cstep=0, junk=False, lead=17, stream='fr'):
    meta = dict(rloc=('R', loc), cid=('G', q))
    if cstep: meta['cstep'] = cstep
    if junk: meta['junk_ok'] = True
    lo = max(slot_free, bar_pos)
    k = dst[0]
    n = dst[1]
    for h in range(2):
        reg = (V if k == 'v' else A)(n + 2 * h, 2)
        items.append(Item(Ins("ds_read_b64_tr_b16 %s, v%d offset:%d" % (reg, areg, imm + 512 * h), **meta),
                          lo, max(lo, first_use - 6), tgt=first_use - lead + 2 * h, stream=stream))


def part_store(acc, pk, va, vb, soff):
    out = []
    for tt in range(4):
        p = pk + 4 * tt
        for tile in range(2):
            a = acc + (tile * 4 + tt) * 4
            out.append(Ins("v_cvt_pk_bf16_f32 v%d, v%d, v%d" % (p + 2 * tile, a, a + 1)))
            out.append(Ins("v_cvt_pk_bf16_f32 v%d, v%d, v%d" % (p + 2 * tile + 1, a + 2, a + 3)))
        out.append(Ins("buffer_store_dwordx4 %s, v%d, %s, s%d offen offset:%d %s" %
                       (V(p, 4), va if tt < 2 else vb, srd(S_P), soff, (tt & 1) * 1024, OPT['st']), tag='st'))
    out.append(Ins("s_add_u32 s%d, s%d, 16384" % (soff, soff)))
    return out


def split_regions(items, bounds):
    regs = [[] for _ in range(len(bounds) - 1)]
    for it in items:
        g = min(max(it.tgt, it.lo), it.hi)
        g = max(g, bounds[0])
        for i in range(len(bounds) - 1):
            if bounds[i] <= g < bounds[i + 1] or (i == len(bounds) - 2 and g >= bounds[i + 1]):
                regs[i].append(it)
                break
    return regs


def clip_items(items, g0, g1):
    out = []
    for it in items:
        lo = max(it.lo, g0); hi = min(it.hi, g1 - 1)
        n = Item(it.ins, lo, max(lo, hi), tgt=it.tgt, stream=it.stream, fixed=it.fixed)
        out.append(n)
    return out


def set_cstep(items, st):
    for it in items:
        if it.ins.meta.get('cid') is not None or it.ins.meta.get('vm_tags') is not None:
            it.ins.meta['cstep'] = st


def same_period(a, b, shift):
    ka = [(i.ins.text, i.tgt, i.stream) for i in a]
    kb = [(i.ins.text, i.tgt - shift, i.stream) for i in b]
    if sorted(ka) != sorted(kb):
        sa, sb = set(ka), set(kb)
        print("only in first:", sorted(sa - sb)[:12]); print("only in other:", sorted(sb - sa)[:12])
        return False
    return True


def emit_regions(c, bb, items, plan, name):
    bounds = []
    for r in plan:
        if r[0] == 's': bounds.append(r[1])
        else: bounds += [r[1] + r[2] * k for k in range(r[3])]
    last = plan[-1]
    bounds.append(last[2] if last[0] == 's' else last[1] + last[2] * last[3])
    items = [it for it in items if min(max(it.tgt, it.lo), it.hi) < bounds[-1]]
    regs = split_regions(items, bounds)
    k = 0
    out = []
    first = True
    for r in plan:
        if r[0] == 's':
            its = regs[k]
            if first: its = [Item(it.ins, it.lo, min(it.hi, r[2] - 1), it.tgt, it.stream, it.fixed) for it in its]
            else: its = clip_items(its, r[1], r[2])
            out.append(schedule(bb, its, r[1], r[2], verbose=True, name=name + ' straight'))
            k += 1
        else:
            _, g0, ln, cnt, label, cstep = r
            for x in range(1, cnt):
                assert same_period(regs[k], regs[k + x], ln * x), "%s loop %s not periodic (%d)" % (name, label, x)
            set_cstep(regs[k], cstep)
            body = schedule(bb, clip_items(regs[k], g0, g0 + ln), g0, g0 + ln, verbose=True, name=name + ' loop')
            body += [Ins("s_sub_u32 s%d, s%d, 1" % (S_CNT, S_CNT)), Ins("s_cbranch_scc0 " + label)]
            out.append([Ins("s_mov_b32 s%d, %d" % (S_CNT, cnt - 1)), Ins(".p2align 3"), Loop(label, cnt, body)])
            k += cnt
        first = False
    return out


def spread(items, seq, lo, end, stream='valu', los=None, his=None):
    tot = sum(x.cost for x in seq)
    a = 0
    for i, x in enumerate(seq):
        l = lo if los is None else max(lo, los[i])
        h = end if his is None else min(end, his[i])
        tg = lo + int(a * (end - lo) / tot)
        a += x.cost
        items.append(Item(x, l, max(l, h), tgt=min(max(tg, l), max(l, h)), stream=stream))


def gen_ffn(c):
    V_HA, V_HB, V_RA, V_RB = 12, 13, 14, 15
    V_C1 = 16
    GA, GB, U, HREG = 88, 120, 152, 184
    V_SA, V_SB = 248, 249
    V_DD0, V_DD1 = 250, 251
    V_H4 = 252
    HB = 98304
    T = V_TMP
    NU_U = 324
    NU = NU_U + 9 * 18
    NUV = NU + 40
    NM = NU * 8
    LOOP0 = (NU_U + 3 * 18) * 8
    LOOPL = 36 * 8
    eU8 = NU_U * 8 - 1
    BX2 = eU8 + 62
    bars = sorted([32 * s + 13 for s in range(NUV // 4)] + [BX2])
    R = Ring(bars)
    R.pool = [i * 8192 for i in range(20)]
    for i in range(10, 20): R.free[i * 8192] = 0
    bx1 = R.bar_after(eU8 - 41)
    bx2 = bars.index(BX2)
    bx3 = R.bar_after(BX2 + 39)

    def hslot(gam):
        sl = gam if gam < 5 else gam - 5
        return (3 - sl) * 16384

    for gam in range(5):
        for h in range(2):
            R.until[HB + hslot(gam) + 8192 * h] = R.bar_before((2 * gam + 2) * 144 + 3)

    def mk_u(q):
        hg, kp = divmod(q, 9)
        gam, isu = divmod(hg, 2)
        return lambda loc: dma_job(q, loc, S_W1 if isu else S_W0, "s_mov_b32 s%d, %d" % (S_OA, kp * 64 * 9216 + gam * 128))

    def mk_d(q):
        dq = q - 162
        if dq == 0: so = "s_mov_b32 s%d, 0" % S_OA
        elif dq % 9 == 0: so = "s_sub_u32 s%d, s%d, %d" % (S_OA, S_OA, 8 * 73728 - 128)
        else: so = "s_add_u32 s%d, s%d, 73728" % (S_OA, S_OA)
        return lambda loc: dma_job(q, loc, S_W2, so, V_DD0, V_DD1)

    for q in range(NUV // 2 - 4):
        need = bars.index(32 * (q // 2 - 1) + 13) if q >= 2 else -1
        R.add(q, need, 16 * q + 15, mk_u(q) if q < 162 else mk_d(q))
    items = []
    orig_pick = R.pick

    def pick(job, w):
        if w >= bx1:
            for h in range(2):
                l = HB + hslot(4) + 8192 * h
                if R.until.pop(l, None) is not None: R.free[l] = bx1
        if w >= bx3:
            for gam in range(1, 4):
                for h in range(2):
                    l = HB + hslot(gam) + 8192 * h
                    if R.until.pop(l, None) is not None: R.free[l] = bx3
        return orig_pick(job, w)
    R.pick = pick
    pre = R.plan(items, NPRE, lambda w: 2 if bars[w] >= LOOP0 - 32 else 3, lambda w: int(OPT['lead']), NUV * 8)

    c("s_mul_i32 s%d, s%d, 1152" % (S_T + 2, S_SL))
    build_srd(c, S_W0, 28, 29, add_sgpr=S_T + 2, size=576 * 9216, size_sub=S_T + 2)
    build_srd(c, S_W1, 30, 31, add_sgpr=S_T + 2, size=576 * 9216, size_sub=S_T + 2)
    c("s_mul_i32 s%d, s%d, %d" % (S_T + 2, S_SL, 576 * 1152))
    build_srd(c, S_W2, 32, 33, add_sgpr=S_T + 2, size=576 * 1152)
    unit_voff(c, V_D0, 9216, False)
    c("v_add_u32 v%d, %d, v%d" % (V_D1, 32 * 9216 - 1024, V_D0))
    main = c
    c = Code()
    unit_voff(c, V_DD0, 1152, True)
    c("v_add_u32 v%d, %d, v%d" % (V_DD1, 32 * 1152 - 1024, V_DD0))
    reader_addr(c, V_RD)
    c("s_lshl_b32 s%d, s%d, 6" % (S_T, S_HH))
    c("v_xor_b32 v%d, s%d, v%d" % (V_RD, S_T, V_RD))
    c("v_xor_b32 v%d, 32, v%d" % (V_RD + 1, V_RD))
    for s in (1, 2):
        for t in range(2):
            c("v_add_u32 v%d, 0x%x, v%d" % (V_RD + 2 * s + t, 65536 * s, V_RD + t))
    c("s_lshl_b32 s%d, s%d, 12\ns_lshl_b32 s%d, s%d, 11\ns_add_u32 s%d, s%d, s%d\ns_add_u32 s%d, s%d, %d" %
      (S_T, S_TG, S_T + 1, S_HH, S_T, S_T, S_T + 1, S_T, S_T, HB))
    c("v_lshlrev_b32 v%d, 4, v%d\nv_add_u32 v%d, s%d, v%d" % (V_RA, V_LANE, V_RA, S_T, V_RA))
    c("v_xor_b32 v%d, 0x800, v%d" % (V_RB, V_RA))
    c("s_lshl_b32 s%d, s%d, 13" % (S_T, S_HH))
    c("v_add_u32 v%d, s%d, v%d\nv_add_u32 v%d, s%d, v%d" % (V_HA, S_T, V_RA, V_HB, S_T, V_RB))
    for i in range(4):
        c("v_subrev_u32 v%d, 16384, v%d" % (V_H4 + i, V_HA + i))
    c("v_subrev_u32 v%d, %d, v%d\nv_subrev_u32 v%d, %d, v%d" % (V_SA, HB, V_HA, V_SB, HB, V_HB))
    c("s_mov_b32 s%d, 0" % S_ST)
    setup = c.p
    c = main
    c.add(stamp_ins())
    layernorm(c, {('G', 0), ('G', 1)}, setup, pre)
    c.add(stamp_ins())
    seq = [Ins("v_rsq_f32 v%d, v%d" % (V_C1 + tt, V_KK + tt)) for tt in range(4)]
    seq += [Ins("v_mul_f32 v%d, %s, v%d" % (V_C1 + tt, f2h(-LOG2E), V_C1 + tt)) for tt in range(4)]
    spread(items, seq, 40, 100)

    bb = []
    for u in range(NUV):
        if u < NU_U:
            hg, ks = divmod(u, 18)
            gam, isu = divmod(hg, 2)
            acc = U if isu else (GA if gam % 2 == 0 else GB)
        else:
            beta, ks = divmod(u - NU_U, 18)
            acc = GB if beta % 2 == 0 else GA
        for tile in range(2):
            fr = V(V_FR + 4 * ((2 * u + tile) % 6), 4)
            for tt in range(4):
                d = V(acc + (tile * 4 + tt) * 4, 4)
                bb.append(mfma(d, fr, Breg(ks, tt), d if ks else "0"))
    for i, p in enumerate(bars):
        tags = {'hw'}
        if i == 0: tags.add('xr')
        if i == bx1: tags.add('r1')
        if i == bx3: tags.add('r2')
        items.append(Item(Ins("s_barrier", vm_tags=R.need.get(i, set()), ds_tags=tags, cost=2), p, p, fixed=True))
    for f in range(2 * (NU + 4)):
        u, tile = divmod(f, 2)
        q = u >> 1
        loc = R.loc[q]
        fu = 4 * f
        bp = 32 * (u // 4 - 1) + 13 if u >= 4 else -1
        frag_items(items, f, fu, fu - 21, bp, ('v', V_FR + 4 * (f % 6)), V_RD + 2 * (loc >> 16) + tile, (loc & 65535) + (u & 1) * 1024,
                   loc, q, junk=(u >= NU))
        if f % 2 == 0 and fu <= NM:
            items.append(Item(Ins("WAIT %s, %s" % (V(V_FR + 4 * (f % 6), 4), V(V_FR + 4 * ((f + 1) % 6), 4)), last=True), fu - 1, fu - 1, fixed=True))

    def haddr(base, gam, tt, extra=0):
        o = hslot(gam)
        r = base + (tt >> 1)
        if o < 0:
            r += V_H4 - V_HA; o += 16384
        return r, o + (tt & 1) * 1024 + extra

    def hwrite(gam, tt, src):
        r, o = haddr(V_HA, gam, tt)
        return Ins("ds_write_b128 v%d, %s offset:%d" % (r, V(src, 4), o), tag='hw', wloc=('H', hslot(gam)), cid=('H', gam), nparts=4)

    for gam in range(9):
        G = GA if gam % 2 == 0 else GB
        eG = (2 * gam + 1) * 144 - 1
        eU = eG + 144
        seq = []
        for tt in range(4):
            for tile in range(2):
                g = G + (tile * 4 + tt) * 4
                t = T + 4 * tile
                for e in range(4): seq.append(Ins("v_mul_f32 v%d, v%d, v%d" % (t + e, V_C1 + tt, g + e)))
                for e in range(4): seq.append(Ins("v_exp_f32 v%d, v%d" % (t + e, t + e)))
                for e in range(4): seq.append(Ins("v_fma_f32 v%d, v%d, v%d, v%d" % (t + e, t + e, V_KK + tt, V_KK + tt)))
                for e in range(4): seq.append(Ins("v_rcp_f32 v%d, v%d" % (t + e, t + e)))
                for e in range(4): seq.append(Ins("v_mul_f32 v%d, v%d, v%d" % (g + e, t + e, g + e)))
        nA = len(seq)
        for tt in range(4):
            for tile in range(2):
                g = G + (tile * 4 + tt) * 4
                uu = U + (tile * 4 + tt) * 4
                for e in range(4): seq.append(Ins("v_mul_f32 v%d, v%d, v%d" % (uu + e, g + e, uu + e)))
            dst = G + tt * 4 if gam < 5 else HREG + ((gam - 5) * 4 + tt) * 4
            for tile in range(2):
                uu = U + (tile * 4 + tt) * 4
                seq.append(Ins("v_cvt_pk_bf16_f32 v%d, v%d, v%d" % (dst + 2 * tile, uu, uu + 1)))
                seq.append(Ins("v_cvt_pk_bf16_f32 v%d, v%d, v%d" % (dst + 2 * tile + 1, uu + 2, uu + 3)))
            if gam < 5 or gam == 8:
                seq.append(hwrite(gam, tt, dst))
        end = eU + 139 if gam < 8 else BX2 - 1
        spread(items, seq, eG + 4, end, los=[eG + 4] * nA + [eU + 4] * (len(seq) - nA))
    u8 = 17 * 18

    def hread(kap, tt, tag):
        gam, hp = divmod(kap, 2)
        r, o = haddr(V_RA, gam, tt, hp * 8192)
        return Ins("ds_read_b128 %s, v%d offset:%d" % (Breg(kap, tt), r, o), rloc=('H', hslot(gam)), cid=('H', gam), tag=tag)

    for kap in range(10):
        p = (u8 + kap) * 8 + 7
        for tt in range(4):
            items.append(Item(hread(kap, tt, 'r1'), p, bars[bx1] - 6, tgt=p + 2 * tt, stream='xch'))
    p = bars[bx1]
    for gam in range(5, 8):
        for tt in range(4):
            items.append(Item(hwrite(gam, tt, HREG + ((gam - 5) * 4 + tt) * 4), p, BX2 - 1, tgt=p + 2 + 4 * ((gam - 5) * 4 + tt), stream='xch'))
    for kap in range(10, 18):
        for tt in range(4):
            fu = NU_U * 8 + kap * 8
            items.append(Item(hread(kap, tt, 'r2'), BX2, min(fu - 4, bars[bx3] - 4), tgt=BX2 + (kap - 10) * 4 + tt, stream='xch'))
    for beta in range(9):
        acc = GB if beta % 2 == 0 else GA
        e = (NU_U + 18 * (beta + 1)) * 8 - 1
        seq = part_store(acc, U + 16 * (beta % 2), V_SA, V_SB, S_ST)
        if beta == 8:
            tail = seq
            break
        spread(items, seq, e + 4, e + 110)
    for g in (143, 143 + 288 * 4, eU8, LOOP0 - 2):
        for x in stamp_ins(): items.append(Item(x, g, g, fixed=True))
    for r in emit_regions(c, bb, items, [('s', 0, LOOP0), ('l', LOOP0, LOOPL, 3, "L_ffn_d", 18)], 'ffn'):
        c.add(r)
    c.add(tail)


STAMPS = [0]


def dump_regs(c, quads, tmp=2):
    c("s_waitcnt vmcnt(0) lgkmcnt(0)\ns_nop 7\ns_nop 7")
    c("s_lshl_b32 s3, s2, 2\ns_add_u32 s3, s3, s%d\ns_lshl_b32 s3, s3, 17\ns_add_u32 s3, s3, 0x3000000" % S_W)
    c("s_mov_b32 s40, s38\ns_mov_b32 s41, s39\ns_mov_b32 s42, 0x10000000\ns_mov_b32 s43, 0x20000")
    c("v_lshlrev_b32 v%d, 4, v%d" % (tmp, V_LANE))
    for q in quads:
        c("buffer_store_dwordx4 %s, v%d, s[40:43], s3 offen" % (q, tmp))
        c("s_add_u32 s3, s3, 1024\ns_waitcnt vmcnt(0)")
    c("s_endpgm")


def stamp_ins():
    if not OPT['stamps']: return []
    i = STAMPS[0]
    STAMPS[0] += 1
    assert i < 8
    return [Ins("s_memtime s[%d:%d]" % (4 + 4 * i, 5 + 4 * i), cost=0), Ins("s_memrealtime s[%d:%d]" % (6 + 4 * i, 7 + 4 * i), cost=0)]


def finish(c):
    if OPT['stamps']:
        c("s_waitcnt vmcnt(0)")
        c.add(stamp_ins())
        c("s_waitcnt lgkmcnt(0)")
        n = STAMPS[0]
        for i in range(n):
            c("v_mov_b32 v%d, s%d\nv_mov_b32 v%d, s%d" % (32 + 2 * i, 4 + 4 * i, 33 + 2 * i, 6 + 4 * i))
        c("s_lshl_b32 s3, s2, 7\ns_add_u32 s3, s3, 0x8001000\nv_mov_b32 v7, s3")
        c("s_mov_b32 s40, s38\ns_mov_b32 s41, s39\ns_mov_b32 s42, 0x10000000\ns_mov_b32 s43, 0x20000")
        for i in range(n):
            c("buffer_store_dwordx2 v[%d:%d], v7, s[40:43], 0 offen offset:%d" % (32 + 2 * i, 33 + 2 * i, 8 * i))
        STAMPS[0] = 0
        if OPT.get('hd'):
            c("s_and_b32 s3, s2, 127\ns_cmp_lg_u32 s3, 0\ns_cbranch_scc1 L_nohd%d" % len(c.p))
            lab = "L_nohd%d:" % (len(c.p) - 3)
            c("s_mov_b32 s40, s36\ns_mov_b32 s41, s37\ns_mov_b32 s42, 64\ns_lshr_b32 s3, s2, 2\nv_mov_b32 v7, s3")
            for i in range(n):
                c("s_sub_u32 s3, s%d, s100\nv_mov_b32 v8, s3" % (6 + 4 * i))
                c("buffer_store_dword v8, v7, s[40:43], 0 offen offset:%d" % (4 * i))
            c(lab)
    if OPT['stamps']:
        c("s_waitcnt vmcnt(0)")
        c("s_memrealtime s[98:99]\ns_waitcnt lgkmcnt(0)")
        c("v_mov_b32 v8, s100\nv_mov_b32 v9, s101\nv_mov_b32 v10, s98\nv_mov_b32 v11, s99")
        c("s_lshl_b32 s3, s2, 4\ns_add_u32 s3, s3, 0x8000000\nv_mov_b32 v7, s3")
        c("s_mov_b32 s12, s38\ns_mov_b32 s13, s39\ns_mov_b32 s14, 0x10000000\ns_mov_b32 s15, 0x20000")
        c("buffer_store_dwordx4 v[8:11], v7, s[12:15], 0 offen")
    c("s_endpgm")


def gen_reduce():
    c = Code()
    c("s_cmp_ge_u32 s2, 576\ns_cbranch_scc1 L_rexit")
    c("s_load_dwordx2 s[4:5], s[0:1], 0\ns_load_dwordx2 s[6:7], s[0:1], 72\ns_load_dwordx2 s[8:9], s[0:1], 88")
    c("s_mul_hi_u32 s10, s2, %d" % ((1 << 32) // 36 + 1))
    c("s_mul_i32 s11, s10, 36\ns_sub_u32 s11, s2, s11")
    c("s_lshr_b32 s12, s11, 2\ns_and_b32 s13, s11, 3")
    c("s_and_b32 s14, s13, 1\ns_lshr_b32 s15, s13, 1")
    c("s_mul_i32 s16, s10, %d\ns_lshl_b32 s17, s11, 12\ns_add_u32 s16, s16, s17" % PART_BYTES)
    c("v_lshlrev_b32 v1, 4, v0\nv_add_u32 v1, s16, v1")
    c("s_lshl_b32 s18, s10, 7\ns_lshl_b32 s19, s14, 6\ns_add_u32 s18, s18, s19")
    c("v_lshrrev_b32 v2, 6, v0\nv_lshlrev_b32 v2, 4, v2\nv_and_b32 v3, 15, v0\nv_add3_u32 v2, v2, v3, s18")
    c("v_mul_u32_u24 v2, 1152, v2")
    c("s_lshl_b32 s18, s12, 7\ns_lshl_b32 s19, s15, 6\ns_add_u32 s18, s18, s19")
    c("v_bfe_u32 v3, v0, 4, 2\nv_lshlrev_b32 v3, 3, v3\nv_add3_u32 v2, v2, v3, s18")
    c("s_waitcnt lgkmcnt(0)")
    c("s_mov_b32 s20, s8\ns_mov_b32 s21, s9\ns_mov_b32 s22, %d\ns_mov_b32 s23, 0x20000" % (256 * PART_BYTES))
    c("s_mov_b32 s24, s4\ns_mov_b32 s25, s5\ns_mov_b32 s26, %d\ns_mov_b32 s27, 0x20000" % (2048 * 1152))
    c("s_mov_b32 s28, s6\ns_mov_b32 s29, s7\ns_mov_b32 s30, %d\ns_mov_b32 s31, 0x20000" % (2048 * 1152))
    order = list(range(8, 16)) + list(range(8))
    for i, p in enumerate(order):
        c("s_mov_b32 s%d, %d" % (32 + i, p * 16 * PART_BYTES))
        c("buffer_load_dwordx4 %s, v1, s[20:23], s%d offen" % (V(16 + 4 * p, 4), 32 + i))
    c("buffer_load_dwordx2 v[4:5], v2, s[24:27], 0 offen\nbuffer_load_dwordx2 v[6:7], v2, s[24:27], 0 offen offset:32")
    c("s_mov_b32 s3, 0xffff0000")
    D, S = 80, 88
    for base, ps in ((D, range(8, 16)), (S, range(8))):
        for n, p in enumerate(ps):
            for q in range(4):
                r = 16 + 4 * p + q
                if n == 0:
                    c("v_lshlrev_b32 v%d, 16, v%d\nv_and_b32 v%d, s3, v%d" % (base + 2 * q, r, base + 2 * q + 1, r))
                else:
                    c("v_lshlrev_b32 v8, 16, v%d\nv_and_b32 v9, s3, v%d" % (r, r))
                    c("v_add_f32 v%d, v8, v%d\nv_add_f32 v%d, v9, v%d" % (base + 2 * q, base + 2 * q, base + 2 * q + 1, base + 2 * q + 1))
        if base == D:
            for e in range(8): c("v_mul_f32 v%d, %s, v%d" % (96 + e, f2h(-LOG2E), D + e))
            for e in range(8): c("v_exp_f32 v%d, v%d" % (96 + e, 96 + e))
            for e in range(8): c("v_add_f32 v%d, 1.0, v%d" % (96 + e, 96 + e))
            for e in range(8): c("v_rcp_f32 v%d, v%d" % (96 + e, 96 + e))
            for e in range(8): c("v_mul_f32 v%d, v%d, v%d" % (D + e, 96 + e, D + e))
    for q in range(4):
        c("v_lshlrev_b32 v8, 16, v%d\nv_and_b32 v9, s3, v%d" % (4 + q, 4 + q))
        c("v_fma_f32 v8, v%d, v%d, v8\nv_fma_f32 v9, v%d, v%d, v9" % (S + 2 * q, D + 2 * q, S + 2 * q + 1, D + 2 * q + 1))
        c("v_cvt_pk_bf16_f32 v%d, v8, v9" % (10 + q))
    c("buffer_store_dwordx2 v[10:11], v2, s[28:31], 0 offen\nbuffer_store_dwordx2 v[12:13], v2, s[28:31], 0 offen offset:32")
    if OPT.get('hd'):
        c("s_cmp_lg_u32 s2, 575\ns_cbranch_scc1 L_rexit")
        c("s_load_dwordx2 s[40:41], s[0:1], 80\ns_load_dword s44, s[8:9], 0x8000000 - 0x8000000\ns_waitcnt lgkmcnt(0)")
        c("s_mov_b32 s22, 0x10000000\nv_mov_b32 v1, 0x8000000\nbuffer_load_dword v3, v1, s[20:23], 0 offen\ns_waitcnt vmcnt(0)")
        c("s_memrealtime s[46:47]\ns_waitcnt lgkmcnt(0)\nv_sub_u32 v3, s46, v3")
        c("s_sub_u32 s40, s40, 512\ns_subb_u32 s41, s41, 0\ns_mov_b32 s42, 64\ns_mov_b32 s43, 0x20000\nv_mov_b32 v1, 4")
        c("buffer_store_dword v3, v1, s[40:43], 0 offen")
    c("L_rexit:\ns_endpgm")
    return c


def kd(name, nv, ao, ns=102):
    return """.p2align 6
.amdhsa_kernel %s
  .amdhsa_next_free_vgpr %d
  .amdhsa_next_free_sgpr %d
  .amdhsa_accum_offset %d
  .amdhsa_group_segment_fixed_size 0
  .amdhsa_kernarg_size 96
  .amdhsa_user_sgpr_count 2
  .amdhsa_user_sgpr_kernarg_segment_ptr 1
  .amdhsa_system_sgpr_workgroup_id_x 1
.end_amdhsa_kernel""" % (name, nv, ns, ao)


def alias_map(regions):
    rg = dict(regions)
    for i in range(20): rg[('R', i * 8192)] = (i * 8192, i * 8192 + 8192)
    al = {}
    for a, (s0, e0) in rg.items():
        al[a] = [b for b, (s1, e1) in rg.items() if b != a and s0 < e1 and s1 < e0]
    return al


def build_all():
    import gen_attn as GA_
    GA_.G.OPT.update(OPT); gen_attn = GA_.gen_attn
    main = KNAME + "_kernel"
    out = ["; @launch kernel=%s grid=(256,1,1) block=(256,1,1) lds=163840" % main,
           "; @launch kernel=reduce_kernel grid=(576,1,1) block=(256,1,1) lds=0",
           '.amdgcn_target "amdgcn-amd-amdhsa--gfx950"', ".text",
           ".globl %s" % main, ".p2align 8", ".type %s,@function" % main, main + ":"]
    pro = Code(); prologue_common(pro)
    pro("s_cmp_eq_u32 s%d, 0\ns_cbranch_scc0 L_ffn" % S_TY)
    att = Code(); gen_attn(att); finish(att)
    ffn = Code(); gen_ffn(ffn); finish(ffn)
    base = {('X', 0): (XBUF, 163840), ('KK', 0): (KTAB, KTAB + 512)}
    fa = dict(base)
    for o in (-16384, 0, 16384, 32768, 49152): fa[('H', o)] = (98304 + o, 98304 + o + 16384)
    aa = dict(base)
    aa[('Q', 0)] = (98304, 163840)
    aa[('FL', 0)] = (98304 - 64, 98304)
    w = 0
    for tr in att.traces: w += analyze(pro.p + tr, alias=alias_map(aa))
    w += analyze(pro.p + ffn.p, alias=alias_map(fa))
    print("attn", stats(att.p)); print("ffn", stats(ffn.p))
    assert w == 0, "LDS model warnings"
    emit(pro.p, out); emit(att.p, out)
    redo = Code()
    redo("L_redo:\ns_waitcnt vmcnt(0) lgkmcnt(0)\ns_barrier\ns_mov_b32 s%d, 1" % S_MODE)
    redo("v_mbcnt_lo_u32_b32 v0, -1, 0\nv_mbcnt_hi_u32_b32 v0, -1, v0\ns_lshl_b32 s%d, s%d, 6\nv_or_b32 v0, s%d, v0\ns_branch L_restart" % (S_T, S_W, S_T))
    if OPT.get('dbg'): redo.p = [Ins("L_redo:"), Ins("s_endpgm")]
    emit(redo.p, out)
    out.append("L_slow:")
    if att.slow: emit(att.slow, out)
    else: out.append("s_endpgm")
    out.append(".p2align 6\nL_ffn:")
    emit(ffn.p, out)
    out.append("L_exit:\ns_endpgm")
    red = gen_reduce()
    analyze(red.p)
    out += [".globl reduce_kernel", ".p2align 8", ".type reduce_kernel,@function", "reduce_kernel:"]
    emit(red.p, out)
    out.append('.section .rodata,"a"')
    out.append(kd(main, 512, 256))
    out.append(kd("reduce_kernel", 104, 104, 64))
    return "\n".join(out) + "\n"


if __name__ == "__main__":
    for a in sys.argv[2:]:
        k, v = a.split("=")
        OPT[k] = {'True': True, 'False': False}.get(v, v)
    t = build_all()
    open(sys.argv[1], "w").write(t)
    print("bytes", len(t))
```

```python
import sys, math
from asmlib import *

KNAME = "recurrent_scan__sliding_block_cached__swiglu_ffn__prompt"
LOG2E = 1.4426950408889634


def f2h(x):
    import struct
    return "0x%08x" % struct.unpack("<I", struct.pack("<f", x))[0]


def V(n, cnt=1):
    return "v%d" % n if cnt == 1 else "v[%d:%d]" % (n, n + cnt - 1)


def A(n, cnt=1):
    return "a%d" % n if cnt == 1 else "a[%d:%d]" % (n, n + cnt - 1)


def mfma(d, a, b, c):
    return Ins("v_mfma_f32_16x16x32_bf16 %s, %s, %s, %s" % (d, a, b, c))


OPT = dict(st="sc1", stamps=False, map=1, lead=6)

S_X, S_W0, S_W1, S_W2, S_W3, S_P = 40, 44, 48, 52, 56, 60
S_W, S_M0B, S_OA, S_OB, S_CNT, S_ST = 64, 65, 66, 67, 68, 69
S_SL, S_J, S_RT, S_TY, S_TG, S_HH = 70, 71, 72, 73, 74, 75
S_LO, S_HI = 76, 77
S_T = 78
S_MODE, S_BAD = 88, 89
S_MK = 90


def srd(n):
    return "s[%d:%d]" % (n, n + 3)


V_LANE, V_T0 = 1, 2
V_TID = 0
V_D0, V_D1 = 4, 5
V_RD = 6
V_TMP = 24
V_FR = 32
V_TAIL = 56
V_RAW = 88
PART_BYTES = 147456


def Breg(ks, tt):
    if ks < 16:
        return A((ks * 4 + tt) * 4, 4)
    return V(V_TAIL + ((ks - 16) * 4 + tt) * 4, 4)


class Code:
    def __init__(self):
        self.p = []

    def __call__(self, text, **meta):
        for l in text.split("\n"):
            l = l.strip()
            if l:
                self.p.append(Ins(l, **meta))

    def add(self, x):
        if isinstance(x, list):
            self.p += x
        else:
            self.p.append(x)


def build_srd(c, n, lo, hi, add_sgpr=None, add_const=0, size=None, size_sub=None):
    if add_sgpr is not None:
        c("s_add_u32 s%d, s%d, s%d\ns_addc_u32 s%d, s%d, 0" % (n, lo, add_sgpr, n + 1, hi))
    else:
        c("s_mov_b32 s%d, s%d\ns_mov_b32 s%d, s%d" % (n, lo, n + 1, hi))
    if add_const > 0:
        c("s_add_u32 s%d, s%d, %d\ns_addc_u32 s%d, s%d, 0" % (n, n, add_const, n + 1, n + 1))
    elif add_const < 0:
        c("s_sub_u32 s%d, s%d, %d\ns_subb_u32 s%d, s%d, 0" % (n, n, -add_const, n + 1, n + 1))
    if size_sub is not None:
        c("s_sub_u32 s%d, %d, s%d" % (n + 2, size, size_sub))
    else:
        c("s_mov_b32 s%d, %d" % (n + 2, size))
    c("s_mov_b32 s%d, 0x20000" % (n + 3))


def unit_voff(c, dst, rs, corder, t0=V_TMP):
    rho, pos, h, row = t0, t0 + 1, t0 + 2, t0 + 3
    c("v_lshrrev_b32 v%d, 3, v%d" % (rho, V_LANE))
    c("v_and_b32 v%d, 7, v%d" % (pos, V_LANE))
    c("v_bfe_u32 v%d, v%d, 1, 1" % (h, rho))
    c("s_and_b32 s%d, s%d, 1\ns_lshl_b32 s%d, s%d, 1" % (S_T, S_W, S_T, S_T))
    c("v_or_b32 v%d, s%d, v%d" % (h, S_T, h))
    c("v_lshlrev_b32 v%d, 1, v%d" % (h, h))
    c("v_xor_b32 v%d, v%d, v%d" % (pos, pos, h))
    if not corder:
        c("s_lshl_b32 s%d, s%d, 3" % (S_T, S_W))
        c("v_add_u32 v%d, s%d, v%d" % (row, S_T, rho))
    else:
        c("s_lshl_b32 s%d, s%d, 2" % (S_T, S_W))
        c("v_and_b32 v%d, 3, v%d" % (row, rho))
        c("v_add_u32 v%d, s%d, v%d" % (row, S_T, row))
        c("v_lshrrev_b32 v%d, 2, v%d" % (rho, rho))
        c("v_lshl_add_u32 v%d, v%d, 4, v%d" % (row, rho, row))
    c("v_mul_u32_u24 v%d, %d, v%d" % (row, rs, row))
    c("v_lshl_add_u32 v%d, v%d, 4, v%d" % (dst, pos, row))


def reader_addr(c, dst, t0=V_TMP):
    g, r4, h = t0, t0 + 1, t0 + 2
    c("v_lshrrev_b32 v%d, 4, v%d" % (g, V_LANE))
    c("v_bfe_u32 v%d, v%d, 2, 2" % (r4, V_LANE))
    c("v_lshrrev_b32 v%d, 1, v%d" % (h, r4))
    c("v_and_b32 v%d, 1, v%d" % (dst, g))
    c("v_lshl_or_b32 v%d, v%d, 1, v%d" % (h, dst, h))
    c("v_lshlrev_b32 v%d, 11, v%d" % (dst, g))
    c("v_lshl_or_b32 v%d, v%d, 7, v%d" % (dst, r4, dst))
    c("v_lshl_or_b32 v%d, v%d, 5, v%d" % (dst, h, dst))
    c("v_and_b32 v%d, 3, v%d" % (g, V_LANE))
    c("v_lshl_or_b32 v%d, v%d, 3, v%d" % (dst, g, dst))


V_XO = 52


def xloads(rb):
    return [Ins("buffer_load_dwordx4 %s, v%d, %s, s%d offen offset:%d" % (V(V_RAW + (rb * 9 + kb) * 4, 4), V_XO, srd(S_X), S_MK + rb, kb * 128)) for kb in range(9)]


def weave(c, start, extra):
    body = c.p[start:]
    del c.p[start:]
    n = len(extra)
    k = 0
    for i, x in enumerate(body):
        while k < n and k * len(body) <= i * n:
            c.p += extra[k]; k += 1
        c.p.append(x)
    for e in extra[k:]: c.p += e


def prologue_common(c):
    c("s_cmp_ge_u32 s2, 256\ns_cbranch_scc1 L_exit")
    c("s_mov_b32 s%d, 0" % S_MODE)
    c("L_restart:")
    c("s_load_dwordx16 s[16:31], s[0:1], 0\ns_load_dwordx8 s[32:39], s[0:1], 64")
    if OPT['stamps']:
        c("s_memrealtime s[100:101]")
    c("v_and_b32 v%d, 63, v%d\nv_lshrrev_b32 v2, 6, v%d" % (V_LANE, V_TID, V_TID))
    c("v_readfirstlane_b32 s%d, v2" % S_W)
    m = int(OPT['map'])
    c("s_and_b32 s%d, s2, 7\ns_lshr_b32 s%d, s2, 3" % (S_T, S_J))
    c("s_lshr_b32 s%d, s%d, 4\ns_and_b32 s%d, s%d, 15" % (S_TY, S_J, S_J, S_J))
    if m == 0:
        c("s_mov_b32 s%d, s%d\ns_mov_b32 s%d, s%d" % (S_SL, S_T, S_RT, S_J))
    else:
        c("s_andn2_b32 s%d, s%d, %d\ns_and_b32 s%d, s%d, %d\ns_or_b32 s%d, s%d, s%d" % (S_SL, S_T, (1 << m) - 1, S_T + 1, S_J, (1 << m) - 1, S_SL, S_SL, S_T + 1))
        c("s_and_b32 s%d, s%d, %d\ns_lshl_b32 s%d, s%d, %d\ns_lshr_b32 s%d, s%d, %d\ns_or_b32 s%d, s%d, s%d" %
          (S_T, S_T, (1 << m) - 1, S_T, S_T, 4 - m, S_RT, S_J, m, S_RT, S_RT, S_T))
    c("s_and_b32 s%d, s%d, 1\ns_lshr_b32 s%d, s%d, 1\ns_lshl_b32 s%d, s%d, 11" % (S_TG, S_W, S_HH, S_W, S_M0B, S_W))
    c("s_lshl_b32 s%d, s%d, 2\ns_lshl_b32 s%d, s%d, 1\ns_add_u32 s%d, s%d, s%d\ns_add_u32 s%d, s%d, s%d" %
      (S_T, S_RT, S_T + 1, S_TG, S_T, S_T, S_T + 1, S_T, S_T, S_HH))
    c("s_mul_i32 s%d, s%d, %d" % (S_MK, S_T, 32 * 1152))
    for rb in range(1, 4):
        c("s_add_u32 s%d, s%d, %d" % (S_MK + rb, S_MK, rb * 8 * 1152))
    c("v_lshrrev_b32 v2, 3, v%d\nv_mul_u32_u24 v2, 1152, v2\nv_and_b32 v3, 7, v%d\nv_lshl_add_u32 v%d, v3, 4, v2" % (V_LANE, V_LANE, V_XO))
    c("s_waitcnt lgkmcnt(0)")
    build_srd(c, S_X, 16, 17, size=2048 * 1152)
    for rb in range(2):
        c.add(xloads(rb))
    c("s_lshl_b32 s%d, s%d, 3\ns_add_u32 s%d, s%d, s%d\ns_lshl_b32 s%d, s%d, 4\ns_add_u32 s%d, s%d, s%d" %
      (S_T, S_TY, S_T, S_T, S_SL, S_T, S_T, S_T, S_T, S_RT))
    c("s_mul_i32 s%d, s%d, %d" % (S_T, S_T, PART_BYTES))
    build_srd(c, S_P, 38, 39, add_sgpr=S_T, size=PART_BYTES)


V_KK = 20
XBUF = 90112
KTAB = 89088
NPRE = 10


def layernorm(c, first_tags, setup, pre):
    T = V_TMP
    XW, XR, KW, KR, ONE, SM, NMU = V_FR, V_FR + 1, V_FR + 5, V_FR + 6, V_FR + 8, V_FR + 9, V_FR + 13
    c.add(setup)
    c("v_mov_b32 v%d, 0x3f803f80" % ONE)
    c("s_mov_b32 s%d, 0x3f80\ns_mov_b32 s%d, 0x3f800000" % (S_LO, S_HI))
    c("s_mul_i32 s%d, s%d, 18432\ns_add_u32 s%d, s%d, %d" % (S_T, S_W, S_T, S_T, XBUF))
    c("v_and_b32 v%d, 7, v%d\nv_lshrrev_b32 v%d, 3, v%d" % (T, V_LANE, T + 1, V_LANE))
    c("v_xor_b32 v%d, v%d, v%d\nv_lshlrev_b32 v%d, 4, v%d" % (XW, T, T + 1, XW, XW))
    c("v_and_b32 v%d, 3, v%d\nv_lshl_or_b32 v%d, v%d, 8, v%d" % (T + 2, T, XW, T + 2, XW))
    c("v_lshrrev_b32 v%d, 2, v%d\nv_lshl_or_b32 v%d, v%d, 10, v%d" % (T + 2, T, XW, T + 2, XW))
    c("v_add_u32 v%d, s%d, v%d" % (XW, S_T, XW))
    c("s_lshl_b32 s%d, s%d, 8\ns_lshl_b32 s%d, s%d, 7\ns_add_u32 s%d, s%d, %d" % (S_T + 1, S_TG, S_T + 2, S_HH, S_T + 1, S_T + 1, KTAB))
    c("s_add_u32 s%d, s%d, s%d" % (S_T + 3, S_T + 1, S_T + 2))
    c("v_lshlrev_b32 v%d, 2, v%d\nv_add_u32 v%d, s%d, v%d" % (KW, T + 1, KW, S_T + 3, KW))
    c("v_and_b32 v%d, 15, v%d\nv_lshlrev_b32 v%d, 2, v%d" % (T, V_LANE, KR, T))
    c("s_xor_b32 s%d, s%d, 128\ns_add_u32 s%d, s%d, s%d" % (S_T + 2, S_T + 2, S_T + 2, S_T + 2, S_T + 1))
    c("v_add_u32 v%d, s%d, v%d\nv_add_u32 v%d, s%d, v%d" % (KR + 1, S_T + 2, KR, KR, S_T + 3, KR))
    c("v_lshrrev_b32 v%d, 4, v%d\nv_xor_b32 v%d, v%d, v%d" % (T + 1, V_LANE, XR, T, T + 1))
    c("v_lshl_or_b32 v%d, v%d, 4, v%d\nv_lshlrev_b32 v%d, 4, v%d" % (XR, T + 1, XR, XR, XR))
    c("v_xor_b32 v%d, 64, v%d" % (XR + 1, XR))
    c("s_xor_b32 s%d, s%d, 2\ns_mul_i32 s%d, s%d, 18432\ns_add_u32 s%d, s%d, %d" % (S_T + 1, S_W, S_T + 1, S_T + 1, S_T + 1, S_T + 1, XBUF))
    c("v_add_u32 v%d, s%d, v%d\nv_add_u32 v%d, s%d, v%d" % (XR + 2, S_T + 1, XR, XR + 3, S_T + 1, XR + 1))
    c("v_add_u32 v%d, s%d, v%d\nv_add_u32 v%d, s%d, v%d" % (XR, S_T, XR, XR + 1, S_T, XR + 1))

    def stats(rb):
        for i in range(4): c("v_mov_b32 v%d, 0" % (SM + i))
        for kb in range(9):
            r = V_RAW + (rb * 9 + kb) * 4
            for q in range(4):
                c("v_dot2c_f32_bf16 v%d, v%d, v%d" % (SM + (q & 1), r + q, ONE))
                c("v_dot2c_f32_bf16 v%d, v%d, v%d" % (SM + 2 + (q & 1), r + q, r + q))
        c("v_add_f32 v%d, v%d, v%d\nv_add_f32 v%d, v%d, v%d" % (SM, SM, SM + 1, SM + 2, SM + 2, SM + 3))
        for d in ("quad_perm:[1,0,3,2]", "quad_perm:[2,3,0,1]", "row_half_mirror"):
            for a in (SM, SM + 2):
                c("v_add_f32_dpp v%d, v%d, v%d %s row_mask:0xf bank_mask:0xf" % (a, a, a, d))
        c("v_mul_f32 v%d, %s, v%d" % (NMU, f2h(-1.0 / 576), SM))
        c("v_mul_f32 v%d, %s, v%d" % (SM + 2, f2h(1.0 / 576), SM + 2))
        c("v_fma_f32 v%d, -v%d, v%d, v%d" % (SM + 2, NMU, NMU, SM + 2))
        c("v_max_f32 v%d, 0, v%d" % (SM + 2, SM + 2))
        c("v_add_f32 v%d, %s, v%d" % (SM + 2, f2h(1e-5), SM + 2))
        c("ds_write_b32 v%d, v%d offset:%d" % (KW, SM + 2, rb * 32), wloc=('KK', 0), cid=('KK', 0), nparts=4)

    def wr(rb, kb):
        r = V_RAW + (rb * 9 + kb) * 4
        c("ds_write_b128 v%d, %s offset:%d" % (XW, V(r, 4), kb * 2048 + (rb & 1) * 128), wloc=('X', 0), cid=('X', rb >> 1), nparts=18)

    def centre(rb, write):
        for kb in range(9):
            r = V_RAW + (rb * 9 + kb) * 4
            for q in range(4):
                t = T + 2 * q
                c("v_dot2_f32_bf16 v%d, v%d, s%d, v%d" % (t, r + q, S_LO, NMU))
                c("v_dot2_f32_bf16 v%d, v%d, s%d, v%d" % (t + 1, r + q, S_HI, NMU))
            if write and kb: wr(rb, kb - 1)
            for q in range(4):
                t = T + 2 * q
                c("v_cvt_pk_bf16_f32 v%d, v%d, v%d" % (r + q, t, t + 1))
        if write: wr(rb, 8)

    def reads(tile):
        for ks in range(18):
            for o in range(2):
                c("ds_read_b128 %s, v%d offset:%d" % (Breg(ks, 2 * o + tile), XR + 2 * o + (ks & 1), ks * 1024), rloc=('X', 0), cid=('X', tile), tag='xr')

    grp = []
    for x in pre:
        if grp and grp[-1][-1].kind != 'dma': grp[-1].append(x)
        else: grp.append([x])
    ng = len(grp)
    st = len(c.p); stats(0); weave(c, st, [[x] for x in xloads(2)])
    st = len(c.p); centre(0, True); weave(c, st, [[x] for x in xloads(3)])
    st = len(c.p); stats(1); centre(1, True); weave(c, st, grp[:ng // 2])
    c("s_barrier", ds_all=True)
    reads(0)
    st = len(c.p); stats(2); centre(2, False); weave(c, st, grp[ng // 2:])
    c("s_barrier", ds_all=True)
    for kb in range(9): wr(2, kb)
    stats(3); centre(3, True)
    c.add(stamp_ins())
    c("s_barrier", ds_all=True, vm_tags=first_tags)
    for tt in range(4):
        c("ds_read_b32 v%d, v%d offset:%d" % (V_KK + tt, KR + (tt >> 1), (tt & 1) * 64), rloc=('KK', 0), cid=('KK', 0), tag='xr')
    reads(1)


class Ring:
    def __init__(self, bars):
        self.bars = bars
        self.free = {}
        self.until = {}
        self.jobs = []
        self.need = {}
        self.loc = {}

    def bar_after(self, pos):
        for i, p in enumerate(self.bars):
            if p > pos: return i
        return len(self.bars)

    def bar_before(self, pos):
        r = -1
        for i, p in enumerate(self.bars):
            if p <= pos: r = i
        return r

    def add(self, q, need, done, make, loc=None):
        self.jobs.append(dict(q=q, need=need, done=done, make=make, loc=loc))
        self.need.setdefault(need, set()).add(('G', q))

    def pick(self, job, w):
        if job['loc'] is not None:
            return job['loc'] if self.free.get(job['loc'], -1) <= w else None
        rel = self.bar_after(job['done'])
        c = [l for l in self.pool if self.free.get(l, -1) <= w and rel <= self.until.get(l, 1 << 30)]
        if not c: return None
        return min(c, key=lambda l: (self.until.get(l, 1 << 30), self.free.get(l, -1), l))

    def plan(self, items, npre, nmax, lead, last_pos, frac=1.0):
        pre = []
        k = 0
        for job in self.jobs[:npre]:
            l = self.pick(job, -1)
            assert l is not None
            self.loc[job['q']] = l; self.free[l] = self.bar_after(job['done'])
            pre += job['make'](l)
            k += 1
        for w in range(len(self.bars)):
            p0 = self.bars[w]
            p1 = self.bars[w + 1] if w + 1 < len(self.bars) else last_pos
            sel = []
            while k < len(self.jobs) and len(sel) < nmax(w):
                job = self.jobs[k]
                if job['need'] - w > lead(w): break
                l = self.pick(job, w)
                if l is None: break
                assert job['need'] > w, ("job late", job['q'], w)
                self.loc[job['q']] = l; self.free[l] = self.bar_after(job['done'])
                sel.append((job, l)); k += 1
            if not sel: continue
            wd = (p1 - p0 - 1) * frac / len(sel)
            for i, (job, l) in enumerate(sel):
                ins = job['make'](l)
                t0 = p0 + 1 + int(i * wd)
                n = len(ins)
                for jx, x in enumerate(ins):
                    tg = t0 + (int(wd / 2) + 1 if jx == n - 1 else max(0, jx - (n - 4)) if jx < n - 2 else 1)
                    items.append(Item(x, p0, p1 - 1, tgt=tg, stream='dma'))
            if k < len(self.jobs): assert self.jobs[k]['need'] > w + 1 or True
        self.left = len(self.jobs) - k
        return pre


def dma_job(q, loc, srdn, soff_ins, vd0=V_D0, vd1=V_D1, cstep=0, soff=S_OA):
    meta = dict(wloc=('R', loc), cid=('G', q), nparts=2)
    if cstep: meta['cstep'] = cstep
    out = []
    if soff_ins: out.append(Ins(soff_ins))
    out.append(Ins("s_add_u32 m0, s%d, %d" % (S_M0B, loc), hoist=True))
    out.append(Ins("buffer_load_dwordx4 v%d, %s, s%d offen lds" % (vd0, srd(srdn), soff), **meta))
    out.append(Ins("buffer_load_dwordx4 v%d, %s, s%d offen offset:1024 lds" % (vd1, srd(srdn), soff), **meta))
    return out


def frag_items(items, f, first_use, slot_free, bar_pos, dst, areg, imm, loc, q, cstep=0, junk=False, lead=17, stream='fr'):
    meta = dict(rloc=('R', loc), cid=('G', q))
    if cstep: meta['cstep'] = cstep
    if junk: meta['junk_ok'] = True
    lo = max(slot_free, bar_pos)
    k = dst[0]
    n = dst[1]
    for h in range(2):
        reg = (V if k == 'v' else A)(n + 2 * h, 2)
        items.append(Item(Ins("ds_read_b64_tr_b16 %s, v%d offset:%d" % (reg, areg, imm + 512 * h), **meta),
                          lo, max(lo, first_use - 6), tgt=first_use - lead + 2 * h, stream=stream))


def part_store(acc, pk, va, vb, soff):
    out = []
    for tt in range(4):
        p = pk + 4 * tt
        for tile in range(2):
            a = acc + (tile * 4 + tt) * 4
            out.append(Ins("v_cvt_pk_bf16_f32 v%d, v%d, v%d" % (p + 2 * tile, a, a + 1)))
            out.append(Ins("v_cvt_pk_bf16_f32 v%d, v%d, v%d" % (p + 2 * tile + 1, a + 2, a + 3)))
        out.append(Ins("buffer_store_dwordx4 %s, v%d, %s, s%d offen offset:%d %s" %
                       (V(p, 4), va if tt < 2 else vb, srd(S_P), soff, (tt & 1) * 1024, OPT['st']), tag='st'))
    out.append(Ins("s_add_u32 s%d, s%d, 16384" % (soff, soff)))
    return out


def split_regions(items, bounds):
    regs = [[] for _ in range(len(bounds) - 1)]
    for it in items:
        g = min(max(it.tgt, it.lo), it.hi)
        g = max(g, bounds[0])
        for i in range(len(bounds) - 1):
            if bounds[i] <= g < bounds[i + 1] or (i == len(bounds) - 2 and g >= bounds[i + 1]):
                regs[i].append(it)
                break
    return regs


def clip_items(items, g0, g1):
    out = []
    for it in items:
        lo = max(it.lo, g0); hi = min(it.hi, g1 - 1)
        n = Item(it.ins, lo, max(lo, hi), tgt=it.tgt, stream=it.stream, fixed=it.fixed)
        out.append(n)
    return out


def set_cstep(items, st):
    for it in items:
        if it.ins.meta.get('cid') is not None or it.ins.meta.get('vm_tags') is not None:
            it.ins.meta['cstep'] = st


def same_period(a, b, shift):
    ka = [(i.ins.text, i.tgt, i.stream) for i in a]
    kb = [(i.ins.text, i.tgt - shift, i.stream) for i in b]
    if sorted(ka) != sorted(kb):
        sa, sb = set(ka), set(kb)
        print("only in first:", sorted(sa - sb)[:12]); print("only in other:", sorted(sb - sa)[:12])
        return False
    return True


def emit_regions(c, bb, items, plan, name):
    bounds = []
    for r in plan:
        if r[0] == 's': bounds.append(r[1])
        else: bounds += [r[1] + r[2] * k for k in range(r[3])]
    last = plan[-1]
    bounds.append(last[2] if last[0] == 's' else last[1] + last[2] * last[3])
    items = [it for it in items if min(max(it.tgt, it.lo), it.hi) < bounds[-1]]
    regs = split_regions(items, bounds)
    k = 0
    out = []
    first = True
    for r in plan:
        if r[0] == 's':
            its = regs[k]
            if first: its = [Item(it.ins, it.lo, min(it.hi, r[2] - 1), it.tgt, it.stream, it.fixed) for it in its]
            else: its = clip_items(its, r[1], r[2])
            out.append(schedule(bb, its, r[1], r[2], verbose=True, name=name + ' straight'))
            k += 1
        else:
            _, g0, ln, cnt, label, cstep = r
            for x in range(1, cnt):
                assert same_period(regs[k], regs[k + x], ln * x), "%s loop %s not periodic (%d)" % (name, label, x)
            set_cstep(regs[k], cstep)
            body = schedule(bb, clip_items(regs[k], g0, g0 + ln), g0, g0 + ln, verbose=True, name=name + ' loop')
            body += [Ins("s_sub_u32 s%d, s%d, 1" % (S_CNT, S_CNT)), Ins("s_cbranch_scc0 " + label)]
            out.append([Ins("s_mov_b32 s%d, %d" % (S_CNT, cnt - 1)), Ins(".p2align 3"), Loop(label, cnt, body)])
            k += cnt
        first = False
    return out


def spread(items, seq, lo, end, stream='valu', los=None, his=None):
    tot = sum(x.cost for x in seq)
    a = 0
    for i, x in enumerate(seq):
        l = lo if los is None else max(lo, los[i])
        h = end if his is None else min(end, his[i])
        tg = lo + int(a * (end - lo) / tot)
        a += x.cost
        items.append(Item(x, l, max(l, h), tgt=min(max(tg, l), max(l, h)), stream=stream))


def gen_ffn(c):
    V_HA, V_HB, V_RA, V_RB = 12, 13, 14, 15
    V_C1 = 16
    GA, GB, U, HREG = 88, 120, 152, 184
    V_SA, V_SB = 248, 249
    V_DD0, V_DD1 = 250, 251
    V_H4 = 252
    HB = 98304
    T = V_TMP
    NU_U = 324
    NU = NU_U + 9 * 18
    NUV = NU + 40
    NM = NU * 8
    LOOP0 = (NU_U + 3 * 18) * 8
    LOOPL = 36 * 8
    eU8 = NU_U * 8 - 1
    BX2 = eU8 + 62
    bars = sorted([32 * s + 13 for s in range(NUV // 4)] + [BX2])
    R = Ring(bars)
    R.pool = [i * 8192 for i in range(20)]
    for i in range(10, 20): R.free[i * 8192] = 0
    bx1 = R.bar_after(eU8 - 41)
    bx2 = bars.index(BX2)
    bx3 = R.bar_after(BX2 + 39)

    def hslot(gam):
        sl = gam if gam < 5 else gam - 5
        return (3 - sl) * 16384

    for gam in range(5):
        for h in range(2):
            R.until[HB + hslot(gam) + 8192 * h] = R.bar_before((2 * gam + 2) * 144 + 3)

    def mk_u(q):
        hg, kp = divmod(q, 9)
        gam, isu = divmod(hg, 2)
        return lambda loc: dma_job(q, loc, S_W1 if isu else S_W0, "s_mov_b32 s%d, %d" % (S_OA, kp * 64 * 9216 + gam * 128))

    def mk_d(q):
        dq = q - 162
        if dq == 0: so = "s_mov_b32 s%d, 0" % S_OA
        elif dq % 9 == 0: so = "s_sub_u32 s%d, s%d, %d" % (S_OA, S_OA, 8 * 73728 - 128)
        else: so = "s_add_u32 s%d, s%d, 73728" % (S_OA, S_OA)
        return lambda loc: dma_job(q, loc, S_W2, so, V_DD0, V_DD1)

    for q in range(NUV // 2 - 4):
        need = bars.index(32 * (q // 2 - 1) + 13) if q >= 2 else -1
        R.add(q, need, 16 * q + 15, mk_u(q) if q < 162 else mk_d(q))
    items = []
    orig_pick = R.pick

    def pick(job, w):
        if w >= bx1:
            for h in range(2):
                l = HB + hslot(4) + 8192 * h
                if R.until.pop(l, None) is not None: R.free[l] = bx1
        if w >= bx3:
            for gam in range(1, 4):
                for h in range(2):
                    l = HB + hslot(gam) + 8192 * h
                    if R.until.pop(l, None) is not None: R.free[l] = bx3
        return orig_pick(job, w)
    R.pick = pick
    pre = R.plan(items, NPRE, lambda w: 2 if bars[w] >= LOOP0 - 32 else 3, lambda w: int(OPT['lead']), NUV * 8)

    c("s_mul_i32 s%d, s%d, 1152" % (S_T + 2, S_SL))
    build_srd(c, S_W0, 28, 29, add_sgpr=S_T + 2, size=576 * 9216, size_sub=S_T + 2)
    build_srd(c, S_W1, 30, 31, add_sgpr=S_T + 2, size=576 * 9216, size_sub=S_T + 2)
    c("s_mul_i32 s%d, s%d, %d" % (S_T + 2, S_SL, 576 * 1152))
    build_srd(c, S_W2, 32, 33, add_sgpr=S_T + 2, size=576 * 1152)
    unit_voff(c, V_D0, 9216, False)
    c("v_add_u32 v%d, %d, v%d" % (V_D1, 32 * 9216 - 1024, V_D0))
    main = c
    c = Code()
    unit_voff(c, V_DD0, 1152, True)
    c("v_add_u32 v%d, %d, v%d" % (V_DD1, 32 * 1152 - 1024, V_DD0))
    reader_addr(c, V_RD)
    c("s_lshl_b32 s%d, s%d, 6" % (S_T, S_HH))
    c("v_xor_b32 v%d, s%d, v%d" % (V_RD, S_T, V_RD))
    c("v_xor_b32 v%d, 32, v%d" % (V_RD + 1, V_RD))
    for s in (1, 2):
        for t in range(2):
            c("v_add_u32 v%d, 0x%x, v%d" % (V_RD + 2 * s + t, 65536 * s, V_RD + t))
    c("s_lshl_b32 s%d, s%d, 12\ns_lshl_b32 s%d, s%d, 11\ns_add_u32 s%d, s%d, s%d\ns_add_u32 s%d, s%d, %d" %
      (S_T, S_TG, S_T + 1, S_HH, S_T, S_T, S_T + 1, S_T, S_T, HB))
    c("v_lshlrev_b32 v%d, 4, v%d\nv_add_u32 v%d, s%d, v%d" % (V_RA, V_LANE, V_RA, S_T, V_RA))
    c("v_xor_b32 v%d, 0x800, v%d" % (V_RB, V_RA))
    c("s_lshl_b32 s%d, s%d, 13" % (S_T, S_HH))
    c("v_add_u32 v%d, s%d, v%d\nv_add_u32 v%d, s%d, v%d" % (V_HA, S_T, V_RA, V_HB, S_T, V_RB))
    for i in range(4):
        c("v_subrev_u32 v%d, 16384, v%d" % (V_H4 + i, V_HA + i))
    c("v_subrev_u32 v%d, %d, v%d\nv_subrev_u32 v%d, %d, v%d" % (V_SA, HB, V_HA, V_SB, HB, V_HB))
    c("s_mov_b32 s%d, 0" % S_ST)
    setup = c.p
    c = main
    c.add(stamp_ins())
    layernorm(c, {('G', 0), ('G', 1)}, setup, pre)
    c.add(stamp_ins())
    seq = [Ins("v_rsq_f32 v%d, v%d" % (V_C1 + tt, V_KK + tt)) for tt in range(4)]
    seq += [Ins("v_mul_f32 v%d, %s, v%d" % (V_C1 + tt, f2h(-LOG2E), V_C1 + tt)) for tt in range(4)]
    spread(items, seq, 40, 100)

    bb = []
    for u in range(NUV):
        if u < NU_U:
            hg, ks = divmod(u, 18)
            gam, isu = divmod(hg, 2)
            acc = U if isu else (GA if gam % 2 == 0 else GB)
        else:
            beta, ks = divmod(u - NU_U, 18)
            acc = GB if beta % 2 == 0 else GA
        for tile in range(2):
            fr = V(V_FR + 4 * ((2 * u + tile) % 6), 4)
            for tt in range(4):
                d = V(acc + (tile * 4 + tt) * 4, 4)
                bb.append(mfma(d, fr, Breg(ks, tt), d if ks else "0"))
    for i, p in enumerate(bars):
        tags = {'hw'}
        if i == 0: tags.add('xr')
        if i == bx1: tags.add('r1')
        if i == bx3: tags.add('r2')
        items.append(Item(Ins("s_barrier", vm_tags=R.need.get(i, set()), ds_tags=tags, cost=2), p, p, fixed=True))
    for f in range(2 * (NU + 4)):
        u, tile = divmod(f, 2)
        q = u >> 1
        loc = R.loc[q]
        fu = 4 * f
        bp = 32 * (u // 4 - 1) + 13 if u >= 4 else -1
        frag_items(items, f, fu, fu - 21, bp, ('v', V_FR + 4 * (f % 6)), V_RD + 2 * (loc >> 16) + tile, (loc & 65535) + (u & 1) * 1024,
                   loc, q, junk=(u >= NU))
        if f % 2 == 0 and fu <= NM:
            items.append(Item(Ins("WAIT %s, %s" % (V(V_FR + 4 * (f % 6), 4), V(V_FR + 4 * ((f + 1) % 6), 4)), last=True), fu - 1, fu - 1, fixed=True))

    def haddr(base, gam, tt, extra=0):
        o = hslot(gam)
        r = base + (tt >> 1)
        if o < 0:
            r += V_H4 - V_HA; o += 16384
        return r, o + (tt & 1) * 1024 + extra

    def hwrite(gam, tt, src):
        r, o = haddr(V_HA, gam, tt)
        return Ins("ds_write_b128 v%d, %s offset:%d" % (r, V(src, 4), o), tag='hw', wloc=('H', hslot(gam)), cid=('H', gam), nparts=4)

    for gam in range(9):
        G = GA if gam % 2 == 0 else GB
        eG = (2 * gam + 1) * 144 - 1
        eU = eG + 144
        seq = []
        for tt in range(4):
            for tile in range(2):
                g = G + (tile * 4 + tt) * 4
                t = T + 4 * tile
                for e in range(4): seq.append(Ins("v_mul_f32 v%d, v%d, v%d" % (t + e, V_C1 + tt, g + e)))
                for e in range(4): seq.append(Ins("v_exp_f32 v%d, v%d" % (t + e, t + e)))
                for e in range(4): seq.append(Ins("v_fma_f32 v%d, v%d, v%d, v%d" % (t + e, t + e, V_KK + tt, V_KK + tt)))
                for e in range(4): seq.append(Ins("v_rcp_f32 v%d, v%d" % (t + e, t + e)))
                for e in range(4): seq.append(Ins("v_mul_f32 v%d, v%d, v%d" % (g + e, t + e, g + e)))
        nA = len(seq)
        for tt in range(4):
            for tile in range(2):
                g = G + (tile * 4 + tt) * 4
                uu = U + (tile * 4 + tt) * 4
                for e in range(4): seq.append(Ins("v_mul_f32 v%d, v%d, v%d" % (uu + e, g + e, uu + e)))
            dst = G + tt * 4 if gam < 5 else HREG + ((gam - 5) * 4 + tt) * 4
            for tile in range(2):
                uu = U + (tile * 4 + tt) * 4
                seq.append(Ins("v_cvt_pk_bf16_f32 v%d, v%d, v%d" % (dst + 2 * tile, uu, uu + 1)))
                seq.append(Ins("v_cvt_pk_bf16_f32 v%d, v%d, v%d" % (dst + 2 * tile + 1, uu + 2, uu + 3)))
            if gam < 5 or gam == 8:
                seq.append(hwrite(gam, tt, dst))
        end = eU + 139 if gam < 8 else BX2 - 1
        spread(items, seq, eG + 4, end, los=[eG + 4] * nA + [eU + 4] * (len(seq) - nA))
    u8 = 17 * 18

    def hread(kap, tt, tag):
        gam, hp = divmod(kap, 2)
        r, o = haddr(V_RA, gam, tt, hp * 8192)
        return Ins("ds_read_b128 %s, v%d offset:%d" % (Breg(kap, tt), r, o), rloc=('H', hslot(gam)), cid=('H', gam), tag=tag)

    for kap in range(10):
        p = (u8 + kap) * 8 + 7
        for tt in range(4):
            items.append(Item(hread(kap, tt, 'r1'), p, bars[bx1] - 6, tgt=p + 2 * tt, stream='xch'))
    p = bars[bx1]
    for gam in range(5, 8):
        for tt in range(4):
            items.append(Item(hwrite(gam, tt, HREG + ((gam - 5) * 4 + tt) * 4), p, BX2 - 1, tgt=p + 2 + 4 * ((gam - 5) * 4 + tt), stream='xch'))
    for kap in range(10, 18):
        for tt in range(4):
            fu = NU_U * 8 + kap * 8
            items.append(Item(hread(kap, tt, 'r2'), BX2, min(fu - 4, bars[bx3] - 4), tgt=BX2 + (kap - 10) * 4 + tt, stream='xch'))
    for beta in range(9):
        acc = GB if beta % 2 == 0 else GA
        e = (NU_U + 18 * (beta + 1)) * 8 - 1
        seq = part_store(acc, U + 16 * (beta % 2), V_SA, V_SB, S_ST)
        if beta == 8:
            tail = seq
            break
        spread(items, seq, e + 4, e + 110)
    for g in (143, 143 + 288 * 4, eU8, LOOP0 - 2):
        for x in stamp_ins(): items.append(Item(x, g, g, fixed=True))
    for r in emit_regions(c, bb, items, [('s', 0, LOOP0), ('l', LOOP0, LOOPL, 3, "L_ffn_d", 18)], 'ffn'):
        c.add(r)
    c.add(tail)


STAMPS = [0]


def dump_regs(c, quads, tmp=2):
    c("s_waitcnt vmcnt(0) lgkmcnt(0)\ns_nop 7\ns_nop 7")
    c("s_lshl_b32 s3, s2, 2\ns_add_u32 s3, s3, s%d\ns_lshl_b32 s3, s3, 17\ns_add_u32 s3, s3, 0x3000000" % S_W)
    c("s_mov_b32 s40, s38\ns_mov_b32 s41, s39\ns_mov_b32 s42, 0x10000000\ns_mov_b32 s43, 0x20000")
    c("v_lshlrev_b32 v%d, 4, v%d" % (tmp, V_LANE))
    for q in quads:
        c("buffer_store_dwordx4 %s, v%d, s[40:43], s3 offen" % (q, tmp))
        c("s_add_u32 s3, s3, 1024\ns_waitcnt vmcnt(0)")
    c("s_endpgm")


def stamp_ins():
    if not OPT['stamps']: return []
    i = STAMPS[0]
    STAMPS[0] += 1
    assert i < 8
    return [Ins("s_memtime s[%d:%d]" % (4 + 4 * i, 5 + 4 * i), cost=0), Ins("s_memrealtime s[%d:%d]" % (6 + 4 * i, 7 + 4 * i), cost=0)]


def finish(c):
    if OPT['stamps']:
        c("s_waitcnt vmcnt(0)")
        c.add(stamp_ins())
        c("s_waitcnt lgkmcnt(0)")
        n = STAMPS[0]
        for i in range(n):
            c("v_mov_b32 v%d, s%d\nv_mov_b32 v%d, s%d" % (32 + 2 * i, 4 + 4 * i, 33 + 2 * i, 6 + 4 * i))
        c("s_lshl_b32 s3, s2, 7\ns_add_u32 s3, s3, 0x8001000\nv_mov_b32 v7, s3")
        c("s_mov_b32 s40, s38\ns_mov_b32 s41, s39\ns_mov_b32 s42, 0x10000000\ns_mov_b32 s43, 0x20000")
        for i in range(n):
            c("buffer_store_dwordx2 v[%d:%d], v7, s[40:43], 0 offen offset:%d" % (32 + 2 * i, 33 + 2 * i, 8 * i))
        STAMPS[0] = 0
    if OPT['stamps']:
        c("s_waitcnt vmcnt(0)")
        c("s_memrealtime s[98:99]\ns_waitcnt lgkmcnt(0)")
        c("v_mov_b32 v8, s100\nv_mov_b32 v9, s101\nv_mov_b32 v10, s98\nv_mov_b32 v11, s99")
        c("s_lshl_b32 s3, s2, 4\ns_add_u32 s3, s3, 0x8000000\nv_mov_b32 v7, s3")
        c("s_mov_b32 s12, s38\ns_mov_b32 s13, s39\ns_mov_b32 s14, 0x10000000\ns_mov_b32 s15, 0x20000")
        c("buffer_store_dwordx4 v[8:11], v7, s[12:15], 0 offen")
    c("s_endpgm")


def gen_reduce():
    c = Code()
    c("s_cmp_ge_u32 s2, 576\ns_cbranch_scc1 L_rexit")
    c("s_load_dwordx2 s[4:5], s[0:1], 0\ns_load_dwordx2 s[6:7], s[0:1], 72\ns_load_dwordx2 s[8:9], s[0:1], 88")
    c("s_mul_hi_u32 s10, s2, %d" % ((1 << 32) // 36 + 1))
    c("s_mul_i32 s11, s10, 36\ns_sub_u32 s11, s2, s11")
    c("s_lshr_b32 s12, s11, 2\ns_and_b32 s13, s11, 3")
    c("s_and_b32 s14, s13, 1\ns_lshr_b32 s15, s13, 1")
    c("s_mul_i32 s16, s10, %d\ns_lshl_b32 s17, s11, 12\ns_add_u32 s16, s16, s17" % PART_BYTES)
    c("v_lshlrev_b32 v1, 4, v0\nv_add_u32 v1, s16, v1")
    c("s_lshl_b32 s18, s10, 7\ns_lshl_b32 s19, s14, 6\ns_add_u32 s18, s18, s19")
    c("v_lshrrev_b32 v2, 6, v0\nv_lshlrev_b32 v2, 4, v2\nv_and_b32 v3, 15, v0\nv_add3_u32 v2, v2, v3, s18")
    c("v_mul_u32_u24 v2, 1152, v2")
    c("s_lshl_b32 s18, s12, 7\ns_lshl_b32 s19, s15, 6\ns_add_u32 s18, s18, s19")
    c("v_bfe_u32 v3, v0, 4, 2\nv_lshlrev_b32 v3, 3, v3\nv_add3_u32 v2, v2, v3, s18")
    c("s_waitcnt lgkmcnt(0)")
    c("s_mov_b32 s20, s8\ns_mov_b32 s21, s9\ns_mov_b32 s22, %d\ns_mov_b32 s23, 0x20000" % (256 * PART_BYTES))
    c("s_mov_b32 s24, s4\ns_mov_b32 s25, s5\ns_mov_b32 s26, %d\ns_mov_b32 s27, 0x20000" % (2048 * 1152))
    c("s_mov_b32 s28, s6\ns_mov_b32 s29, s7\ns_mov_b32 s30, %d\ns_mov_b32 s31, 0x20000" % (2048 * 1152))
    order = list(range(8, 16)) + list(range(8))
    for i, p in enumerate(order):
        c("s_mov_b32 s%d, %d" % (32 + i, p * 16 * PART_BYTES))
        c("buffer_load_dwordx4 %s, v1, s[20:23], s%d offen" % (V(16 + 4 * p, 4), 32 + i))
    c("buffer_load_dwordx2 v[4:5], v2, s[24:27], 0 offen\nbuffer_load_dwordx2 v[6:7], v2, s[24:27], 0 offen offset:32")
    c("s_mov_b32 s3, 0xffff0000")
    D, S = 80, 88
    for base, ps in ((D, range(8, 16)), (S, range(8))):
        for n, p in enumerate(ps):
            for q in range(4):
                r = 16 + 4 * p + q
                if n == 0:
                    c("v_lshlrev_b32 v%d, 16, v%d\nv_and_b32 v%d, s3, v%d" % (base + 2 * q, r, base + 2 * q + 1, r))
                else:
                    c("v_lshlrev_b32 v8, 16, v%d\nv_and_b32 v9, s3, v%d" % (r, r))
                    c("v_add_f32 v%d, v8, v%d\nv_add_f32 v%d, v9, v%d" % (base + 2 * q, base + 2 * q, base + 2 * q + 1, base + 2 * q + 1))
        if base == D:
            for e in range(8): c("v_mul_f32 v%d, %s, v%d" % (96 + e, f2h(-LOG2E), D + e))
            for e in range(8): c("v_exp_f32 v%d, v%d" % (96 + e, 96 + e))
            for e in range(8): c("v_add_f32 v%d, 1.0, v%d" % (96 + e, 96 + e))
            for e in range(8): c("v_rcp_f32 v%d, v%d" % (96 + e, 96 + e))
            for e in range(8): c("v_mul_f32 v%d, v%d, v%d" % (D + e, 96 + e, D + e))
    for q in range(4):
        c("v_lshlrev_b32 v8, 16, v%d\nv_and_b32 v9, s3, v%d" % (4 + q, 4 + q))
        c("v_fma_f32 v8, v%d, v%d, v8\nv_fma_f32 v9, v%d, v%d, v9" % (S + 2 * q, D + 2 * q, S + 2 * q + 1, D + 2 * q + 1))
        c("v_cvt_pk_bf16_f32 v%d, v8, v9" % (10 + q))
    c("buffer_store_dwordx2 v[10:11], v2, s[28:31], 0 offen\nbuffer_store_dwordx2 v[12:13], v2, s[28:31], 0 offen offset:32")
    if OPT.get('hd'):
        c("s_cmp_lg_u32 s2, 575\ns_cbranch_scc1 L_rexit")
        c("s_load_dwordx2 s[40:41], s[0:1], 80\ns_waitcnt lgkmcnt(0)")
        c("s_mov_b32 s22, 0x10000000")
        c("v_and_b32 v1, 7, v0\nv_bfe_u32 v2, v0, 3, 1\nv_lshlrev_b32 v3, 14, v2\nv_lshl_add_u32 v3, v1, 3, v3\nv_add_u32 v3, 0x8001004, v3")
        c("v_lshlrev_b32 v4, 11, v2\nv_add_u32 v4, 0x8000000, v4")
        c("buffer_load_dword v5, v3, s[20:23], 0 offen\nbuffer_load_dword v6, v4, s[20:23], 0 offen\ns_waitcnt vmcnt(0)")
        c("s_memrealtime s[46:47]\ns_waitcnt lgkmcnt(0)\nv_mov_b32 v7, s46\nv_cmp_eq_u32 vcc, 1, v1\ns_nop 1\nv_cndmask_b32 v5, v5, v7, vcc\nv_sub_u32 v5, v5, v6")
        c("s_mov_b32 s42, 64\ns_mov_b32 s43, 0x20000\nv_lshlrev_b32 v1, 2, v0")
        c("buffer_store_dword v5, v1, s[40:43], 0 offen")
    c("L_rexit:\ns_endpgm")
    return c


def kd(name, nv, ao, ns=102):
    return """.p2align 6
.amdhsa_kernel %s
  .amdhsa_next_free_vgpr %d
  .amdhsa_next_free_sgpr %d
  .amdhsa_accum_offset %d
  .amdhsa_group_segment_fixed_size 0
  .amdhsa_kernarg_size 96
  .amdhsa_user_sgpr_count 2
  .amdhsa_user_sgpr_kernarg_segment_ptr 1
  .amdhsa_system_sgpr_workgroup_id_x 1
.end_amdhsa_kernel""" % (name, nv, ns, ao)


def alias_map(regions):
    rg = dict(regions)
    for i in range(20): rg[('R', i * 8192)] = (i * 8192, i * 8192 + 8192)
    al = {}
    for a, (s0, e0) in rg.items():
        al[a] = [b for b, (s1, e1) in rg.items() if b != a and s0 < e1 and s1 < e0]
    return al


def build_all():
    import gen_attn as GA_
    GA_.G.OPT.update(OPT); gen_attn = GA_.gen_attn
    main = KNAME + "_kernel"
    out = ["; @launch kernel=%s grid=(256,1,1) block=(256,1,1) lds=163840" % main,
           "; @launch kernel=reduce_kernel grid=(576,1,1) block=(256,1,1) lds=0",
           '.amdgcn_target "amdgcn-amd-amdhsa--gfx950"', ".text",
           ".globl %s" % main, ".p2align 8", ".type %s,@function" % main, main + ":"]
    pro = Code(); prologue_common(pro)
    pro("s_cmp_eq_u32 s%d, 0\ns_cbranch_scc0 L_ffn" % S_TY)
    att = Code(); gen_attn(att); finish(att)
    ffn = Code(); gen_ffn(ffn); finish(ffn)
    base = {('X', 0): (XBUF, 163840), ('KK', 0): (KTAB, KTAB + 512)}
    fa = dict(base)
    for o in (-16384, 0, 16384, 32768, 49152): fa[('H', o)] = (98304 + o, 98304 + o + 16384)
    aa = dict(base)
    aa[('Q', 0)] = (98304, 163840)
    aa[('FL', 0)] = (98304 - 64, 98304)
    w = 0
    for tr in att.traces: w += analyze(pro.p + tr, alias=alias_map(aa))
    w += analyze(pro.p + ffn.p, alias=alias_map(fa))
    print("attn", stats(att.p)); print("ffn", stats(ffn.p))
    assert w == 0, "LDS model warnings"
    emit(pro.p, out); emit(att.p, out)
    redo = Code()
    redo("L_redo:\ns_waitcnt vmcnt(0) lgkmcnt(0)\ns_barrier\ns_mov_b32 s%d, 1" % S_MODE)
    redo("v_mbcnt_lo_u32_b32 v0, -1, 0\nv_mbcnt_hi_u32_b32 v0, -1, v0\ns_lshl_b32 s%d, s%d, 6\nv_or_b32 v0, s%d, v0\ns_branch L_restart" % (S_T, S_W, S_T))
    if OPT.get('dbg'): redo.p = [Ins("L_redo:"), Ins("s_endpgm")]
    emit(redo.p, out)
    out.append("L_slow:")
    if att.slow: emit(att.slow, out)
    else: out.append("s_endpgm")
    out.append(".p2align 6\nL_ffn:")
    emit(ffn.p, out)
    out.append("L_exit:\ns_endpgm")
    red = gen_reduce()
    analyze(red.p)
    out += [".globl reduce_kernel", ".p2align 8", ".type reduce_kernel,@function", "reduce_kernel:"]
    emit(red.p, out)
    out.append('.section .rodata,"a"')
    out.append(kd(main, 512, 256))
    out.append(kd("reduce_kernel", 104, 104, 64))
    return "\n".join(out) + "\n"


if __name__ == "__main__":
    for a in sys.argv[2:]:
        k, v = a.split("=")
        OPT[k] = {'True': True, 'False': False}.get(v, v)
    t = build_all()
    open(sys.argv[1], "w").write(t)
    print("bytes", len(t))
```

```python
import sys, math
from asmlib import *

KNAME = "recurrent_scan__sliding_block_cached__swiglu_ffn__prompt"
LOG2E = 1.4426950408889634


def f2h(x):
    import struct
    return "0x%08x" % struct.unpack("<I", struct.pack("<f", x))[0]


def V(n, cnt=1):
    return "v%d" % n if cnt == 1 else "v[%d:%d]" % (n, n + cnt - 1)


def A(n, cnt=1):
    return "a%d" % n if cnt == 1 else "a[%d:%d]" % (n, n + cnt - 1)


def mfma(d, a, b, c):
    return Ins("v_mfma_f32_16x16x32_bf16 %s, %s, %s, %s" % (d, a, b, c))


OPT = dict(st="sc1", stamps=False, map=1, lead=6)

S_X, S_W0, S_W1, S_W2, S_W3, S_P = 40, 44, 48, 52, 56, 60
S_W, S_M0B, S_OA, S_OB, S_CNT, S_ST = 64, 65, 66, 67, 68, 69
S_SL, S_J, S_RT, S_TY, S_TG, S_HH = 70, 71, 72, 73, 74, 75
S_LO, S_HI = 76, 77
S_T = 78
S_MODE, S_BAD = 88, 89
S_MK = 90


def srd(n):
    return "s[%d:%d]" % (n, n + 3)


V_LANE, V_T0 = 1, 2
V_TID = 0
V_D0, V_D1 = 4, 5
V_RD = 6
V_TMP = 24
V_FR = 32
V_TAIL = 56
V_RAW = 88
PART_BYTES = 147456


def Breg(ks, tt):
    if ks < 16:
        return A((ks * 4 + tt) * 4, 4)
    return V(V_TAIL + ((ks - 16) * 4 + tt) * 4, 4)


class Code:
    def __init__(self):
        self.p = []

    def __call__(self, text, **meta):
        for l in text.split("\n"):
            l = l.strip()
            if l:
                self.p.append(Ins(l, **meta))

    def add(self, x):
        if isinstance(x, list):
            self.p += x
        else:
            self.p.append(x)


def build_srd(c, n, lo, hi, add_sgpr=None, add_const=0, size=None, size_sub=None):
    if add_sgpr is not None:
        c("s_add_u32 s%d, s%d, s%d\ns_addc_u32 s%d, s%d, 0" % (n, lo, add_sgpr, n + 1, hi))
    else:
        c("s_mov_b32 s%d, s%d\ns_mov_b32 s%d, s%d" % (n, lo, n + 1, hi))
    if add_const > 0:
        c("s_add_u32 s%d, s%d, %d\ns_addc_u32 s%d, s%d, 0" % (n, n, add_const, n + 1, n + 1))
    elif add_const < 0:
        c("s_sub_u32 s%d, s%d, %d\ns_subb_u32 s%d, s%d, 0" % (n, n, -add_const, n + 1, n + 1))
    if size_sub is not None:
        c("s_sub_u32 s%d, %d, s%d" % (n + 2, size, size_sub))
    else:
        c("s_mov_b32 s%d, %d" % (n + 2, size))
    c("s_mov_b32 s%d, 0x20000" % (n + 3))


def unit_voff(c, dst, rs, corder, t0=V_TMP):
    rho, pos, h, row = t0, t0 + 1, t0 + 2, t0 + 3
    c("v_lshrrev_b32 v%d, 3, v%d" % (rho, V_LANE))
    c("v_and_b32 v%d, 7, v%d" % (pos, V_LANE))
    c("v_bfe_u32 v%d, v%d, 1, 1" % (h, rho))
    c("s_and_b32 s%d, s%d, 1\ns_lshl_b32 s%d, s%d, 1" % (S_T, S_W, S_T, S_T))
    c("v_or_b32 v%d, s%d, v%d" % (h, S_T, h))
    c("v_lshlrev_b32 v%d, 1, v%d" % (h, h))
    c("v_xor_b32 v%d, v%d, v%d" % (pos, pos, h))
    if not corder:
        c("s_lshl_b32 s%d, s%d, 3" % (S_T, S_W))
        c("v_add_u32 v%d, s%d, v%d" % (row, S_T, rho))
    else:
        c("s_lshl_b32 s%d, s%d, 2" % (S_T, S_W))
        c("v_and_b32 v%d, 3, v%d" % (row, rho))
        c("v_add_u32 v%d, s%d, v%d" % (row, S_T, row))
        c("v_lshrrev_b32 v%d, 2, v%d" % (rho, rho))
        c("v_lshl_add_u32 v%d, v%d, 4, v%d" % (row, rho, row))
    c("v_mul_u32_u24 v%d, %d, v%d" % (row, rs, row))
    c("v_lshl_add_u32 v%d, v%d, 4, v%d" % (dst, pos, row))


def reader_addr(c, dst, t0=V_TMP):
    g, r4, h = t0, t0 + 1, t0 + 2
    c("v_lshrrev_b32 v%d, 4, v%d" % (g, V_LANE))
    c("v_bfe_u32 v%d, v%d, 2, 2" % (r4, V_LANE))
    c("v_lshrrev_b32 v%d, 1, v%d" % (h, r4))
    c("v_and_b32 v%d, 1, v%d" % (dst, g))
    c("v_lshl_or_b32 v%d, v%d, 1, v%d" % (h, dst, h))
    c("v_lshlrev_b32 v%d, 11, v%d" % (dst, g))
    c("v_lshl_or_b32 v%d, v%d, 7, v%d" % (dst, r4, dst))
    c("v_lshl_or_b32 v%d, v%d, 5, v%d" % (dst, h, dst))
    c("v_and_b32 v%d, 3, v%d" % (g, V_LANE))
    c("v_lshl_or_b32 v%d, v%d, 3, v%d" % (dst, g, dst))


V_XO = 52


def xloads(rb):
    return [Ins("buffer_load_dwordx4 %s, v%d, %s, s%d offen offset:%d" % (V(V_RAW + (rb * 9 + kb) * 4, 4), V_XO, srd(S_X), S_MK + rb, kb * 128)) for kb in range(9)]


def weave(c, start, extra):
    body = c.p[start:]
    del c.p[start:]
    n = len(extra)
    k = 0
    for i, x in enumerate(body):
        while k < n and k * len(body) <= i * n:
            c.p += extra[k]; k += 1
        c.p.append(x)
    for e in extra[k:]: c.p += e


def prologue_common(c):
    c("s_cmp_ge_u32 s2, 256\ns_cbranch_scc1 L_exit")
    c("s_mov_b32 s%d, 0" % S_MODE)
    c("L_restart:")
    c("s_load_dwordx16 s[16:31], s[0:1], 0\ns_load_dwordx8 s[32:39], s[0:1], 64")
    if OPT['stamps']:
        c("s_memrealtime s[100:101]")
    c("v_and_b32 v%d, 63, v%d\nv_lshrrev_b32 v2, 6, v%d" % (V_LANE, V_TID, V_TID))
    c("v_readfirstlane_b32 s%d, v2" % S_W)
    m = int(OPT['map'])
    c("s_and_b32 s%d, s2, 7\ns_lshr_b32 s%d, s2, 3" % (S_T, S_J))
    c("s_lshr_b32 s%d, s%d, 4\ns_and_b32 s%d, s%d, 15" % (S_TY, S_J, S_J, S_J))
    if m == 0:
        c("s_mov_b32 s%d, s%d\ns_mov_b32 s%d, s%d" % (S_SL, S_T, S_RT, S_J))
    else:
        c("s_andn2_b32 s%d, s%d, %d\ns_and_b32 s%d, s%d, %d\ns_or_b32 s%d, s%d, s%d" % (S_SL, S_T, (1 << m) - 1, S_T + 1, S_J, (1 << m) - 1, S_SL, S_SL, S_T + 1))
        c("s_and_b32 s%d, s%d, %d\ns_lshl_b32 s%d, s%d, %d\ns_lshr_b32 s%d, s%d, %d\ns_or_b32 s%d, s%d, s%d" %
          (S_T, S_T, (1 << m) - 1, S_T, S_T, 4 - m, S_RT, S_J, m, S_RT, S_RT, S_T))
    c("s_and_b32 s%d, s%d, 1\ns_lshr_b32 s%d, s%d, 1\ns_lshl_b32 s%d, s%d, 11" % (S_TG, S_W, S_HH, S_W, S_M0B, S_W))
    c("s_lshl_b32 s%d, s%d, 2\ns_lshl_b32 s%d, s%d, 1\ns_add_u32 s%d, s%d, s%d\ns_add_u32 s%d, s%d, s%d" %
      (S_T, S_RT, S_T + 1, S_TG, S_T, S_T, S_T + 1, S_T, S_T, S_HH))
    c("s_mul_i32 s%d, s%d, %d" % (S_MK, S_T, 32 * 1152))
    for rb in range(1, 4):
        c("s_add_u32 s%d, s%d, %d" % (S_MK + rb, S_MK, rb * 8 * 1152))
    c("v_lshrrev_b32 v2, 3, v%d\nv_mul_u32_u24 v2, 1152, v2\nv_and_b32 v3, 7, v%d\nv_lshl_add_u32 v%d, v3, 4, v2" % (V_LANE, V_LANE, V_XO))
    c("s_waitcnt lgkmcnt(0)")
    build_srd(c, S_X, 16, 17, size=2048 * 1152)
    for rb in range(2):
        c.add(xloads(rb))
    c("s_lshl_b32 s%d, s%d, 3\ns_add_u32 s%d, s%d, s%d\ns_lshl_b32 s%d, s%d, 4\ns_add_u32 s%d, s%d, s%d" %
      (S_T, S_TY, S_T, S_T, S_SL, S_T, S_T, S_T, S_T, S_RT))
    c("s_mul_i32 s%d, s%d, %d" % (S_T, S_T, PART_BYTES))
    build_srd(c, S_P, 38, 39, add_sgpr=S_T, size=PART_BYTES)


V_KK = 20
XBUF = 90112
KTAB = 89088
NPRE = 10


def layernorm(c, first_tags, setup, pre):
    T = V_TMP
    XW, XR, KW, KR, ONE, SM, NMU = V_FR, V_FR + 1, V_FR + 5, V_FR + 6, V_FR + 8, V_FR + 9, V_FR + 13
    c.add(setup)
    c("v_mov_b32 v%d, 0x3f803f80" % ONE)
    c("s_mov_b32 s%d, 0x3f80\ns_mov_b32 s%d, 0x3f800000" % (S_LO, S_HI))
    c("s_mul_i32 s%d, s%d, 18432\ns_add_u32 s%d, s%d, %d" % (S_T, S_W, S_T, S_T, XBUF))
    c("v_and_b32 v%d, 7, v%d\nv_lshrrev_b32 v%d, 3, v%d" % (T, V_LANE, T + 1, V_LANE))
    c("v_xor_b32 v%d, v%d, v%d\nv_lshlrev_b32 v%d, 4, v%d" % (XW, T, T + 1, XW, XW))
    c("v_and_b32 v%d, 3, v%d\nv_lshl_or_b32 v%d, v%d, 8, v%d" % (T + 2, T, XW, T + 2, XW))
    c("v_lshrrev_b32 v%d, 2, v%d\nv_lshl_or_b32 v%d, v%d, 10, v%d" % (T + 2, T, XW, T + 2, XW))
    c("v_add_u32 v%d, s%d, v%d" % (XW, S_T, XW))
    c("s_lshl_b32 s%d, s%d, 8\ns_lshl_b32 s%d, s%d, 7\ns_add_u32 s%d, s%d, %d" % (S_T + 1, S_TG, S_T + 2, S_HH, S_T + 1, S_T + 1, KTAB))
    c("s_add_u32 s%d, s%d, s%d" % (S_T + 3, S_T + 1, S_T + 2))
    c("v_lshlrev_b32 v%d, 2, v%d\nv_add_u32 v%d, s%d, v%d" % (KW, T + 1, KW, S_T + 3, KW))
    c("v_and_b32 v%d, 15, v%d\nv_lshlrev_b32 v%d, 2, v%d" % (T, V_LANE, KR, T))
    c("s_xor_b32 s%d, s%d, 128\ns_add_u32 s%d, s%d, s%d" % (S_T + 2, S_T + 2, S_T + 2, S_T + 2, S_T + 1))
    c("v_add_u32 v%d, s%d, v%d\nv_add_u32 v%d, s%d, v%d" % (KR + 1, S_T + 2, KR, KR, S_T + 3, KR))
    c("v_lshrrev_b32 v%d, 4, v%d\nv_xor_b32 v%d, v%d, v%d" % (T + 1, V_LANE, XR, T, T + 1))
    c("v_lshl_or_b32 v%d, v%d, 4, v%d\nv_lshlrev_b32 v%d, 4, v%d" % (XR, T + 1, XR, XR, XR))
    c("v_xor_b32 v%d, 64, v%d" % (XR + 1, XR))
    c("s_xor_b32 s%d, s%d, 2\ns_mul_i32 s%d, s%d, 18432\ns_add_u32 s%d, s%d, %d" % (S_T + 1, S_W, S_T + 1, S_T + 1, S_T + 1, S_T + 1, XBUF))
    c("v_add_u32 v%d, s%d, v%d\nv_add_u32 v%d, s%d, v%d" % (XR + 2, S_T + 1, XR, XR + 3, S_T + 1, XR + 1))
    c("v_add_u32 v%d, s%d, v%d\nv_add_u32 v%d, s%d, v%d" % (XR, S_T, XR, XR + 1, S_T, XR + 1))

    def stats(rb):
        for i in range(4): c("v_mov_b32 v%d, 0" % (SM + i))
        for kb in range(9):
            r = V_RAW + (rb * 9 + kb) * 4
            for q in range(4):
                c("v_dot2c_f32_bf16 v%d, v%d, v%d" % (SM + (q & 1), r + q, ONE))
                c("v_dot2c_f32_bf16 v%d, v%d, v%d" % (SM + 2 + (q & 1), r + q, r + q))
        c("v_add_f32 v%d, v%d, v%d\nv_add_f32 v%d, v%d, v%d" % (SM, SM, SM + 1, SM + 2, SM + 2, SM + 3))
        for d in ("quad_perm:[1,0,3,2]", "quad_perm:[2,3,0,1]", "row_half_mirror"):
            for a in (SM, SM + 2):
                c("v_add_f32_dpp v%d, v%d, v%d %s row_mask:0xf bank_mask:0xf" % (a, a, a, d))
        c("v_mul_f32 v%d, %s, v%d" % (NMU, f2h(-1.0 / 576), SM))
        c("v_mul_f32 v%d, %s, v%d" % (SM + 2, f2h(1.0 / 576), SM + 2))
        c("v_fma_f32 v%d, -v%d, v%d, v%d" % (SM + 2, NMU, NMU, SM + 2))
        c("v_max_f32 v%d, 0, v%d" % (SM + 2, SM + 2))
        c("v_add_f32 v%d, %s, v%d" % (SM + 2, f2h(1e-5), SM + 2))
        c("ds_write_b32 v%d, v%d offset:%d" % (KW, SM + 2, rb * 32), wloc=('KK', 0), cid=('KK', 0), nparts=4)

    def wr(rb, kb):
        r = V_RAW + (rb * 9 + kb) * 4
        c("ds_write_b128 v%d, %s offset:%d" % (XW, V(r, 4), kb * 2048 + (rb & 1) * 128), wloc=('X', 0), cid=('X', rb >> 1), nparts=18)

    def centre(rb, write):
        for kb in range(9):
            r = V_RAW + (rb * 9 + kb) * 4
            for q in range(4):
                t = T + 2 * q
                c("v_dot2_f32_bf16 v%d, v%d, s%d, v%d" % (t, r + q, S_LO, NMU))
                c("v_dot2_f32_bf16 v%d, v%d, s%d, v%d" % (t + 1, r + q, S_HI, NMU))
            if write and kb: wr(rb, kb - 1)
            for q in range(4):
                t = T + 2 * q
                c("v_cvt_pk_bf16_f32 v%d, v%d, v%d" % (r + q, t, t + 1))
        if write: wr(rb, 8)

    def reads(tile):
        for ks in range(18):
            for o in range(2):
                c("ds_read_b128 %s, v%d offset:%d" % (Breg(ks, 2 * o + tile), XR + 2 * o + (ks & 1), ks * 1024), rloc=('X', 0), cid=('X', tile), tag='xr')

    grp = []
    for x in pre:
        if grp and grp[-1][-1].kind != 'dma': grp[-1].append(x)
        else: grp.append([x])
    ng = len(grp)
    st = len(c.p); stats(0); weave(c, st, [[x] for x in xloads(2)])
    st = len(c.p); centre(0, True); weave(c, st, [[x] for x in xloads(3)])
    st = len(c.p); stats(1); centre(1, True); weave(c, st, grp[:ng // 2])
    c("s_barrier", ds_all=True)
    reads(0)
    st = len(c.p); stats(2); centre(2, False); weave(c, st, grp[ng // 2:])
    c("s_barrier", ds_all=True)
    for kb in range(9): wr(2, kb)
    stats(3); centre(3, True)
    c.add(stamp_ins())
    c("s_barrier", ds_all=True, vm_tags=first_tags)
    for tt in range(4):
        c("ds_read_b32 v%d, v%d offset:%d" % (V_KK + tt, KR + (tt >> 1), (tt & 1) * 64), rloc=('KK', 0), cid=('KK', 0), tag='xr')
    reads(1)
    if OPT.get('dup'):
        c("s_add_u32 s%d, s%d, 0x4000000\ns_addc_u32 s%d, s%d, 0\ns_mov_b32 s%d, s%d" % (S_X, S_P, S_X + 1, S_P + 1, S_X + 2, S_P + 2))


class Ring:
    def __init__(self, bars):
        self.bars = bars
        self.free = {}
        self.until = {}
        self.jobs = []
        self.need = {}
        self.loc = {}

    def bar_after(self, pos):
        for i, p in enumerate(self.bars):
            if p > pos: return i
        return len(self.bars)

    def bar_before(self, pos):
        r = -1
        for i, p in enumerate(self.bars):
            if p <= pos: r = i
        return r

    def add(self, q, need, done, make, loc=None):
        self.jobs.append(dict(q=q, need=need, done=done, make=make, loc=loc))
        self.need.setdefault(need, set()).add(('G', q))

    def pick(self, job, w):
        if job['loc'] is not None:
            return job['loc'] if self.free.get(job['loc'], -1) <= w else None
        rel = self.bar_after(job['done'])
        c = [l for l in self.pool if self.free.get(l, -1) <= w and rel <= self.until.get(l, 1 << 30)]
        if not c: return None
        return min(c, key=lambda l: (self.until.get(l, 1 << 30), self.free.get(l, -1), l))

    def plan(self, items, npre, nmax, lead, last_pos, frac=1.0):
        pre = []
        k = 0
        for job in self.jobs[:npre]:
            l = self.pick(job, -1)
            assert l is not None
            self.loc[job['q']] = l; self.free[l] = self.bar_after(job['done'])
            pre += job['make'](l)
            k += 1
        for w in range(len(self.bars)):
            p0 = self.bars[w]
            p1 = self.bars[w + 1] if w + 1 < len(self.bars) else last_pos
            sel = []
            while k < len(self.jobs) and len(sel) < nmax(w):
                job = self.jobs[k]
                if job['need'] - w > lead(w): break
                l = self.pick(job, w)
                if l is None: break
                assert job['need'] > w, ("job late", job['q'], w)
                self.loc[job['q']] = l; self.free[l] = self.bar_after(job['done'])
                sel.append((job, l)); k += 1
            if not sel: continue
            wd = (p1 - p0 - 1) * frac / len(sel)
            for i, (job, l) in enumerate(sel):
                ins = job['make'](l)
                t0 = p0 + 1 + int(i * wd)
                n = len(ins)
                for jx, x in enumerate(ins):
                    tg = t0 + (int(wd / 2) + 1 if jx == n - 1 else max(0, jx - (n - 4)) if jx < n - 2 else 1)
                    items.append(Item(x, p0, p1 - 1, tgt=tg, stream='dma'))
            if k < len(self.jobs): assert self.jobs[k]['need'] > w + 1 or True
        self.left = len(self.jobs) - k
        return pre


def dma_job(q, loc, srdn, soff_ins, vd0=V_D0, vd1=V_D1, cstep=0, soff=S_OA):
    meta = dict(wloc=('R', loc), cid=('G', q), nparts=2)
    if cstep: meta['cstep'] = cstep
    out = []
    if soff_ins: out.append(Ins(soff_ins))
    out.append(Ins("s_add_u32 m0, s%d, %d" % (S_M0B, loc), hoist=True))
    out.append(Ins("buffer_load_dwordx4 v%d, %s, s%d offen lds" % (vd0, srd(srdn), soff), **meta))
    out.append(Ins("buffer_load_dwordx4 v%d, %s, s%d offen offset:1024 lds" % (vd1, srd(srdn), soff), **meta))
    return out


def frag_items(items, f, first_use, slot_free, bar_pos, dst, areg, imm, loc, q, cstep=0, junk=False, lead=17, stream='fr'):
    meta = dict(rloc=('R', loc), cid=('G', q))
    if cstep: meta['cstep'] = cstep
    if junk: meta['junk_ok'] = True
    lo = max(slot_free, bar_pos)
    k = dst[0]
    n = dst[1]
    for h in range(2):
        reg = (V if k == 'v' else A)(n + 2 * h, 2)
        items.append(Item(Ins("ds_read_b64_tr_b16 %s, v%d offset:%d" % (reg, areg, imm + 512 * h), **meta),
                          lo, max(lo, first_use - 6), tgt=first_use - lead + 2 * h, stream=stream))


def part_store(acc, pk, va, vb, soff):
    out = []
    for tt in range(4):
        p = pk + 4 * tt
        for tile in range(2):
            a = acc + (tile * 4 + tt) * 4
            out.append(Ins("v_cvt_pk_bf16_f32 v%d, v%d, v%d" % (p + 2 * tile, a, a + 1)))
            out.append(Ins("v_cvt_pk_bf16_f32 v%d, v%d, v%d" % (p + 2 * tile + 1, a + 2, a + 3)))
        out.append(Ins("buffer_store_dwordx4 %s, v%d, %s, s%d offen offset:%d %s" %
                       (V(p, 4), va if tt < 2 else vb, srd(S_P), soff, (tt & 1) * 1024, OPT['st']), tag='st'))
        if OPT.get('dup'):
            out.append(Ins("buffer_store_dwordx4 %s, v%d, %s, s%d offen offset:%d %s" %
                           (V(p, 4), va if tt < 2 else vb, srd(S_X), soff, (tt & 1) * 1024, OPT['st']), tag='st'))
    out.append(Ins("s_add_u32 s%d, s%d, 16384" % (soff, soff)))
    return out


def split_regions(items, bounds):
    regs = [[] for _ in range(len(bounds) - 1)]
    for it in items:
        g = min(max(it.tgt, it.lo), it.hi)
        g = max(g, bounds[0])
        for i in range(len(bounds) - 1):
            if bounds[i] <= g < bounds[i + 1] or (i == len(bounds) - 2 and g >= bounds[i + 1]):
                regs[i].append(it)
                break
    return regs


def clip_items(items, g0, g1):
    out = []
    for it in items:
        lo = max(it.lo, g0); hi = min(it.hi, g1 - 1)
        n = Item(it.ins, lo, max(lo, hi), tgt=it.tgt, stream=it.stream, fixed=it.fixed)
        out.append(n)
    return out


def set_cstep(items, st):
    for it in items:
        if it.ins.meta.get('cid') is not None or it.ins.meta.get('vm_tags') is not None:
            it.ins.meta['cstep'] = st


def same_period(a, b, shift):
    ka = [(i.ins.text, i.tgt, i.stream) for i in a]
    kb = [(i.ins.text, i.tgt - shift, i.stream) for i in b]
    if sorted(ka) != sorted(kb):
        sa, sb = set(ka), set(kb)
        print("only in first:", sorted(sa - sb)[:12]); print("only in other:", sorted(sb - sa)[:12])
        return False
    return True


def emit_regions(c, bb, items, plan, name):
    bounds = []
    for r in plan:
        if r[0] == 's': bounds.append(r[1])
        else: bounds += [r[1] + r[2] * k for k in range(r[3])]
    last = plan[-1]
    bounds.append(last[2] if last[0] == 's' else last[1] + last[2] * last[3])
    items = [it for it in items if min(max(it.tgt, it.lo), it.hi) < bounds[-1]]
    regs = split_regions(items, bounds)
    k = 0
    out = []
    first = True
    for r in plan:
        if r[0] == 's':
            its = regs[k]
            if first: its = [Item(it.ins, it.lo, min(it.hi, r[2] - 1), it.tgt, it.stream, it.fixed) for it in its]
            else: its = clip_items(its, r[1], r[2])
            out.append(schedule(bb, its, r[1], r[2], verbose=True, name=name + ' straight'))
            k += 1
        else:
            _, g0, ln, cnt, label, cstep = r
            for x in range(1, cnt):
                assert same_period(regs[k], regs[k + x], ln * x), "%s loop %s not periodic (%d)" % (name, label, x)
            set_cstep(regs[k], cstep)
            body = schedule(bb, clip_items(regs[k], g0, g0 + ln), g0, g0 + ln, verbose=True, name=name + ' loop')
            body += [Ins("s_sub_u32 s%d, s%d, 1" % (S_CNT, S_CNT)), Ins("s_cbranch_scc0 " + label)]
            out.append([Ins("s_mov_b32 s%d, %d" % (S_CNT, cnt - 1)), Ins(".p2align 3"), Loop(label, cnt, body)])
            k += cnt
        first = False
    return out


def spread(items, seq, lo, end, stream='valu', los=None, his=None):
    tot = sum(x.cost for x in seq)
    a = 0
    for i, x in enumerate(seq):
        l = lo if los is None else max(lo, los[i])
        h = end if his is None else min(end, his[i])
        tg = lo + int(a * (end - lo) / tot)
        a += x.cost
        items.append(Item(x, l, max(l, h), tgt=min(max(tg, l), max(l, h)), stream=stream))


def gen_ffn(c):
    V_HA, V_HB, V_RA, V_RB = 12, 13, 14, 15
    V_C1 = 16
    GA, GB, U, HREG = 88, 120, 152, 184
    V_SA, V_SB = 248, 249
    V_DD0, V_DD1 = 250, 251
    V_H4 = 252
    HB = 98304
    T = V_TMP
    NU_U = 324
    NU = NU_U + 9 * 18
    NUV = NU + 40
    NM = NU * 8
    LOOP0 = (NU_U + 3 * 18) * 8
    LOOPL = 36 * 8
    eU8 = NU_U * 8 - 1
    BX2 = eU8 + 62
    bars = sorted([32 * s + 13 for s in range(NUV // 4)] + [BX2])
    R = Ring(bars)
    R.pool = [i * 8192 for i in range(20)]
    for i in range(10, 20): R.free[i * 8192] = 0
    bx1 = R.bar_after(eU8 - 41)
    bx2 = bars.index(BX2)
    bx3 = R.bar_after(BX2 + 39)

    def hslot(gam):
        sl = gam if gam < 5 else gam - 5
        return (3 - sl) * 16384

    for gam in range(5):
        for h in range(2):
            R.until[HB + hslot(gam) + 8192 * h] = R.bar_before((2 * gam + 2) * 144 + 3)

    def mk_u(q):
        hg, kp = divmod(q, 9)
        gam, isu = divmod(hg, 2)
        return lambda loc: dma_job(q, loc, S_W1 if isu else S_W0, "s_mov_b32 s%d, %d" % (S_OA, kp * 64 * 9216 + gam * 128))

    def mk_d(q):
        dq = q - 162
        if dq == 0: so = "s_mov_b32 s%d, 0" % S_OA
        elif dq % 9 == 0: so = "s_sub_u32 s%d, s%d, %d" % (S_OA, S_OA, 8 * 73728 - 128)
        else: so = "s_add_u32 s%d, s%d, 73728" % (S_OA, S_OA)
        return lambda loc: dma_job(q, loc, S_W2, so, V_DD0, V_DD1)

    for q in range(NUV // 2 - 4):
        need = bars.index(32 * (q // 2 - 1) + 13) if q >= 2 else -1
        R.add(q, need, 16 * q + 15, mk_u(q) if q < 162 else mk_d(q))
    items = []
    orig_pick = R.pick

    def pick(job, w):
        if w >= bx1:
            for h in range(2):
                l = HB + hslot(4) + 8192 * h
                if R.until.pop(l, None) is not None: R.free[l] = bx1
        if w >= bx3:
            for gam in range(1, 4):
                for h in range(2):
                    l = HB + hslot(gam) + 8192 * h
                    if R.until.pop(l, None) is not None: R.free[l] = bx3
        return orig_pick(job, w)
    R.pick = pick
    pre = R.plan(items, NPRE, lambda w: 2 if bars[w] >= LOOP0 - 32 else 3, lambda w: int(OPT['lead']), NUV * 8)

    c("s_mul_i32 s%d, s%d, 1152" % (S_T + 2, S_SL))
    build_srd(c, S_W0, 28, 29, add_sgpr=S_T + 2, size=576 * 9216, size_sub=S_T + 2)
    build_srd(c, S_W1, 30, 31, add_sgpr=S_T + 2, size=576 * 9216, size_sub=S_T + 2)
    c("s_mul_i32 s%d, s%d, %d" % (S_T + 2, S_SL, 576 * 1152))
    build_srd(c, S_W2, 32, 33, add_sgpr=S_T + 2, size=576 * 1152)
    unit_voff(c, V_D0, 9216, False)
    c("v_add_u32 v%d, %d, v%d" % (V_D1, 32 * 9216 - 1024, V_D0))
    main = c
    c = Code()
    unit_voff(c, V_DD0, 1152, True)
    c("v_add_u32 v%d, %d, v%d" % (V_DD1, 32 * 1152 - 1024, V_DD0))
    reader_addr(c, V_RD)
    c("s_lshl_b32 s%d, s%d, 6" % (S_T, S_HH))
    c("v_xor_b32 v%d, s%d, v%d" % (V_RD, S_T, V_RD))
    c("v_xor_b32 v%d, 32, v%d" % (V_RD + 1, V_RD))
    for s in (1, 2):
        for t in range(2):
            c("v_add_u32 v%d, 0x%x, v%d" % (V_RD + 2 * s + t, 65536 * s, V_RD + t))
    c("s_lshl_b32 s%d, s%d, 12\ns_lshl_b32 s%d, s%d, 11\ns_add_u32 s%d, s%d, s%d\ns_add_u32 s%d, s%d, %d" %
      (S_T, S_TG, S_T + 1, S_HH, S_T, S_T, S_T + 1, S_T, S_T, HB))
    c("v_lshlrev_b32 v%d, 4, v%d\nv_add_u32 v%d, s%d, v%d" % (V_RA, V_LANE, V_RA, S_T, V_RA))
    c("v_xor_b32 v%d, 0x800, v%d" % (V_RB, V_RA))
    c("s_lshl_b32 s%d, s%d, 13" % (S_T, S_HH))
    c("v_add_u32 v%d, s%d, v%d\nv_add_u32 v%d, s%d, v%d" % (V_HA, S_T, V_RA, V_HB, S_T, V_RB))
    for i in range(4):
        c("v_subrev_u32 v%d, 16384, v%d" % (V_H4 + i, V_HA + i))
    c("v_subrev_u32 v%d, %d, v%d\nv_subrev_u32 v%d, %d, v%d" % (V_SA, HB, V_HA, V_SB, HB, V_HB))
    c("s_mov_b32 s%d, 0" % S_ST)
    setup = c.p
    c = main
    c.add(stamp_ins())
    layernorm(c, {('G', 0), ('G', 1)}, setup, pre)
    c.add(stamp_ins())
    seq = [Ins("v_rsq_f32 v%d, v%d" % (V_C1 + tt, V_KK + tt)) for tt in range(4)]
    seq += [Ins("v_mul_f32 v%d, %s, v%d" % (V_C1 + tt, f2h(-LOG2E), V_C1 + tt)) for tt in range(4)]
    spread(items, seq, 40, 100)

    bb = []
    for u in range(NUV):
        if u < NU_U:
            hg, ks = divmod(u, 18)
            gam, isu = divmod(hg, 2)
            acc = U if isu else (GA if gam % 2 == 0 else GB)
        else:
            beta, ks = divmod(u - NU_U, 18)
            acc = GB if beta % 2 == 0 else GA
        for tile in range(2):
            fr = V(V_FR + 4 * ((2 * u + tile) % 6), 4)
            for tt in range(4):
                d = V(acc + (tile * 4 + tt) * 4, 4)
                bb.append(mfma(d, fr, Breg(ks, tt), d if ks else "0"))
    for i, p in enumerate(bars):
        tags = {'hw'}
        if i == 0: tags.add('xr')
        if i == bx1: tags.add('r1')
        if i == bx3: tags.add('r2')
        items.append(Item(Ins("s_barrier", vm_tags=R.need.get(i, set()), ds_tags=tags, cost=2), p, p, fixed=True))
    for f in range(2 * (NU + 4)):
        u, tile = divmod(f, 2)
        q = u >> 1
        loc = R.loc[q]
        fu = 4 * f
        bp = 32 * (u // 4 - 1) + 13 if u >= 4 else -1
        frag_items(items, f, fu, fu - 21, bp, ('v', V_FR + 4 * (f % 6)), V_RD + 2 * (loc >> 16) + tile, (loc & 65535) + (u & 1) * 1024,
                   loc, q, junk=(u >= NU))
        if f % 2 == 0 and fu <= NM:
            items.append(Item(Ins("WAIT %s, %s" % (V(V_FR + 4 * (f % 6), 4), V(V_FR + 4 * ((f + 1) % 6), 4)), last=True), fu - 1, fu - 1, fixed=True))

    def haddr(base, gam, tt, extra=0):
        o = hslot(gam)
        r = base + (tt >> 1)
        if o < 0:
            r += V_H4 - V_HA; o += 16384
        return r, o + (tt & 1) * 1024 + extra

    def hwrite(gam, tt, src):
        r, o = haddr(V_HA, gam, tt)
        return Ins("ds_write_b128 v%d, %s offset:%d" % (r, V(src, 4), o), tag='hw', wloc=('H', hslot(gam)), cid=('H', gam), nparts=4)

    for gam in range(9):
        G = GA if gam % 2 == 0 else GB
        eG = (2 * gam + 1) * 144 - 1
        eU = eG + 144
        seq = []
        for tt in range(4):
            for tile in range(2):
                g = G + (tile * 4 + tt) * 4
                t = T + 4 * tile
                for e in range(4): seq.append(Ins("v_mul_f32 v%d, v%d, v%d" % (t + e, V_C1 + tt, g + e)))
                for e in range(4): seq.append(Ins("v_exp_f32 v%d, v%d" % (t + e, t + e)))
                for e in range(4): seq.append(Ins("v_fma_f32 v%d, v%d, v%d, v%d" % (t + e, t + e, V_KK + tt, V_KK + tt)))
                for e in range(4): seq.append(Ins("v_rcp_f32 v%d, v%d" % (t + e, t + e)))
                for e in range(4): seq.append(Ins("v_mul_f32 v%d, v%d, v%d" % (g + e, t + e, g + e)))
        nA = len(seq)
        for tt in range(4):
            for tile in range(2):
                g = G + (tile * 4 + tt) * 4
                uu = U + (tile * 4 + tt) * 4
                for e in range(4): seq.append(Ins("v_mul_f32 v%d, v%d, v%d" % (uu + e, g + e, uu + e)))
            dst = G + tt * 4 if gam < 5 else HREG + ((gam - 5) * 4 + tt) * 4
            for tile in range(2):
                uu = U + (tile * 4 + tt) * 4
                seq.append(Ins("v_cvt_pk_bf16_f32 v%d, v%d, v%d" % (dst + 2 * tile, uu, uu + 1)))
                seq.append(Ins("v_cvt_pk_bf16_f32 v%d, v%d, v%d" % (dst + 2 * tile + 1, uu + 2, uu + 3)))
            if gam < 5 or gam == 8:
                seq.append(hwrite(gam, tt, dst))
        end = eU + 139 if gam < 8 else BX2 - 1
        spread(items, seq, eG + 4, end, los=[eG + 4] * nA + [eU + 4] * (len(seq) - nA))
    u8 = 17 * 18

    def hread(kap, tt, tag):
        gam, hp = divmod(kap, 2)
        r, o = haddr(V_RA, gam, tt, hp * 8192)
        return Ins("ds_read_b128 %s, v%d offset:%d" % (Breg(kap, tt), r, o), rloc=('H', hslot(gam)), cid=('H', gam), tag=tag)

    for kap in range(10):
        p = (u8 + kap) * 8 + 7
        for tt in range(4):
            items.append(Item(hread(kap, tt, 'r1'), p, bars[bx1] - 6, tgt=p + 2 * tt, stream='xch'))
    p = bars[bx1]
    for gam in range(5, 8):
        for tt in range(4):
            items.append(Item(hwrite(gam, tt, HREG + ((gam - 5) * 4 + tt) * 4), p, BX2 - 1, tgt=p + 2 + 4 * ((gam - 5) * 4 + tt), stream='xch'))
    for kap in range(10, 18):
        for tt in range(4):
            fu = NU_U * 8 + kap * 8
            items.append(Item(hread(kap, tt, 'r2'), BX2, min(fu - 4, bars[bx3] - 4), tgt=BX2 + (kap - 10) * 4 + tt, stream='xch'))
    for beta in range(9):
        acc = GB if beta % 2 == 0 else GA
        e = (NU_U + 18 * (beta + 1)) * 8 - 1
        seq = part_store(acc, U + 16 * (beta % 2), V_SA, V_SB, S_ST)
        if beta == 8:
            tail = seq
            break
        spread(items, seq, e + 4, e + 110)
    for g in (143, 143 + 288 * 4, eU8, LOOP0 - 2):
        for x in stamp_ins(): items.append(Item(x, g, g, fixed=True))
    for r in emit_regions(c, bb, items, [('s', 0, LOOP0), ('l', LOOP0, LOOPL, 3, "L_ffn_d", 18)], 'ffn'):
        c.add(r)
    c.add(tail)


STAMPS = [0]


def dump_regs(c, quads, tmp=2):
    c("s_waitcnt vmcnt(0) lgkmcnt(0)\ns_nop 7\ns_nop 7")
    c("s_lshl_b32 s3, s2, 2\ns_add_u32 s3, s3, s%d\ns_lshl_b32 s3, s3, 17\ns_add_u32 s3, s3, 0x3000000" % S_W)
    c("s_mov_b32 s40, s38\ns_mov_b32 s41, s39\ns_mov_b32 s42, 0x10000000\ns_mov_b32 s43, 0x20000")
    c("v_lshlrev_b32 v%d, 4, v%d" % (tmp, V_LANE))
    for q in quads:
        c("buffer_store_dwordx4 %s, v%d, s[40:43], s3 offen" % (q, tmp))
        c("s_add_u32 s3, s3, 1024\ns_waitcnt vmcnt(0)")
    c("s_endpgm")


def stamp_ins():
    if not OPT['stamps']: return []
    i = STAMPS[0]
    STAMPS[0] += 1
    assert i < 8
    return [Ins("s_memtime s[%d:%d]" % (4 + 4 * i, 5 + 4 * i), cost=0), Ins("s_memrealtime s[%d:%d]" % (6 + 4 * i, 7 + 4 * i), cost=0)]


def finish(c):
    if OPT['stamps']:
        c("s_waitcnt vmcnt(0)")
        c.add(stamp_ins())
        c("s_waitcnt lgkmcnt(0)")
        n = STAMPS[0]
        for i in range(n):
            c("v_mov_b32 v%d, s%d\nv_mov_b32 v%d, s%d" % (32 + 2 * i, 4 + 4 * i, 33 + 2 * i, 6 + 4 * i))
        c("s_lshl_b32 s3, s2, 7\ns_add_u32 s3, s3, 0x8001000\nv_mov_b32 v7, s3")
        c("s_mov_b32 s40, s38\ns_mov_b32 s41, s39\ns_mov_b32 s42, 0x10000000\ns_mov_b32 s43, 0x20000")
        for i in range(n):
            c("buffer_store_dwordx2 v[%d:%d], v7, s[40:43], 0 offen offset:%d" % (32 + 2 * i, 33 + 2 * i, 8 * i))
        STAMPS[0] = 0
    if OPT['stamps']:
        c("s_waitcnt vmcnt(0)")
        c("s_memrealtime s[98:99]\ns_waitcnt lgkmcnt(0)")
        c("v_mov_b32 v8, s100\nv_mov_b32 v9, s101\nv_mov_b32 v10, s98\nv_mov_b32 v11, s99")
        c("s_lshl_b32 s3, s2, 4\ns_add_u32 s3, s3, 0x8000000\nv_mov_b32 v7, s3")
        c("s_mov_b32 s12, s38\ns_mov_b32 s13, s39\ns_mov_b32 s14, 0x10000000\ns_mov_b32 s15, 0x20000")
        c("buffer_store_dwordx4 v[8:11], v7, s[12:15], 0 offen")
    c("s_endpgm")


def gen_reduce():
    c = Code()
    c("s_cmp_ge_u32 s2, 576\ns_cbranch_scc1 L_rexit")
    c("s_load_dwordx2 s[4:5], s[0:1], 0\ns_load_dwordx2 s[6:7], s[0:1], 72\ns_load_dwordx2 s[8:9], s[0:1], 88")
    c("s_mul_hi_u32 s10, s2, %d" % ((1 << 32) // 36 + 1))
    c("s_mul_i32 s11, s10, 36\ns_sub_u32 s11, s2, s11")
    c("s_lshr_b32 s12, s11, 2\ns_and_b32 s13, s11, 3")
    c("s_and_b32 s14, s13, 1\ns_lshr_b32 s15, s13, 1")
    c("s_mul_i32 s16, s10, %d\ns_lshl_b32 s17, s11, 12\ns_add_u32 s16, s16, s17" % PART_BYTES)
    c("v_lshlrev_b32 v1, 4, v0\nv_add_u32 v1, s16, v1")
    c("s_lshl_b32 s18, s10, 7\ns_lshl_b32 s19, s14, 6\ns_add_u32 s18, s18, s19")
    c("v_lshrrev_b32 v2, 6, v0\nv_lshlrev_b32 v2, 4, v2\nv_and_b32 v3, 15, v0\nv_add3_u32 v2, v2, v3, s18")
    c("v_mul_u32_u24 v2, 1152, v2")
    c("s_lshl_b32 s18, s12, 7\ns_lshl_b32 s19, s15, 6\ns_add_u32 s18, s18, s19")
    c("v_bfe_u32 v3, v0, 4, 2\nv_lshlrev_b32 v3, 3, v3\nv_add3_u32 v2, v2, v3, s18")
    c("s_waitcnt lgkmcnt(0)")
    c("s_mov_b32 s20, s8\ns_mov_b32 s21, s9\ns_mov_b32 s22, %d\ns_mov_b32 s23, 0x20000" % (256 * PART_BYTES))
    c("s_mov_b32 s24, s4\ns_mov_b32 s25, s5\ns_mov_b32 s26, %d\ns_mov_b32 s27, 0x20000" % (2048 * 1152))
    c("s_mov_b32 s28, s6\ns_mov_b32 s29, s7\ns_mov_b32 s30, %d\ns_mov_b32 s31, 0x20000" % (2048 * 1152))
    order = list(range(8, 16)) + list(range(8))
    for i, p in enumerate(order):
        c("s_mov_b32 s%d, %d" % (32 + i, p * 16 * PART_BYTES))
        c("buffer_load_dwordx4 %s, v1, s[20:23], s%d offen" % (V(16 + 4 * p, 4), 32 + i))
    c("buffer_load_dwordx2 v[4:5], v2, s[24:27], 0 offen\nbuffer_load_dwordx2 v[6:7], v2, s[24:27], 0 offen offset:32")
    c("s_mov_b32 s3, 0xffff0000")
    D, S = 80, 88
    for base, ps in ((D, range(8, 16)), (S, range(8))):
        for n, p in enumerate(ps):
            for q in range(4):
                r = 16 + 4 * p + q
                if n == 0:
                    c("v_lshlrev_b32 v%d, 16, v%d\nv_and_b32 v%d, s3, v%d" % (base + 2 * q, r, base + 2 * q + 1, r))
                else:
                    c("v_lshlrev_b32 v8, 16, v%d\nv_and_b32 v9, s3, v%d" % (r, r))
                    c("v_add_f32 v%d, v8, v%d\nv_add_f32 v%d, v9, v%d" % (base + 2 * q, base + 2 * q, base + 2 * q + 1, base + 2 * q + 1))
        if base == D:
            for e in range(8): c("v_mul_f32 v%d, %s, v%d" % (96 + e, f2h(-LOG2E), D + e))
            for e in range(8): c("v_exp_f32 v%d, v%d" % (96 + e, 96 + e))
            for e in range(8): c("v_add_f32 v%d, 1.0, v%d" % (96 + e, 96 + e))
            for e in range(8): c("v_rcp_f32 v%d, v%d" % (96 + e, 96 + e))
            for e in range(8): c("v_mul_f32 v%d, v%d, v%d" % (D + e, 96 + e, D + e))
    for q in range(4):
        c("v_lshlrev_b32 v8, 16, v%d\nv_and_b32 v9, s3, v%d" % (4 + q, 4 + q))
        c("v_fma_f32 v8, v%d, v%d, v8\nv_fma_f32 v9, v%d, v%d, v9" % (S + 2 * q, D + 2 * q, S + 2 * q + 1, D + 2 * q + 1))
        c("v_cvt_pk_bf16_f32 v%d, v8, v9" % (10 + q))
    c("buffer_store_dwordx2 v[10:11], v2, s[28:31], 0 offen\nbuffer_store_dwordx2 v[12:13], v2, s[28:31], 0 offen offset:32")
    if OPT.get('hd'):
        c("s_cmp_lg_u32 s2, 575\ns_cbranch_scc1 L_rexit")
        c("s_load_dwordx2 s[40:41], s[0:1], 80\ns_waitcnt lgkmcnt(0)")
        c("s_mov_b32 s22, 0x10000000")
        c("v_and_b32 v1, 7, v0\nv_bfe_u32 v2, v0, 3, 1\nv_lshlrev_b32 v3, 14, v2\nv_lshl_add_u32 v3, v1, 3, v3\nv_add_u32 v3, 0x8001004, v3")
        c("v_lshlrev_b32 v4, 11, v2\nv_add_u32 v4, 0x8000000, v4")
        c("buffer_load_dword v5, v3, s[20:23], 0 offen\nbuffer_load_dword v6, v4, s[20:23], 0 offen\ns_waitcnt vmcnt(0)")
        c("s_memrealtime s[46:47]\ns_waitcnt lgkmcnt(0)\nv_mov_b32 v7, s46\nv_cmp_eq_u32 vcc, 1, v1\ns_nop 1\nv_cndmask_b32 v5, v5, v7, vcc\nv_sub_u32 v5, v5, v6")
        c("s_mov_b32 s42, 64\ns_mov_b32 s43, 0x20000\nv_lshlrev_b32 v1, 2, v0")
        c("buffer_store_dword v5, v1, s[40:43], 0 offen")
    c("L_rexit:\ns_endpgm")
    return c


def kd(name, nv, ao, ns=102):
    return """.p2align 6
.amdhsa_kernel %s
  .amdhsa_next_free_vgpr %d
  .amdhsa_next_free_sgpr %d
  .amdhsa_accum_offset %d
  .amdhsa_group_segment_fixed_size 0
  .amdhsa_kernarg_size 96
  .amdhsa_user_sgpr_count 2
  .amdhsa_user_sgpr_kernarg_segment_ptr 1
  .amdhsa_system_sgpr_workgroup_id_x 1
.end_amdhsa_kernel""" % (name, nv, ns, ao)


def alias_map(regions):
    rg = dict(regions)
    for i in range(20): rg[('R', i * 8192)] = (i * 8192, i * 8192 + 8192)
    al = {}
    for a, (s0, e0) in rg.items():
        al[a] = [b for b, (s1, e1) in rg.items() if b != a and s0 < e1 and s1 < e0]
    return al


def build_all():
    import gen_attn as GA_
    GA_.G.OPT.update(OPT); gen_attn = GA_.gen_attn
    main = KNAME + "_kernel"
    out = ["; @launch kernel=%s grid=(256,1,1) block=(256,1,1) lds=163840" % main,
           "; @launch kernel=reduce_kernel grid=(576,1,1) block=(256,1,1) lds=0",
           ] + (["; @launch kernel=empty_kernel grid=(1,1,1) block=(64,1,1) lds=0"] if OPT.get('empty') else []) + [
           '.amdgcn_target "amdgcn-amd-amdhsa--gfx950"', ".text",
           ".globl %s" % main, ".p2align 8", ".type %s,@function" % main, main + ":"]
    pro = Code(); prologue_common(pro)
    pro("s_cmp_eq_u32 s%d, 0\ns_cbranch_scc0 L_ffn" % S_TY)
    att = Code(); gen_attn(att); finish(att)
    ffn = Code(); gen_ffn(ffn); finish(ffn)
    base = {('X', 0): (XBUF, 163840), ('KK', 0): (KTAB, KTAB + 512)}
    fa = dict(base)
    for o in (-16384, 0, 16384, 32768, 49152): fa[('H', o)] = (98304 + o, 98304 + o + 16384)
    aa = dict(base)
    aa[('Q', 0)] = (98304, 163840)
    aa[('FL', 0)] = (98304 - 64, 98304)
    w = 0
    for tr in att.traces: w += analyze(pro.p + tr, alias=alias_map(aa))
    w += analyze(pro.p + ffn.p, alias=alias_map(fa))
    print("attn", stats(att.p)); print("ffn", stats(ffn.p))
    assert w == 0, "LDS model warnings"
    abl = str(OPT.get('abl', ''))
    if abl:
        def filt(p, inmain=False):
            o = []
            for x in p:
                if isinstance(x, Loop):
                    x.body = filt(x.body, True); o.append(x); continue
                if x.kind == 'mfma': inmain = True
                if inmain:
                    if 'd' in abl and x.kind == 'dma': continue
                    if 'b' in abl and x.kind == 'bar':
                        x.kind = 'pseudo'
                    if 's' in abl and x.kind == 'vst' and x.meta.get('tag') == 'st': continue
                    if 'v' in abl and x.kind in ('valu', 'trans') and not x.text.startswith('v_mov') and not 'readfirst' in x.text and not 'v_or' in x.text: continue
                    if 'r' in abl and x.kind == 'dsr' and 'tr_b16' in x.text: continue
                    if 'x' in abl and 'L_redo' in str(x.meta.get('pair')): continue
                o.append(x)
            return o
        att.p = filt(att.p); ffn.p = filt(ffn.p)
    emit(pro.p, out); emit(att.p, out)
    redo = Code()
    redo("L_redo:\ns_waitcnt vmcnt(0) lgkmcnt(0)\ns_barrier\ns_mov_b32 s%d, 1" % S_MODE)
    redo("v_mbcnt_lo_u32_b32 v0, -1, 0\nv_mbcnt_hi_u32_b32 v0, -1, v0\ns_lshl_b32 s%d, s%d, 6\nv_or_b32 v0, s%d, v0\ns_branch L_restart" % (S_T, S_W, S_T))
    if OPT.get('dbg'): redo.p = [Ins("L_redo:"), Ins("s_endpgm")]
    emit(redo.p, out)
    out.append("L_slow:")
    if att.slow: emit(att.slow, out)
    else: out.append("s_endpgm")
    out.append(".p2align 6\nL_ffn:")
    emit(ffn.p, out)
    out.append("L_exit:\ns_endpgm")
    red = gen_reduce()
    analyze(red.p)
    out += [".globl reduce_kernel", ".p2align 8", ".type reduce_kernel,@function", "reduce_kernel:"]
    emit(red.p, out)
    if OPT.get('empty'):
        out += [".globl empty_kernel", ".p2align 8", ".type empty_kernel,@function", "empty_kernel:", "s_endpgm"]
    out.append('.section .rodata,"a"')
    if OPT.get('empty'): out.append(kd("empty_kernel", 8, 8, 16))
    out.append(kd(main, 512, 256))
    out.append(kd("reduce_kernel", 104, 104, 64))
    return "\n".join(out) + "\n"


if __name__ == "__main__":
    for a in sys.argv[2:]:
        k, v = a.split("=")
        OPT[k] = {'True': True, 'False': False}.get(v, v)
    t = build_all()
    open(sys.argv[1], "w").write(t)
    print("bytes", len(t))
```

```python
import sys, math
from asmlib import *

KNAME = "recurrent_scan__sliding_block_cached__swiglu_ffn__prompt"
LOG2E = 1.4426950408889634


def f2h(x):
    import struct
    return "0x%08x" % struct.unpack("<I", struct.pack("<f", x))[0]


def V(n, cnt=1):
    return "v%d" % n if cnt == 1 else "v[%d:%d]" % (n, n + cnt - 1)


def A(n, cnt=1):
    return "a%d" % n if cnt == 1 else "a[%d:%d]" % (n, n + cnt - 1)


def mfma(d, a, b, c):
    return Ins("v_mfma_f32_16x16x32_bf16 %s, %s, %s, %s" % (d, a, b, c))


OPT = dict(st="sc1", stamps=False, map=1, lead=6, cpf=True, xup=18, xsp=3)

S_X, S_W0, S_W1, S_W2, S_W3, S_P = 40, 44, 48, 52, 56, 60
S_W, S_M0B, S_OA, S_OB, S_CNT, S_ST = 64, 65, 66, 67, 68, 69
S_SL, S_J, S_RT, S_TY, S_TG, S_HH = 70, 71, 72, 73, 74, 75
S_LO, S_HI = 76, 77
S_T = 78
S_MODE, S_BAD = 88, 89
S_MK = 90


def srd(n):
    return "s[%d:%d]" % (n, n + 3)


V_LANE, V_T0 = 1, 2
V_TID = 0
V_D0, V_D1 = 4, 5
V_RD = 6
V_TMP = 24
V_FR = 32
V_TAIL = 56
V_RAW = 88
PART_BYTES = 147456


def Breg(ks, tt):
    if ks < 16:
        return A((ks * 4 + tt) * 4, 4)
    return V(V_TAIL + ((ks - 16) * 4 + tt) * 4, 4)


class Code:
    def __init__(self):
        self.p = []

    def __call__(self, text, **meta):
        for l in text.split("\n"):
            l = l.strip()
            if l:
                self.p.append(Ins(l, **meta))

    def add(self, x):
        if isinstance(x, list):
            self.p += x
        else:
            self.p.append(x)


def build_srd(c, n, lo, hi, add_sgpr=None, add_const=0, size=None, size_sub=None):
    if add_sgpr is not None:
        c("s_add_u32 s%d, s%d, s%d\ns_addc_u32 s%d, s%d, 0" % (n, lo, add_sgpr, n + 1, hi))
    else:
        c("s_mov_b32 s%d, s%d\ns_mov_b32 s%d, s%d" % (n, lo, n + 1, hi))
    if add_const > 0:
        c("s_add_u32 s%d, s%d, %d\ns_addc_u32 s%d, s%d, 0" % (n, n, add_const, n + 1, n + 1))
    elif add_const < 0:
        c("s_sub_u32 s%d, s%d, %d\ns_subb_u32 s%d, s%d, 0" % (n, n, -add_const, n + 1, n + 1))
    if size_sub is not None:
        c("s_sub_u32 s%d, %d, s%d" % (n + 2, size, size_sub))
    else:
        c("s_mov_b32 s%d, %d" % (n + 2, size))
    c("s_mov_b32 s%d, 0x20000" % (n + 3))


def unit_voff(c, dst, rs, corder, t0=V_TMP):
    rho, pos, h, row = t0, t0 + 1, t0 + 2, t0 + 3
    c("v_lshrrev_b32 v%d, 3, v%d" % (rho, V_LANE))
    c("v_and_b32 v%d, 7, v%d" % (pos, V_LANE))
    c("v_bfe_u32 v%d, v%d, 1, 1" % (h, rho))
    c("s_and_b32 s%d, s%d, 1\ns_lshl_b32 s%d, s%d, 1" % (S_T, S_W, S_T, S_T))
    c("v_or_b32 v%d, s%d, v%d" % (h, S_T, h))
    c("v_lshlrev_b32 v%d, 1, v%d" % (h, h))
    c("v_xor_b32 v%d, v%d, v%d" % (pos, pos, h))
    if not corder:
        c("s_lshl_b32 s%d, s%d, 3" % (S_T, S_W))
        c("v_add_u32 v%d, s%d, v%d" % (row, S_T, rho))
    else:
        c("s_lshl_b32 s%d, s%d, 2" % (S_T, S_W))
        c("v_and_b32 v%d, 3, v%d" % (row, rho))
        c("v_add_u32 v%d, s%d, v%d" % (row, S_T, row))
        c("v_lshrrev_b32 v%d, 2, v%d" % (rho, rho))
        c("v_lshl_add_u32 v%d, v%d, 4, v%d" % (row, rho, row))
    c("v_mul_u32_u24 v%d, %d, v%d" % (row, rs, row))
    c("v_lshl_add_u32 v%d, v%d, 4, v%d" % (dst, pos, row))


def reader_addr(c, dst, t0=V_TMP):
    g, r4, h = t0, t0 + 1, t0 + 2
    c("v_lshrrev_b32 v%d, 4, v%d" % (g, V_LANE))
    c("v_bfe_u32 v%d, v%d, 2, 2" % (r4, V_LANE))
    c("v_lshrrev_b32 v%d, 1, v%d" % (h, r4))
    c("v_and_b32 v%d, 1, v%d" % (dst, g))
    c("v_lshl_or_b32 v%d, v%d, 1, v%d" % (h, dst, h))
    c("v_lshlrev_b32 v%d, 11, v%d" % (dst, g))
    c("v_lshl_or_b32 v%d, v%d, 7, v%d" % (dst, r4, dst))
    c("v_lshl_or_b32 v%d, v%d, 5, v%d" % (dst, h, dst))
    c("v_and_b32 v%d, 3, v%d" % (g, V_LANE))
    c("v_lshl_or_b32 v%d, v%d, 3, v%d" % (dst, g, dst))


V_XO = 52


def xloads(t):
    return [[Ins("s_add_u32 m0, s%d, %d" % (S_MK + 4, t * 36864 + kb * (1024 - 128)), hoist=True),
             Ins("buffer_load_dwordx4 v%d, %s, s%d offen offset:%d lds" % (V_XO, srd(S_X), S_MK + t, kb * 128),
                 wloc=('X', t), cid=('X', t), nparts=9)] for kb in range(9)]


def weave(c, start, extra):
    body = c.p[start:]
    del c.p[start:]
    n = len(extra)
    k = 0
    for i, x in enumerate(body):
        while k < n and k * len(body) <= i * n:
            c.p += extra[k]; k += 1
        c.p.append(x)
    for e in extra[k:]: c.p += e


def weave_safe(c, start, extra):
    body = c.p[start:]
    del c.p[start:]
    n = len(extra)
    k = 0
    for i, x in enumerate(body):
        if ('x', 'scc') not in x.rd:
            while k < n and k * len(body) <= i * n:
                c.p += extra[k]; k += 1
        c.p.append(x)
    for e in extra[k:]: c.p += e


def prologue_common(c):
    c("s_cmp_lt_u32 s2, 256\ns_cbranch_scc1 L_go\ns_endpgm\nL_go:")
    c("s_mov_b32 s%d, 0" % S_MODE)
    c("L_restart:")
    c("s_load_dwordx16 s[16:31], s[0:1], 0\ns_load_dwordx8 s[32:39], s[0:1], 64")
    if OPT['stamps']:
        c("s_memrealtime s[100:101]")
    c("v_and_b32 v%d, 63, v%d\nv_lshrrev_b32 v2, 6, v%d" % (V_LANE, V_TID, V_TID))
    c("v_readfirstlane_b32 s%d, v2" % S_W)
    m = int(OPT['map'])
    c("s_and_b32 s%d, s2, 7\ns_lshr_b32 s%d, s2, 3" % (S_T, S_J))
    c("s_lshr_b32 s%d, s%d, 4\ns_and_b32 s%d, s%d, 15" % (S_TY, S_J, S_J, S_J))
    if m == 0:
        c("s_mov_b32 s%d, s%d\ns_mov_b32 s%d, s%d" % (S_SL, S_T, S_RT, S_J))
    else:
        c("s_andn2_b32 s%d, s%d, %d\ns_and_b32 s%d, s%d, %d\ns_or_b32 s%d, s%d, s%d" % (S_SL, S_T, (1 << m) - 1, S_T + 1, S_J, (1 << m) - 1, S_SL, S_SL, S_T + 1))
        c("s_and_b32 s%d, s%d, %d\ns_lshl_b32 s%d, s%d, %d\ns_lshr_b32 s%d, s%d, %d\ns_or_b32 s%d, s%d, s%d" %
          (S_T, S_T, (1 << m) - 1, S_T, S_T, 4 - m, S_RT, S_J, m, S_RT, S_RT, S_T))
    c("s_and_b32 s%d, s%d, 1\ns_lshr_b32 s%d, s%d, 1\ns_lshl_b32 s%d, s%d, 11" % (S_TG, S_W, S_HH, S_W, S_M0B, S_W))
    c("s_lshl_b32 s%d, s%d, 4\ns_lshl_b32 s%d, s%d, 3\ns_add_u32 s%d, s%d, s%d\ns_add_u32 s%d, s%d, s%d" %
      (S_T, S_RT, S_T + 1, S_TG, S_T, S_T, S_T + 1, S_T, S_T, S_HH))
    c("s_mul_i32 s%d, s%d, %d" % (S_MK, S_T, 8 * 1152))
    for t in range(1, 4):
        c("s_add_u32 s%d, s%d, %d" % (S_MK + t, S_MK, t * 16 * 1152))
    c("s_mul_i32 s%d, s%d, 9216\ns_add_u32 s%d, s%d, %d" % (S_MK + 4, S_W, S_MK + 4, S_MK + 4, XBUF))
    c("v_lshrrev_b32 v2, 3, v%d\nv_and_b32 v3, 6, v2\nv_xor_b32 v3, v3, v%d\nv_and_b32 v3, 7, v3" % (V_LANE, V_LANE))
    c("v_mul_u32_u24 v2, 1152, v2\nv_lshl_add_u32 v%d, v3, 4, v2" % V_XO)
    if OPT['cpf']:
        c("s_getpc_b64 s[84:85]")
        c("L_pc:")
        c("s_mul_i32 s%d, s%d, L_ffn - L_pc\ns_add_u32 s84, s84, s%d\ns_addc_u32 s85, s85, 0" % (S_T, S_TY, S_T))
        c("s_lshl_b32 s%d, s%d, 2\ns_add_u32 s%d, s%d, s%d\ns_and_b32 s%d, s%d, %d" % (S_T, S_J, S_T, S_T, S_W, S_T, S_T, 63))
        c("v_lshlrev_b32 v3, 13, v%d\ns_lshl_b32 s%d, s%d, 7\nv_add_u32 v3, s%d, v3" % (V_LANE, S_T, S_T, S_T))
        c("s_mov_b32 s86, %d\ns_mov_b32 s87, 0x20000" % 73728)
        c("buffer_load_dword v53, v3, s[84:87], 0 offen")
    c("s_waitcnt lgkmcnt(0)")
    build_srd(c, S_X, 16, 17, size=2048 * 1152)
    for g in xloads(0): c.add(g)
    c("s_lshl_b32 s%d, s%d, 3\ns_add_u32 s%d, s%d, s%d\ns_lshl_b32 s%d, s%d, 4\ns_add_u32 s%d, s%d, s%d" %
      (S_T, S_TY, S_T, S_T, S_SL, S_T, S_T, S_T, S_T, S_RT))
    c("s_mul_i32 s%d, s%d, %d" % (S_T, S_T, PART_BYTES))
    build_srd(c, S_P, 38, 39, add_sgpr=S_T, size=PART_BYTES)


V_KK = 20
XBUF = 16384
NPRE = 10
V_GRAM = 232


def layernorm(c, first_tags, setup, pre):
    T = V_TMP
    XR, ONE, SEL, SUM, NMU, DT = 88, 92, 96, 104, 112, 120
    st = len(c.p)
    c.add(setup)
    for i in range(4): c("v_mov_b32 v%d, 0x3f803f80" % (ONE + i))
    c("v_and_b32 v%d, 7, v%d\nv_bfe_u32 v%d, v%d, 3, 1\nv_lshrrev_b32 v%d, 4, v%d" % (T, V_LANE, T + 1, V_LANE, T + 2, V_LANE))
    c("v_mul_u32_u24 v%d, 18432, v%d\nv_lshl_add_u32 v%d, v%d, 7, v%d" % (T + 1, T + 1, T + 1, T, T + 1))
    c("v_and_b32 v%d, 6, v%d\nv_xor_b32 v%d, v%d, v%d\nv_lshl_add_u32 v%d, v%d, 4, v%d" % (T, T, T, T, T + 2, T + 1, T, T + 1))
    c("s_mul_i32 s%d, s%d, 9216\ns_add_u32 s%d, s%d, %d" % (S_T, S_TG, S_T, S_T, XBUF))
    c("v_add_u32 v%d, s%d, v%d\nv_xor_b32 v%d, 64, v%d" % (XR, S_T, T + 1, XR + 1, XR))
    c("v_add_u32 v%d, %d, v%d\nv_add_u32 v%d, %d, v%d" % (XR + 2, 73728, XR, XR + 3, 73728, XR + 1))
    c("v_bfe_u32 v%d, v%d, 2, 2\nv_cmp_eq_u32 s[%d:%d], v%d, v%d" % (T, V_LANE, S_MK + 6, S_MK + 7, T, T + 2))
    c("v_and_b32 v%d, 1, v%d\nv_lshlrev_b32 v%d, 4, v%d\nv_mov_b32 v%d, 0x3f80\nv_lshlrev_b32 v%d, v%d, v%d" % (T, V_LANE, T, T, T + 1, T + 1, T, T + 1))
    c("v_cndmask_b32 v%d, 0, v%d, s[%d:%d]" % (T + 1, T + 1, S_MK + 6, S_MK + 7))
    c("v_and_b32 v%d, 2, v%d\nv_cmp_eq_u32 vcc, 0, v%d" % (T, V_LANE, T))
    c("v_cndmask_b32 v%d, 0, v%d, vcc\nv_cndmask_b32 v%d, v%d, 0, vcc" % (SEL + 2, T + 1, SEL + 3, T + 1))
    for i in (0, 1, 4, 5): c("v_mov_b32 v%d, 0" % (SEL + i))
    nup = int(OPT['xup'])
    rest = xloads(1) + xloads(2) + xloads(3)
    weave_safe(c, st, rest[:nup])
    c.add(stamp_ins('ln'))
    bb, items = [], []
    spos, cpos = {}, {}

    def S(t, ks):
        spos[(t, ks)] = len(bb)
        d = V(SUM + 4 * (t & 1), 4)
        bb.append(mfma(d, V(ONE, 4), Breg(ks, t), d if ks else "0"))

    def Gm(t, ks):
        d = V(V_GRAM + 4 * t, 4)
        bb.append(mfma(d, Breg(ks, t), Breg(ks, t), d if ks else "0"))

    def C(t, ks, h):
        if h: cpos[(t, ks)] = len(bb)
        bb.append(mfma(V(DT + 8 * ((t * 18 + ks) % 4) + 4 * h, 4), V(SEL + 2 - 2 * h, 4), Breg(ks, t), V(NMU + 4 * (t & 1), 4)))

    for ks in range(18): S(0, ks)
    for ks in range(18): Gm(0, ks)
    ph = {}
    for t in range(4):
        ph[t] = len(bb)
        if t < 3:
            for ks in range(18):
                C(t, ks, 0); S(t + 1, ks) if ks < 14 else None
                C(t, ks, 1); Gm(t + 1, ks)
                if 10 <= ks < 14: S(t + 1, ks + 4)
        else:
            for ks in range(18):
                C(t, ks, 0); C(t, ks, 1)
    N = len(bb)
    bar = {0: -1, 1: ph[0] - 22, 2: ph[1] - 22, 3: ph[2] - 22}
    for t in range(4):
        tags = {('X', t)} | (first_tags if t == 3 else set())
        items.append(Item(Ins("s_barrier", vm_tags=tags, ds_tags={'xr'}, cost=2), bar[t], bar[t], fixed=True))
        for ks in range(18):
            items.append(Item(Ins("ds_read_b128 %s, v%d offset:%d" % (Breg(ks, t), XR + 2 * (t >> 1) + (ks & 1), (t & 1) * 36864 + (ks >> 1) * 1024),
                                  rloc=('X', t), cid=('X', t), tag='xr'), bar[t], max(bar[t], spos[(t, ks)] - 5), tgt=bar[t] + (ks if t else 0), stream='xr'))
        p = spos[(t, 17)] + 4
        for i in range(4):
            items.append(Item(Ins("v_mul_f32 v%d, %s, v%d" % (NMU + 4 * (t & 1) + i, f2h(-1.0 / 576), SUM + 4 * (t & 1) + i)), p, ph[t] - 2, stream='mu'))
        items.append(Item(Ins("v_mov_b32 v%d, v%d" % (V_KK + t, NMU + 4 * (t & 1))), p, ph[t] + 30, stream='mu'))
        for ks in range(18):
            d = DT + 8 * ((t * 18 + ks) % 4)
            n = t * 18 + ks + 4
            dl = (cpos[divmod(n, 18)] - 2 - (n % 18 < 14 and n < 54)) if n < 72 else N - 1
            p = cpos[(t, ks)] + 3
            if ks < 16:
                seq = ["v_cvt_pk_bf16_f32 v%d, v%d, v%d" % (d + 2 * i, d + 2 * i, d + 2 * i + 1) for i in range(4)]
                seq += ["v_accvgpr_write_b32 a%d, v%d" % ((ks * 4 + t) * 4 + i, d + 2 * i) for i in range(4)]
            else:
                seq = ["v_cvt_pk_bf16_f32 v%d, v%d, v%d" % (V_TAIL + ((ks - 16) * 4 + t) * 4 + i, d + 2 * i, d + 2 * i + 1) for i in range(4)]
            for x in seq: items.append(Item(Ins(x), min(p, N - 1), dl, stream='valu'))
    grp = []
    for x in pre:
        if grp and grp[-1][-1].kind != 'dma': grp[-1].append(x)
        else: grp.append([x])
    p = 0
    for g in rest[nup:] + grp[:4]:
        for x in g: items.append(Item(x, -1, bar[2] - 1, tgt=p, stream='dma'))
        p += int(OPT['xsp'])
    for k, g in enumerate(grp[4:]):
        b = bar[1] if k < 8 else bar[2]
        p = max(p, b + 2)
        for x in g: items.append(Item(x, b, N - 1, tgt=p, stream='dma'))
        p += 6
    if OPT.get('touch'):
        items.append(Item(Ins("v_lshlrev_b32 v53, 12, v%d" % V_LANE), bar[3], N - 1, tgt=bar[3] + 4, stream='tch'))
        items.append(Item(Ins("buffer_load_dword v53, v53, %s, 0 offen" % srd(S_P)), bar[3], N - 1, tgt=bar[3] + 6, stream='tch'))
    for g in (ph[0] - 1, ph[1] - 1, ph[2] - 1, ph[3] - 1):
        for x in stamp_ins('ln'): items.append(Item(x, g, g, fixed=True))
    c.add(schedule(bb, items, 0, N, verbose=True, name='layernorm'))
    c.add(stamp_ins('ln'))


def kk_items(items, lo, hi, tmp):
    seq = ["v_and_b32 v%d, 3, v%d" % (tmp, V_LANE)]
    seq += ["v_cmp_eq_u32 s[%d:%d], %d, v%d" % (S_MK + 2 * i - 2, S_MK + 2 * i - 1, i, tmp) for i in range(1, 4)]
    for t in range(4):
        g = V_GRAM + 4 * t
        seq += ["v_cndmask_b32 v%d, v%d, v%d, s[%d:%d]" % (g, g, g + i, S_MK + 2 * i - 2, S_MK + 2 * i - 1) for i in range(1, 4)]
        seq += ["v_cndmask_b32 v%d, 0, v%d, s[%d:%d]" % (g, g, S_MK + 6, S_MK + 7)]
    for sw in ("v_permlane32_swap_b32", "v_permlane16_swap_b32"):
        seq += ["v_mov_b32 v%d, v%d" % (V_GRAM + 4 * t + 1, V_GRAM + 4 * t) for t in range(4)]
        seq += ["%s v%d, v%d" % (sw, V_GRAM + 4 * t, V_GRAM + 4 * t + 1) for t in range(4)]
        seq += ["v_add_f32 v%d, v%d, v%d" % (V_GRAM + 4 * t, V_GRAM + 4 * t, V_GRAM + 4 * t + 1) for t in range(4)]
    for t in range(4):
        g = V_GRAM + 4 * t
        seq += ["v_mul_f32 v%d, %s, v%d" % (g, f2h(1.0 / 576), g), "v_fma_f32 v%d, -v%d, v%d, v%d" % (g, V_KK + t, V_KK + t, g)]
    seq += ["v_max_f32 v%d, 0, v%d" % (V_GRAM + 4 * t, V_GRAM + 4 * t) for t in range(4)]
    seq += ["v_add_f32 v%d, %s, v%d" % (V_KK + t, f2h(1e-5), V_GRAM + 4 * t) for t in range(4)]
    spread(items, [Ins(x) for x in seq], lo, hi, stream='misc')


class Ring:
    def __init__(self, bars):
        self.bars = bars
        self.free = {}
        self.until = {}
        self.jobs = []
        self.need = {}
        self.loc = {}

    def bar_after(self, pos):
        for i, p in enumerate(self.bars):
            if p > pos: return i
        return len(self.bars)

    def bar_before(self, pos):
        r = -1
        for i, p in enumerate(self.bars):
            if p <= pos: r = i
        return r

    def add(self, q, need, done, make, loc=None):
        self.jobs.append(dict(q=q, need=need, done=done, make=make, loc=loc))
        self.need.setdefault(need, set()).add(('G', q))

    def pick(self, job, w):
        if job['loc'] is not None:
            return job['loc'] if self.free.get(job['loc'], -1) <= w else None
        rel = self.bar_after(job['done'])
        c = [l for l in self.pool if self.free.get(l, -1) <= w and rel <= self.until.get(l, 1 << 30)]
        if not c: return None
        return min(c, key=lambda l: (self.until.get(l, 1 << 30), self.free.get(l, -1), l))

    def plan(self, items, npre, nmax, lead, last_pos, frac=1.0):
        pre = []
        k = 0
        for job in self.jobs[:npre]:
            l = self.pick(job, -1)
            assert l is not None
            self.loc[job['q']] = l; self.free[l] = self.bar_after(job['done'])
            pre += job['make'](l)
            k += 1
        for w in range(len(self.bars)):
            p0 = self.bars[w]
            p1 = self.bars[w + 1] if w + 1 < len(self.bars) else last_pos
            sel = []
            while k < len(self.jobs) and len(sel) < nmax(w):
                job = self.jobs[k]
                if job['need'] - w > lead(w): break
                l = self.pick(job, w)
                if l is None: break
                assert job['need'] > w, ("job late", job['q'], w)
                self.loc[job['q']] = l; self.free[l] = self.bar_after(job['done'])
                sel.append((job, l)); k += 1
            if not sel: continue
            wd = (p1 - p0 - 1) * frac / len(sel)
            for i, (job, l) in enumerate(sel):
                ins = job['make'](l)
                t0 = p0 + 1 + int(i * wd)
                n = len(ins)
                for jx, x in enumerate(ins):
                    tg = t0 + (int(wd / 2) + 1 if jx == n - 1 else max(0, jx - (n - 4)) if jx < n - 2 else 1)
                    items.append(Item(x, p0, p1 - 1, tgt=tg, stream='dma'))
            if k < len(self.jobs): assert self.jobs[k]['need'] > w + 1 or True
        self.left = len(self.jobs) - k
        return pre


def dma_job(q, loc, srdn, soff_ins, vd0=V_D0, vd1=V_D1, cstep=0, soff=S_OA):
    meta = dict(wloc=('R', loc), cid=('G', q), nparts=2)
    if cstep: meta['cstep'] = cstep
    out = []
    if soff_ins: out.append(Ins(soff_ins))
    out.append(Ins("s_add_u32 m0, s%d, %d" % (S_M0B, loc), hoist=True))
    out.append(Ins("buffer_load_dwordx4 v%d, %s, s%d offen lds" % (vd0, srd(srdn), soff), **meta))
    out.append(Ins("buffer_load_dwordx4 v%d, %s, s%d offen offset:1024 lds" % (vd1, srd(srdn), soff), **meta))
    return out


def frag_items(items, f, first_use, slot_free, bar_pos, dst, areg, imm, loc, q, cstep=0, junk=False, lead=17, stream='fr'):
    meta = dict(rloc=('R', loc), cid=('G', q))
    if cstep: meta['cstep'] = cstep
    if junk: meta['junk_ok'] = True
    lo = max(slot_free, bar_pos)
    k = dst[0]
    n = dst[1]
    for h in range(2):
        reg = (V if k == 'v' else A)(n + 2 * h, 2)
        items.append(Item(Ins("ds_read_b64_tr_b16 %s, v%d offset:%d" % (reg, areg, imm + 512 * h), **meta),
                          lo, max(lo, first_use - 6), tgt=first_use - lead + 2 * h, stream=stream))


def part_store(acc, pk, va, soff):
    out = []
    for tt in range(4):
        p = pk + 4 * tt
        for tile in range(2):
            a = acc + (tile * 4 + tt) * 4
            out.append(Ins("v_cvt_pk_bf16_f32 v%d, v%d, v%d" % (p + 2 * tile, a, a + 1)))
            out.append(Ins("v_cvt_pk_bf16_f32 v%d, v%d, v%d" % (p + 2 * tile + 1, a + 2, a + 3)))
        out.append(Ins("buffer_store_dwordx4 %s, v%d, %s, s%d offen offset:%d %s" %
                       (V(p, 4), va, srd(S_P), soff, tt * 1024, OPT['st']), tag='st'))
    out.append(Ins("s_add_u32 s%d, s%d, 16384" % (soff, soff)))
    return out


def split_regions(items, bounds):
    regs = [[] for _ in range(len(bounds) - 1)]
    for it in items:
        g = min(max(it.tgt, it.lo), it.hi)
        g = max(g, bounds[0])
        for i in range(len(bounds) - 1):
            if bounds[i] <= g < bounds[i + 1] or (i == len(bounds) - 2 and g >= bounds[i + 1]):
                regs[i].append(it)
                break
    return regs


def clip_items(items, g0, g1):
    out = []
    for it in items:
        lo = max(it.lo, g0); hi = min(it.hi, g1 - 1)
        n = Item(it.ins, lo, max(lo, hi), tgt=it.tgt, stream=it.stream, fixed=it.fixed)
        out.append(n)
    return out


def set_cstep(items, st):
    for it in items:
        if it.ins.meta.get('cid') is not None or it.ins.meta.get('vm_tags') is not None:
            it.ins.meta['cstep'] = st


def same_period(a, b, shift):
    ka = [(i.ins.text, i.tgt, i.stream) for i in a]
    kb = [(i.ins.text, i.tgt - shift, i.stream) for i in b]
    if sorted(ka) != sorted(kb):
        sa, sb = set(ka), set(kb)
        print("only in first:", sorted(sa - sb)[:12]); print("only in other:", sorted(sb - sa)[:12])
        return False
    return True


def emit_regions(c, bb, items, plan, name):
    bounds = []
    for r in plan:
        if r[0] == 's': bounds.append(r[1])
        else: bounds += [r[1] + r[2] * k for k in range(r[3])]
    last = plan[-1]
    bounds.append(last[2] if last[0] == 's' else last[1] + last[2] * last[3])
    items = [it for it in items if min(max(it.tgt, it.lo), it.hi) < bounds[-1]]
    regs = split_regions(items, bounds)
    k = 0
    out = []
    first = True
    for r in plan:
        if r[0] == 's':
            its = regs[k]
            if first: its = [Item(it.ins, it.lo, min(it.hi, r[2] - 1), it.tgt, it.stream, it.fixed) for it in its]
            else: its = clip_items(its, r[1], r[2])
            out.append(schedule(bb, its, r[1], r[2], verbose=True, name=name + ' straight'))
            k += 1
        else:
            _, g0, ln, cnt, label, cstep = r
            for x in range(1, cnt):
                assert same_period(regs[k], regs[k + x], ln * x), "%s loop %s not periodic (%d)" % (name, label, x)
            set_cstep(regs[k], cstep)
            body = schedule(bb, clip_items(regs[k], g0, g0 + ln), g0, g0 + ln, verbose=True, name=name + ' loop')
            body += [Ins("s_sub_u32 s%d, s%d, 1" % (S_CNT, S_CNT)), Ins("s_cbranch_scc0 " + label)]
            out.append([Ins("s_mov_b32 s%d, %d" % (S_CNT, cnt - 1)), Ins(".p2align 3"), Loop(label, cnt, body)])
            k += cnt
        first = False
    return out


def spread(items, seq, lo, end, stream='valu', los=None, his=None):
    tot = sum(x.cost for x in seq)
    a = 0
    for i, x in enumerate(seq):
        l = lo if los is None else max(lo, los[i])
        h = end if his is None else min(end, his[i])
        tg = lo + int(a * (end - lo) / tot)
        a += x.cost
        items.append(Item(x, l, max(l, h), tgt=min(max(tg, l), max(l, h)), stream=stream))


def gen_ffn(c):
    V_HA, V_RA = 12, 13
    V_C1 = 16
    GA, GB, U, HREG = 88, 120, 152, 184
    V_SA = 248
    V_DD0, V_DD1 = 250, 251
    V_H4 = 14
    HB = 98304
    T = V_TMP
    NU_U = 324
    NU = NU_U + 9 * 18
    NUV = NU + 40
    NM = NU * 8
    LOOP0 = (NU_U + 3 * 18) * 8
    LOOPL = 36 * 8
    eU8 = NU_U * 8 - 1
    BX2 = eU8 + 62
    bars = sorted([32 * s + 13 for s in range(NUV // 4)] + [BX2])
    R = Ring(bars)
    R.pool = [i * 8192 for i in range(20)]
    for i in range(15, 20): R.free[i * 8192] = 0
    bx1 = R.bar_after(eU8 - 41)
    bx2 = bars.index(BX2)
    bx3 = R.bar_after(BX2 + 39)

    def hslot(gam):
        sl = gam if gam < 5 else gam - 5
        return (3 - sl) * 16384

    for gam in range(5):
        for h in range(2):
            R.until[HB + hslot(gam) + 8192 * h] = R.bar_before((2 * gam + 2) * 144 + 3)

    def mk_u(q):
        hg, kp = divmod(q, 9)
        gam, isu = divmod(hg, 2)
        return lambda loc: dma_job(q, loc, S_W1 if isu else S_W0, "s_mov_b32 s%d, %d" % (S_OA, kp * 64 * 9216 + gam * 128))

    def mk_d(q):
        dq = q - 162
        if dq == 0: so = "s_mov_b32 s%d, 0" % S_OA
        elif dq % 9 == 0: so = "s_sub_u32 s%d, s%d, %d" % (S_OA, S_OA, 8 * 73728 - 128)
        else: so = "s_add_u32 s%d, s%d, 73728" % (S_OA, S_OA)
        return lambda loc: dma_job(q, loc, S_W2, so, V_DD0, V_DD1)

    for q in range(NUV // 2 - 4):
        need = bars.index(32 * (q // 2 - 1) + 13) if q >= 2 else -1
        R.add(q, need, 16 * q + 15, mk_u(q) if q < 162 else mk_d(q), loc=q * 8192 if q < NPRE else None)
    items = []
    orig_pick = R.pick

    def pick(job, w):
        if w >= bx1:
            for h in range(2):
                l = HB + hslot(4) + 8192 * h
                if R.until.pop(l, None) is not None: R.free[l] = bx1
        if w >= bx3:
            for gam in range(1, 4):
                for h in range(2):
                    l = HB + hslot(gam) + 8192 * h
                    if R.until.pop(l, None) is not None: R.free[l] = bx3
        return orig_pick(job, w)
    R.pick = pick
    pre = R.plan(items, NPRE, lambda w: 2 if bars[w] >= LOOP0 - 32 else 3, lambda w: int(OPT['lead']), NUV * 8)

    c("s_mul_i32 s%d, s%d, 1152" % (S_T + 2, S_SL))
    build_srd(c, S_W0, 28, 29, add_sgpr=S_T + 2, size=576 * 9216, size_sub=S_T + 2)
    build_srd(c, S_W1, 30, 31, add_sgpr=S_T + 2, size=576 * 9216, size_sub=S_T + 2)
    c("s_mul_i32 s%d, s%d, %d" % (S_T + 2, S_SL, 576 * 1152))
    build_srd(c, S_W2, 32, 33, add_sgpr=S_T + 2, size=576 * 1152)
    unit_voff(c, V_D0, 9216, False)
    c("v_add_u32 v%d, %d, v%d" % (V_D1, 32 * 9216 - 1024, V_D0))
    main = c
    c = Code()
    unit_voff(c, V_DD0, 1152, True)
    c("v_add_u32 v%d, %d, v%d" % (V_DD1, 32 * 1152 - 1024, V_DD0))
    reader_addr(c, V_RD)
    c("s_lshl_b32 s%d, s%d, 6" % (S_T, S_HH))
    c("v_xor_b32 v%d, s%d, v%d" % (V_RD, S_T, V_RD))
    c("v_xor_b32 v%d, 32, v%d" % (V_RD + 1, V_RD))
    for s in (1, 2):
        for t in range(2):
            c("v_add_u32 v%d, 0x%x, v%d" % (V_RD + 2 * s + t, 65536 * s, V_RD + t))
    c("s_lshl_b32 s%d, s%d, 12\ns_add_u32 s%d, s%d, %d" % (S_T, S_TG, S_T, S_T, HB))
    c("v_lshlrev_b32 v%d, 4, v%d\nv_add_u32 v%d, s%d, v%d" % (V_RA, V_LANE, V_RA, S_T, V_RA))
    c("s_lshl_b32 s%d, s%d, 13" % (S_T, S_HH))
    c("v_add_u32 v%d, s%d, v%d" % (V_HA, S_T, V_RA))
    for i in range(2):
        c("v_subrev_u32 v%d, 16384, v%d" % (V_H4 + i, V_HA + i))
    c("v_subrev_u32 v%d, %d, v%d" % (V_SA, HB, V_HA))
    c("s_mov_b32 s%d, 0" % S_ST)
    setup = c.p
    c = main
    c.add(stamp_ins())
    layernorm(c, {('G', 0), ('G', 1)}, setup, pre)
    c.add(stamp_ins())
    seq = [Ins("v_rsq_f32 v%d, v%d" % (V_C1 + tt, V_KK + tt)) for tt in range(4)]
    seq += [Ins("v_mul_f32 v%d, %s, v%d" % (V_C1 + tt, f2h(-LOG2E), V_C1 + tt)) for tt in range(4)]
    kk_items(items, 6, 90, V_TMP)
    spread(items, seq, 92, 130, stream='misc')

    bb = []
    for u in range(NUV):
        if u < NU_U:
            hg, ks = divmod(u, 18)
            gam, isu = divmod(hg, 2)
            acc = U if isu else (GA if gam % 2 == 0 else GB)
        else:
            beta, ks = divmod(u - NU_U, 18)
            acc = GB if beta % 2 == 0 else GA
        for tile in range(2):
            fr = V(V_FR + 4 * ((2 * u + tile) % 6), 4)
            for tt in range(4):
                d = V(acc + (tile * 4 + tt) * 4, 4)
                bb.append(mfma(d, fr, Breg(ks, tt), d if ks else "0"))
    for i, p in enumerate(bars):
        tags = {'hw'}
        if i == 0: tags.add('xr')
        if i == bx1: tags.add('r1')
        if i == bx3: tags.add('r2')
        items.append(Item(Ins("s_barrier", vm_tags=R.need.get(i, set()), ds_tags=tags, cost=2), p, p, fixed=True))
    for f in range(2 * (NU + 4)):
        u, tile = divmod(f, 2)
        q = u >> 1
        loc = R.loc[q]
        fu = 4 * f
        bp = 32 * (u // 4 - 1) + 13 if u >= 4 else -1
        frag_items(items, f, fu, fu - 21, bp, ('v', V_FR + 4 * (f % 6)), V_RD + 2 * (loc >> 16) + tile, (loc & 65535) + (u & 1) * 1024,
                   loc, q, junk=(u >= NU))
        if f % 2 == 0 and fu <= NM:
            items.append(Item(Ins("WAIT %s, %s" % (V(V_FR + 4 * (f % 6), 4), V(V_FR + 4 * ((f + 1) % 6), 4)), last=True), fu - 1, fu - 1, fixed=True))

    def haddr(base, gam, tt, extra=0):
        o = hslot(gam)
        r = base
        if o < 0:
            r += V_H4 - V_HA; o += 16384
        return r, o + tt * 1024 + extra

    def hwrite(gam, tt, src):
        r, o = haddr(V_HA, gam, tt)
        return Ins("ds_write_b128 v%d, %s offset:%d" % (r, V(src, 4), o), tag='hw', wloc=('H', hslot(gam)), cid=('H', gam), nparts=4)

    for gam in range(9):
        G = GA if gam % 2 == 0 else GB
        eG = (2 * gam + 1) * 144 - 1
        eU = eG + 144
        seq = []
        for tt in range(4):
            for tile in range(2):
                g = G + (tile * 4 + tt) * 4
                t = T + 4 * tile
                for e in range(4): seq.append(Ins("v_mul_f32 v%d, v%d, v%d" % (t + e, V_C1 + tt, g + e)))
                for e in range(4): seq.append(Ins("v_exp_f32 v%d, v%d" % (t + e, t + e)))
                for e in range(4): seq.append(Ins("v_fma_f32 v%d, v%d, v%d, v%d" % (t + e, t + e, V_KK + tt, V_KK + tt)))
                for e in range(4): seq.append(Ins("v_rcp_f32 v%d, v%d" % (t + e, t + e)))
                for e in range(4): seq.append(Ins("v_mul_f32 v%d, v%d, v%d" % (g + e, t + e, g + e)))
        nA = len(seq)
        for tt in range(4):
            for tile in range(2):
                g = G + (tile * 4 + tt) * 4
                uu = U + (tile * 4 + tt) * 4
                for e in range(4): seq.append(Ins("v_mul_f32 v%d, v%d, v%d" % (uu + e, g + e, uu + e)))
            dst = G + tt * 4 if gam < 5 else HREG + ((gam - 5) * 4 + tt) * 4
            for tile in range(2):
                uu = U + (tile * 4 + tt) * 4
                seq.append(Ins("v_cvt_pk_bf16_f32 v%d, v%d, v%d" % (dst + 2 * tile, uu, uu + 1)))
                seq.append(Ins("v_cvt_pk_bf16_f32 v%d, v%d, v%d" % (dst + 2 * tile + 1, uu + 2, uu + 3)))
            if gam < 5 or gam == 8:
                seq.append(hwrite(gam, tt, dst))
        end = eU + 139 if gam < 8 else BX2 - 1
        spread(items, seq, eG + 4, end, los=[eG + 4] * nA + [eU + 4] * (len(seq) - nA))
    u8 = 17 * 18

    def hread(kap, tt, tag):
        gam, hp = divmod(kap, 2)
        r, o = haddr(V_RA, gam, tt, hp * 8192)
        return Ins("ds_read_b128 %s, v%d offset:%d" % (Breg(kap, tt), r, o), rloc=('H', hslot(gam)), cid=('H', gam), tag=tag)

    for kap in range(10):
        p = (u8 + kap) * 8 + 7
        for tt in range(4):
            items.append(Item(hread(kap, tt, 'r1'), p, bars[bx1] - 6, tgt=p + 2 * tt, stream='xch'))
    p = bars[bx1]
    for gam in range(5, 8):
        for tt in range(4):
            items.append(Item(hwrite(gam, tt, HREG + ((gam - 5) * 4 + tt) * 4), p, BX2 - 1, tgt=p + 2 + 4 * ((gam - 5) * 4 + tt), stream='xch'))
    for kap in range(10, 18):
        for tt in range(4):
            fu = NU_U * 8 + kap * 8
            items.append(Item(hread(kap, tt, 'r2'), BX2, min(fu - 4, bars[bx3] - 4), tgt=BX2 + (kap - 10) * 4 + tt, stream='xch'))
    for beta in range(9):
        acc = GB if beta % 2 == 0 else GA
        e = (NU_U + 18 * (beta + 1)) * 8 - 1
        seq = part_store(acc, U + 16 * (beta % 2), V_SA, S_ST)
        if beta == 8:
            tail = seq
            break
        spread(items, seq, e + 4, e + 110)
    for g in (143, 143 + 288 * 4, eU8, LOOP0 - 2):
        for x in stamp_ins(): items.append(Item(x, g, g, fixed=True))
    for r in emit_regions(c, bb, items, [('s', 0, LOOP0), ('l', LOOP0, LOOPL, 3, "L_ffn_d", 18)], 'ffn'):
        c.add(r)
    c.add(tail)


STAMPS = [0]


def dump_regs(c, quads, tmp=2):
    c("s_waitcnt vmcnt(0) lgkmcnt(0)\ns_nop 7\ns_nop 7")
    c("s_lshl_b32 s3, s2, 2\ns_add_u32 s3, s3, s%d\ns_lshl_b32 s3, s3, 17\ns_add_u32 s3, s3, 0x3000000" % S_W)
    c("s_mov_b32 s40, s38\ns_mov_b32 s41, s39\ns_mov_b32 s42, 0x10000000\ns_mov_b32 s43, 0x20000")
    c("v_lshlrev_b32 v%d, 4, v%d" % (tmp, V_LANE))
    for q in quads:
        c("buffer_store_dwordx4 %s, v%d, s[40:43], s3 offen" % (q, tmp))
        c("s_add_u32 s3, s3, 1024\ns_waitcnt vmcnt(0)")
    c("s_endpgm")


def stamp_ins(grp='main'):
    if not OPT['stamps']: return []
    if grp != OPT.get('sgrp', 'main') and grp != 'all': return []
    i = STAMPS[0]
    STAMPS[0] += 1
    assert i < 8
    return [Ins("s_memtime s[%d:%d]" % (4 + 4 * i, 5 + 4 * i), cost=0), Ins("s_memrealtime s[%d:%d]" % (6 + 4 * i, 7 + 4 * i), cost=0)]


def finish(c):
    if OPT['stamps']:
        c("s_waitcnt vmcnt(0)")
        c.add(stamp_ins('all'))
        c("s_waitcnt lgkmcnt(0)")
        n = STAMPS[0]
        for i in range(n):
            c("v_mov_b32 v%d, s%d\nv_mov_b32 v%d, s%d" % (32 + 2 * i, 4 + 4 * i, 33 + 2 * i, 6 + 4 * i))
        c("s_lshl_b32 s3, s2, 7\ns_add_u32 s3, s3, 0x8001000\nv_mov_b32 v7, s3")
        c("s_mov_b32 s40, s38\ns_mov_b32 s41, s39\ns_mov_b32 s42, 0x10000000\ns_mov_b32 s43, 0x20000")
        for i in range(n):
            c("buffer_store_dwordx2 v[%d:%d], v7, s[40:43], 0 offen offset:%d" % (32 + 2 * i, 33 + 2 * i, 8 * i))
        STAMPS[0] = 0
    if OPT['stamps']:
        c("s_waitcnt vmcnt(0)")
        c("s_memrealtime s[98:99]\ns_waitcnt lgkmcnt(0)")
        c("v_mov_b32 v8, s100\nv_mov_b32 v9, s101\nv_mov_b32 v10, s98\nv_mov_b32 v11, s99")
        c("s_lshl_b32 s3, s2, 4\ns_add_u32 s3, s3, 0x8000000\nv_mov_b32 v7, s3")
        c("s_mov_b32 s12, s38\ns_mov_b32 s13, s39\ns_mov_b32 s14, 0x10000000\ns_mov_b32 s15, 0x20000")
        c("buffer_store_dwordx4 v[8:11], v7, s[12:15], 0 offen")
    c("s_endpgm")


def gen_reduce():
    c = Code()
    c("s_cmp_ge_u32 s2, 576\ns_cbranch_scc1 L_rexit")
    c("s_load_dwordx2 s[4:5], s[0:1], 0\ns_load_dwordx2 s[6:7], s[0:1], 72\ns_load_dwordx2 s[8:9], s[0:1], 88")
    c("s_mul_hi_u32 s10, s2, %d" % ((1 << 32) // 36 + 1))
    c("s_mul_i32 s11, s10, 36\ns_sub_u32 s11, s2, s11")
    c("s_lshr_b32 s12, s11, 2\ns_and_b32 s13, s11, 3")
    c("s_and_b32 s14, s13, 1\ns_lshr_b32 s15, s13, 1")
    c("s_mul_i32 s16, s10, %d\ns_lshl_b32 s17, s11, 12\ns_add_u32 s16, s16, s17" % PART_BYTES)
    c("v_lshlrev_b32 v1, 4, v0\nv_add_u32 v1, s16, v1")
    c("s_lshl_b32 s18, s10, 7\ns_lshl_b32 s19, s14, 6\ns_add_u32 s18, s18, s19")
    c("v_lshrrev_b32 v2, 6, v0\nv_lshlrev_b32 v2, 4, v2\nv_and_b32 v3, 15, v0\nv_add3_u32 v2, v2, v3, s18")
    c("v_mul_u32_u24 v2, 1152, v2")
    c("s_lshl_b32 s18, s12, 7\ns_lshl_b32 s19, s15, 6\ns_add_u32 s18, s18, s19")
    c("v_bfe_u32 v3, v0, 4, 2\nv_lshlrev_b32 v3, 3, v3\nv_add3_u32 v2, v2, v3, s18")
    c("s_waitcnt lgkmcnt(0)")
    c("s_mov_b32 s20, s8\ns_mov_b32 s21, s9\ns_mov_b32 s22, %d\ns_mov_b32 s23, 0x20000" % (256 * PART_BYTES))
    c("s_mov_b32 s24, s4\ns_mov_b32 s25, s5\ns_mov_b32 s26, %d\ns_mov_b32 s27, 0x20000" % (2048 * 1152))
    c("s_mov_b32 s28, s6\ns_mov_b32 s29, s7\ns_mov_b32 s30, %d\ns_mov_b32 s31, 0x20000" % (2048 * 1152))
    order = list(range(8, 16)) + list(range(8))
    for i, p in enumerate(order):
        c("s_mov_b32 s%d, %d" % (32 + i, p * 16 * PART_BYTES))
        c("buffer_load_dwordx4 %s, v1, s[20:23], s%d offen" % (V(16 + 4 * p, 4), 32 + i))
    c("buffer_load_dwordx2 v[4:5], v2, s[24:27], 0 offen\nbuffer_load_dwordx2 v[6:7], v2, s[24:27], 0 offen offset:32")
    c("s_mov_b32 s3, 0xffff0000")
    D, S = 80, 88
    for base, ps in ((D, range(8, 16)), (S, range(8))):
        for n, p in enumerate(ps):
            for q in range(4):
                r = 16 + 4 * p + q
                if n == 0:
                    c("v_lshlrev_b32 v%d, 16, v%d\nv_and_b32 v%d, s3, v%d" % (base + 2 * q, r, base + 2 * q + 1, r))
                else:
                    c("v_lshlrev_b32 v8, 16, v%d\nv_and_b32 v9, s3, v%d" % (r, r))
                    c("v_add_f32 v%d, v8, v%d\nv_add_f32 v%d, v9, v%d" % (base + 2 * q, base + 2 * q, base + 2 * q + 1, base + 2 * q + 1))
        if base == D:
            for e in range(8): c("v_mul_f32 v%d, %s, v%d" % (96 + e, f2h(-LOG2E), D + e))
            for e in range(8): c("v_exp_f32 v%d, v%d" % (96 + e, 96 + e))
            for e in range(8): c("v_add_f32 v%d, 1.0, v%d" % (96 + e, 96 + e))
            for e in range(8): c("v_rcp_f32 v%d, v%d" % (96 + e, 96 + e))
            for e in range(8): c("v_mul_f32 v%d, v%d, v%d" % (D + e, 96 + e, D + e))
    for q in range(4):
        c("v_lshlrev_b32 v8, 16, v%d\nv_and_b32 v9, s3, v%d" % (4 + q, 4 + q))
        c("v_fma_f32 v8, v%d, v%d, v8\nv_fma_f32 v9, v%d, v%d, v9" % (S + 2 * q, D + 2 * q, S + 2 * q + 1, D + 2 * q + 1))
        c("v_cvt_pk_bf16_f32 v%d, v8, v9" % (10 + q))
    c("buffer_store_dwordx2 v[10:11], v2, s[28:31], 0 offen\nbuffer_store_dwordx2 v[12:13], v2, s[28:31], 0 offen offset:32")
    if OPT.get('hd'):
        c("s_cmp_lg_u32 s2, 575\ns_cbranch_scc1 L_rexit")
        c("s_load_dwordx2 s[40:41], s[0:1], 80\ns_waitcnt lgkmcnt(0)")
        c("s_mov_b32 s22, 0x10000000")
        c("v_and_b32 v1, 7, v0\nv_bfe_u32 v2, v0, 3, 1\nv_lshlrev_b32 v3, 14, v2\nv_lshl_add_u32 v3, v1, 3, v3\nv_add_u32 v3, 0x8001004, v3")
        c("v_lshlrev_b32 v4, 11, v2\nv_add_u32 v4, 0x8000000, v4")
        c("buffer_load_dword v5, v3, s[20:23], 0 offen\nbuffer_load_dword v6, v4, s[20:23], 0 offen\ns_waitcnt vmcnt(0)")
        c("s_memrealtime s[46:47]\ns_waitcnt lgkmcnt(0)\nv_mov_b32 v7, s46\nv_cmp_eq_u32 vcc, 1, v1\ns_nop 1\nv_cndmask_b32 v5, v5, v7, vcc\nv_sub_u32 v5, v5, v6")
        c("s_mov_b32 s42, 64\ns_mov_b32 s43, 0x20000\nv_lshlrev_b32 v1, 2, v0")
        c("buffer_store_dword v5, v1, s[40:43], 0 offen")
    c("L_rexit:\ns_endpgm")
    return c


def kd(name, nv, ao, ns=102):
    return """.p2align 6
.amdhsa_kernel %s
  .amdhsa_next_free_vgpr %d
  .amdhsa_next_free_sgpr %d
  .amdhsa_accum_offset %d
  .amdhsa_group_segment_fixed_size 0
  .amdhsa_kernarg_size 96
  .amdhsa_user_sgpr_count 2
  .amdhsa_user_sgpr_kernarg_segment_ptr 1
  .amdhsa_system_sgpr_workgroup_id_x 1
.end_amdhsa_kernel""" % (name, nv, ns, ao)


def alias_map(regions):
    rg = dict(regions)
    for i in range(20): rg[('R', i * 8192)] = (i * 8192, i * 8192 + 8192)
    al = {}
    for a, (s0, e0) in rg.items():
        al[a] = [b for b, (s1, e1) in rg.items() if b != a and s0 < e1 and s1 < e0]
    return al


def build_all():
    import gen_attn as GA_
    GA_.G.OPT.update(OPT); gen_attn = GA_.gen_attn
    main = KNAME + "_kernel"
    out = ["; @launch kernel=%s grid=(256,1,1) block=(256,1,1) lds=163840" % main,
           "; @launch kernel=reduce_kernel grid=(576,1,1) block=(256,1,1) lds=0",
           ] + (["; @launch kernel=empty_kernel grid=(1,1,1) block=(64,1,1) lds=0"] if OPT.get('empty') else []) + [
           '.amdgcn_target "amdgcn-amd-amdhsa--gfx950"', ".text",
           ".globl %s" % main, ".p2align 8", ".type %s,@function" % main, main + ":"]
    pro = Code(); prologue_common(pro)
    pro("s_cmp_eq_u32 s%d, 0\ns_cbranch_scc0 L_ffn" % S_TY)
    att = Code(); gen_attn(att); finish(att)
    ffn = Code(); gen_ffn(ffn); finish(ffn)
    base = {('X', t): (XBUF + t * 36864, XBUF + (t + 1) * 36864) for t in range(4)}
    fa = dict(base)
    for o in (-16384, 0, 16384, 32768, 49152): fa[('H', o)] = (98304 + o, 98304 + o + 16384)
    aa = dict(base)
    aa[('Q', 0)] = (98304, 163840)
    aa[('FL', 0)] = (98304 - 64, 98304)
    w = 0
    for tr in att.traces: w += analyze(pro.p + tr, alias=alias_map(aa))
    w += analyze(pro.p + ffn.p, alias=alias_map(fa))
    print("attn", stats(att.p)); print("ffn", stats(ffn.p))
    assert w == 0, "LDS model warnings"
    abl = str(OPT.get('abl', ''))
    if abl:
        def filt(p, inmain=False):
            o = []
            for x in p:
                if isinstance(x, Loop):
                    x.body = filt(x.body, True); o.append(x); continue
                if x.kind == 'mfma': inmain = True
                if inmain:
                    if 'd' in abl and x.kind == 'dma': continue
                    if 'b' in abl and x.kind == 'bar':
                        x.kind = 'pseudo'
                    if 's' in abl and x.kind == 'vst' and x.meta.get('tag') == 'st': continue
                    if 'v' in abl and x.kind in ('valu', 'trans') and not x.text.startswith('v_mov') and not 'readfirst' in x.text and not 'v_or' in x.text: continue
                    if 'r' in abl and x.kind == 'dsr' and 'tr_b16' in x.text: continue
                    if 'x' in abl and 'L_redo' in str(x.meta.get('pair')): continue
                o.append(x)
            return o
        att.p = filt(att.p); ffn.p = filt(ffn.p)
    emit(pro.p, out); emit(att.p, out)
    redo = Code()
    redo("L_redo:\ns_waitcnt vmcnt(0) lgkmcnt(0)\ns_barrier\ns_mov_b32 s%d, 1" % S_MODE)
    redo("v_mbcnt_lo_u32_b32 v0, -1, 0\nv_mbcnt_hi_u32_b32 v0, -1, v0\ns_lshl_b32 s%d, s%d, 6\nv_or_b32 v0, s%d, v0\ns_branch L_restart" % (S_T, S_W, S_T))
    if OPT.get('dbg'): redo.p = [Ins("L_redo:"), Ins("s_endpgm")]
    emit(redo.p, out)
    out.append("L_slow:")
    if att.slow: emit(att.slow, out)
    else: out.append("s_endpgm")
    out.append(".p2align 6\nL_ffn:")
    emit(ffn.p, out)
    red = gen_reduce()
    analyze(red.p)
    out += [".globl reduce_kernel", ".p2align 8", ".type reduce_kernel,@function", "reduce_kernel:"]
    emit(red.p, out)
    if OPT.get('empty'):
        out += [".globl empty_kernel", ".p2align 8", ".type empty_kernel,@function", "empty_kernel:", "s_endpgm"]
    out.append('.section .rodata,"a"')
    if OPT.get('empty'): out.append(kd("empty_kernel", 8, 8, 16))
    out.append(kd(main, 512, 256))
    out.append(kd("reduce_kernel", 104, 104, 64))
    return "\n".join(out) + "\n"


if __name__ == "__main__":
    for a in sys.argv[2:]:
        k, v = a.split("=")
        OPT[k] = {'True': True, 'False': False}.get(v, v)
    t = build_all()
    open(sys.argv[1], "w").write(t)
    print("bytes", len(t))
```

```python
from gen import *
import gen as G

V_QW, V_QR = 0, 27
V_VD0, V_VD1 = 2, 3
V_KD0, V_KD1 = 14, 15
V_KR = 16
V_QS = 20
V_OR, V_SA, V_DD0, V_DD1 = 28, 29, 30, 31
V_VR = 6
V_DR = 10
X, Y = 88, 152
S0, P0, O = 32, 96, 128
A_Q, A_KF, A_VF, A_L, A_ONE = 0, 64, 128, 224, 240
QB = 98304
FLG = QB - 64
S_KO, S_VO, S_JMP = 80, 81, 82
ACC = (64, 96)
PK = 128


def build(slow):
    bb = []
    items = []
    for q in range(72):
        gi, ks = divmod(q, 18)
        acc = X if gi % 2 == 0 else Y
        for t in range(4):
            fr = V(V_FR + 4 * ((4 * q + t) % 6), 4)
            for tt in range(4):
                d = V(acc + (t * 4 + tt) * 4, 4)
                bb.append(mfma(d, fr, Breg(ks, tt), d if ks else "0"))
    EQ = len(bb)
    it0 = {}
    kpos = {}
    vpos = {}
    spos = {}

    def kgroup(m, i):
        kt, ds = divmod(i, 4)
        kpos[(m, i)] = len(bb)
        for tt in range(4):
            d = V(S0 + 32 * (m & 1) + (kt * 4 + tt) * 4, 4)
            bb.append(mfma(d, A(A_KF + 4 * i, 4), A(A_Q + (ds * 4 + tt) * 4, 4), d if ds else "0"))

    def vgroup(m, dt):
        vpos[(m, dt)] = len(bb)
        for tt in range(4):
            d = V(O + (dt * 4 + tt) * 4, 4)
            bb.append(mfma(d, A(A_VF + 4 * dt, 4), V(P0 + 16 * (m & 1) + 4 * tt, 4), d if m % 16 else "0"))

    def sgroup(m):
        spos[m] = len(bb)
        for tt in range(4):
            d = A(A_L + 4 * tt, 4)
            bb.append(mfma(d, A(A_ONE, 4), V(P0 + 16 * (m & 1) + 4 * tt, 4), d if m % 16 else "0"))

    for n in range(-1, 33):
        it0[n] = len(bb)
        k, v = n + 1 <= 31, n - 1 >= 0
        if n == 16:
            sgroup(n - 1)
            for i in range(8): vgroup(n - 1, i)
            for i in range(8): kgroup(n + 1, i)
        elif n == 17:
            for i in range(8): kgroup(n + 1, i)
            for i in range(8): vgroup(n - 1, i)
            sgroup(n - 1)
        elif n == 32:
            sgroup(n - 1)
            for i in range(8): vgroup(n - 1, i)
        else:
            for i in range(8):
                if k: kgroup(n + 1, i)
                if v: vgroup(n - 1, i)
            if v: sgroup(n - 1)
    it0[33] = EA = len(bb)
    units = [(0, k) for k in range(8)] + [(1, k) for k in range(8)] + [(0, k) for k in range(8, 16)] + [(1, k) for k in range(8, 16)]
    units += [(b, k) for b in range(2, 12) for k in range(16)]
    for u, (beta, kap) in enumerate(units):
        for tile in range(2):
            fr = V(V_FR + 4 * ((2 * u + tile) % 8), 4)
            for tt in range(4):
                d = V(ACC[beta % 2] + (tile * 4 + tt) * 4, 4)
                bb.append(mfma(d, fr, A((kap * 4 + tt) * 4, 4), d if kap else "0"))
    NM = EA + 9 * 128
    LOOP0 = EA + 48 * 8
    LEAD = 24
    barsQ = [32 * s + 13 for s in range(36)]
    barA = {}
    for n in range(-1, 32):
        barA[n] = it0[n + 1] - LEAD - 2
    barA[-1] = it0[0] - 20
    barA[30] = it0[31] - LEAD - 2
    barA[31] = it0[32] - 20
    BD0 = EA - 19
    X1 = EA + 13
    X2 = EA + 104
    barsD = [EA + 32 * s + 13 for s in range(len(units) // 4 - 1)]
    bars = sorted(set(barsQ + list(barA.values()) + [BD0, X2] + barsD))
    R = Ring(bars)
    bi = {p: i for i, p in enumerate(bars)}
    x1, x2 = bi[X1], bi[X2]
    x3 = R.bar_after(X2 + 44)
    R.pool = [i * 8192 for i in range(12)]

    def mk_q(q):
        gi, ks = divmod(q, 18)
        return lambda loc: dma_job(q, loc, S_W0, "s_mov_b32 s%d, %d" % (S_OA, ks * 32 * 8192 + (gi >> 1) * 512 + (gi & 1) * 128))

    for q in range(72):
        R.add(q, bi[32 * (q // 2 - 1) + 13] if q >= 2 else -1, 16 * q + 15, mk_q(q), loc=(q % 12) * 8192)

    def mk_k(m):
        if m == 0: so = "s_mov_b32 s%d, 0" % S_KO
        elif m % 4 == 0 and m >= 8: so = "s_add_u32 s%d, s%d, s%d" % (S_KO, S_KO, S_JMP)
        else: so = "s_add_u32 s%d, s%d, 8192" % (S_KO, S_KO)
        return lambda loc: dma_job(100 + 2 * m, loc, S_W1, so, V_KD0, V_KD1, soff=S_KO)

    def mk_v(m):
        if m == 0: so = "s_mov_b32 s%d, 0" % S_VO
        elif m == 16: so = "s_add_u32 s%d, s%d, %d" % (S_VO, S_VO, 524288 - 15 * 8192)
        else: so = "s_add_u32 s%d, s%d, 8192" % (S_VO, S_VO)
        return lambda loc: dma_job(101 + 2 * m, loc, S_W3, so, V_VD0, V_VD1, soff=S_VO)

    def kneed(m): return bi[barsQ[35]] if m == 0 else bi[barA[min(m - 2, 31)]]
    def kdone(m): return kpos[(m, 7)] + 3 if m <= 31 else bars[bi[barA[31]]] - 1
    order = [('k', 0), ('k', 1), ('k', 2), ('v', 0)]
    for n in range(-1, 30):
        order += [('k', n + 4), ('v', n + 2)]
    for kind, m in order:
        if kind == 'k':
            R.add(100 + 2 * m, kneed(m), kdone(m), mk_k(m), loc=(m % 4) * 8192)
        else:
            R.add(101 + 2 * m, bi[barA[m]], max(vpos[(m, 7)] + 3, spos[m]), mk_v(m), loc=32768 + (m % 4) * 8192)

    def mk_d(dq):
        beta, kap = units[2 * dq]
        off = (kap // 2) * 73728 + beta * 128
        if dq < 16:
            so = "s_mov_b32 s%d, %d" % (S_OA, off)
        elif kap == 0:
            so = "s_sub_u32 s%d, s%d, %d" % (S_OA, S_OA, 7 * 73728 - 128)
        else:
            so = "s_add_u32 s%d, s%d, 73728" % (S_OA, S_OA)
        return lambda loc: dma_job(200 + dq, loc, S_W2, so, V_DD0, V_DD1)

    ND = len(units) // 2 - 6
    for dq in range(ND):
        R.add(200 + dq, bi[BD0] if dq < 2 else bi[EA + 32 * (dq // 2 - 1) + 13], EA + 16 * dq + 15, mk_d(dq))
    orig_pick = R.pick
    aw0, aw1 = bi[barA[-1]], bi[barA[30]]

    def pick(job, w):
        if job['q'] >= 200:
            if w < aw1: return None
            R.pool = [i * 8192 for i in range(16)]
            if 12 * 8192 not in R.free:
                for i in range(11, 16): R.free[i * 8192] = x3
        return orig_pick(job, w)
    R.pick = pick

    def nmax(w):
        if aw0 <= w < aw1: return 2
        if w == aw1: return 4
        return 2 if bars[w] >= LOOP0 - 32 else 3

    def lead(w):
        if aw0 <= w < aw1: return 2
        return int(OPT['lead'])

    pre = R.plan(items, NPRE, nmax, lead, len(bb), frac=0.8)
    for i, p in enumerate(bars):
        tags = {'ow'}
        if i == 0: tags.add('xr')
        if i == x1: tags.add('r1')
        if i == x3: tags.add('r2')
        items.append(Item(Ins("s_barrier", vm_tags=R.need.get(i, set()), ds_tags=tags, cost=2), p, p, fixed=True))
    for n in range(2, 30, 4):
        if 14 <= n < 18: continue
        p = it0[n] + 4
        items.append(Item(Ins("s_cmp_eq_u32 s%d, 0" % S_CNT, cost=2, pair="s_cselect_b32 s%d, %d, s87" % (S_JMP, 524288 - 15 * 8192)), p, p + 40, tgt=p, stream='jmp'))
    items.append(Item(Ins("s_mov_b32 s%d, 8192" % S_JMP), it0[14], it0[14] + 40, stream='jmp2'))
    for f in range(288):
        q, t = divmod(f, 4)
        loc = R.loc[q]
        fu = 4 * f
        bp = 32 * (q // 2 - 1) + 13 if q >= 2 else -1
        frag_items(items, f, fu, fu - 21, bp, ('v', V_FR + 4 * (f % 6)), V_RD + 4 * (loc >> 16) + t, loc & 65535, loc, q)
        if f % 2 == 0:
            items.append(Item(Ins("WAIT %s, %s" % (V(V_FR + 4 * (f % 6), 4), V(V_FR + 4 * ((f + 1) % 6), 4)), last=True), fu - 1, fu - 1, fixed=True))
    T = S_T + 5
    su = []
    for tt in range(4): su.append("v_rsq_f32 v%d, v%d" % (V_QS + tt, V_QS + tt))
    for tt in range(4): su.append("v_mul_f32 v%d, %s, v%d" % (V_QS + tt, f2h(LOG2E / 128 ** 0.5), V_QS + tt))
    kk_items(items, 6, 120, 24)
    spread(items, [Ins(x) for x in su], 122, 200, stream='misc')
    qwrites = {}
    yepi = None
    for gi in range(4):
        acc = X if gi % 2 == 0 else Y
        dh = gi & 1
        e = 288 * (gi + 1) - 1
        seq = []
        wr = []
        for i in range(2):
            for tt in range(4):
                for t in (2 * i, 2 * i + 1):
                    a = acc + (t * 4 + tt) * 4
                    for x in range(4): seq.append(Ins("v_mul_f32 v%d, v%d, v%d" % (a + x, V_QS + tt, a + x)))
                    seq.append(Ins("v_cvt_pk_bf16_f32 v%d, v%d, v%d" % (a, a, a + 1)))
                    seq.append(Ins("v_cvt_pk_bf16_f32 v%d, v%d, v%d" % (a + 1, a + 2, a + 3)))
                F = (2 * dh + i) * 4 + tt
                w = Ins("ds_write2st64_b64 v%d, %s, %s offset0:%d offset1:%d" %
                        (V_QW, V(acc + (2 * i * 4 + tt) * 4, 2), V(acc + ((2 * i + 1) * 4 + tt) * 4, 2), 2 * F, 2 * F + 1),
                        wloc=('Q', 0), cid=('Q', gi >> 1), nparts=16, private=(gi >= 1), tag='qw')
                if gi == 2: wr.append(w)
                else: seq.append(w)
        if gi < 3:
            spread(items, seq, e + 4, e + 200)
            if gi == 2: q1a = wr
        else:
            yepi = seq
    p = 864 + 4 * 16
    for F in range(16):
        items.append(Item(Ins("ds_read_b128 %s, v%d offset:%d" % (A(A_Q + 4 * F, 4), V_QR, F * 1024), rloc=('Q', 0), cid=('Q', 0), private=True),
                          p, EQ - 30, tgt=p + 4 * F, stream='xch'))
    for i, w in enumerate(q1a):
        items.append(Item(w, 863 + 202, EQ + 20, tgt=863 + 204 + 8 * i, stream='xch'))
    su = ["s_lshl_b32 s%d, s%d, 10" % (T, S_HH), "s_sub_u32 s%d, 0x8000, s%d" % (T + 1, T), "s_lshl_b32 s%d, s%d, 6" % (T + 2, S_HH)]
    for x in su: items.append(Item(Ins(x), 700, 800, stream='misc'))
    su = ["v_subrev_u32 v%d, s%d, v%d" % (V_DR, T, V_RD), "v_xor_b32 v%d, s%d, v%d" % (V_DR, T + 2, V_DR)]
    su += ["v_add_u32 v%d, s%d, v%d" % (V_VR + t, T + 1, V_RD + t) for t in range(4)]
    late = ["v_xor_b32 v%d, 32, v%d" % (V_DR + 1, V_DR), "v_add_u32 v%d, 0x10000, v%d" % (V_DR + 2, V_DR), "v_add_u32 v%d, 0x10000, v%d" % (V_DR + 3, V_DR + 1)]
    su += ["v_mov_b32 v%d, v%d" % (4, V_DR)]
    for x in su: items.append(Item(Ins(x), EQ - 5, EQ + 12, stream='misc'))
    for i in range(4):
        items.append(Item(Ins("v_accvgpr_write_b32 a%d, s%d" % (A_ONE + i, S_LO)), EQ + 8, it0[1] - 4, tgt=EQ + 30 + i, stream='misc'))
    items.append(Item(Ins("s_mov_b32 s%d, 0x3f803f80" % S_LO), 600, 650, stream='misc2'))
    items.append(Item(Ins("s_mov_b32 s%d, 0" % S_BAD), 600, 650, stream='misc2'))
    items.append(Item(Ins("s_mov_b32 s87, 8192"), 600, 650, stream='misc2'))
    items.append(Item(Ins("s_mov_b32 s%d, 0" % S_ST), 600, 650, stream='misc2'))
    if not slow:
        spread(items, yepi, EQ + 3, it0[1] - 3)
    for m in range(32):
        bp = bars[kneed(m)]
        loc = (m % 4) * 8192
        for i in range(8):
            kt, ds = divmod(i, 4)
            fu = kpos[(m, i)]
            fr = kpos[(m - 1, i)] + 3 if m else 864 + (4 + i // 4) * 16 + 15
            lo = max(bp, fr)
            items.append(Item(Ins("ds_read_b128 %s, v%d offset:%d" % (A(A_KF + 4 * i, 4), V_KR + ds, loc + kt * 4096), rloc=('R', loc), cid=('G', 100 + 2 * m)),
                              lo, max(lo, fu - 6), tgt=fu - LEAD, stream='kf'))
        bp = barA[m]
        loc = 32768 + (m % 4) * 8192
        for dt in range(8):
            fu = vpos[(m, dt)]
            fr = vpos[(m - 1, dt)] + 3 if m else EQ + 13
            frag_items(items, 0, fu, fr, bp, ('a', A_VF + 4 * dt), V_VR + (dt & 3), (m % 4) * 8192 + (dt >> 2) * 1024, loc, 101 + 2 * m, lead=LEAD, stream='vf')
    g = EQ
    while g < EA:
        regs = []
        n_it = max(n for n in it0 if it0[n] <= g)
        nxt = min(g + 8, it0[n_it + 1])
        for x in bb[g:nxt]:
            r = "a[%d:%d]" % (x.A[0][1], x.A[-1][1])
            if r not in regs and x.A[0][1] != A_ONE: regs.append(r)
        if regs: items.append(Item(Ins("WAIT " + ", ".join(regs), last=True), g - 1, g - 1, fixed=True))
        g = nxt
    for ds in range(4):
        for tt in range(4):
            p = kpos[(15, 4 + ds)] + 3
            items.append(Item(Ins("ds_read_b128 %s, v%d offset:%d" % (A(A_Q + (ds * 4 + tt) * 4, 4), V_QR, (ds * 4 + tt) * 1024), rloc=('Q', 0), cid=('Q', 1), private=True),
                              p, kpos[(16, ds)] - 5, tgt=p + 2 * tt, stream='xch'))
    for n in range(32):
        S = S0 + 32 * (n & 1)
        P = P0 + 16 * (n & 1)
        seq, los = [], []
        for kt in range(2):
            rdy = kpos[(n, 4 * kt + 3)] + 3 + 4
            for tt in range(4):
                s = S + (kt * 4 + tt) * 4
                if slow:
                    for x in range(4): seq.append(Ins("v_add_f32 v%d, v%d, v%d" % (s + x, V_QS + tt, s + x)))
                for x in range(4): seq.append(Ins("v_exp_f32 v%d, v%d" % (s + x, s + x)))
                seq.append(Ins("v_cvt_pk_bf16_f32 v%d, v%d, v%d" % (P + 4 * tt + 2 * kt, s, s + 1)))
                seq.append(Ins("v_cvt_pk_bf16_f32 v%d, v%d, v%d" % (P + 4 * tt + 2 * kt + 1, s + 2, s + 3)))
                los += [rdy] * (len(seq) - len(los))
        lo = it0[n] - 1
        pfree = max(vpos[(n - 2, 7)], spos[n - 2]) + 3 if n >= 2 else 0
        first_pv = min(vpos[(n, 0)], spos[n])
        end = min(it0[n + 1] - 1, first_pv - 2)
        if n == 16: end = first_pv - 2 - 20
        if n + 2 <= 31: end = min(end, kpos[(n + 2, 0)] - 1)
        spread(items, seq, max(lo, 0), end, stream='exp', los=los)
    for hd in range(2):
        m = 15 + 16 * hd
        RL = V_DR if hd == 0 else V_KR
        p0 = spos[m] + 3 + 4
        seq, los, his = [], [], []
        for tt in range(4): seq.append(Ins("v_accvgpr_read_b32 v%d, a%d" % (RL + tt, A_L + 4 * tt)))
        if not slow:
            seq.append(Ins("v_max3_f32 v5, v%d, v%d, v%d" % (RL, RL + 1, RL + 2)))
            seq.append(Ins("v_max_f32 v5, v5, v%d" % (RL + 3)))
            seq.append(Ins("v_cmp_nlt_f32 vcc, v5, %s" % "s%d" % S_HI))
            seq.append(Ins("s_or_b32 s%d, s%d, vcc_lo" % (S_BAD, S_BAD), rdx='vcc'))
            seq.append(Ins("s_or_b32 s%d, s%d, vcc_hi" % (S_BAD, S_BAD), rdx='vcc'))
            seq.append(Ins("v_add_f32 v5, v%d, v%d" % (RL, RL + 1)))
            seq.append(Ins("v_add_f32 v5, v5, v%d" % (RL + 2)))
            seq.append(Ins("v_add_f32 v5, v5, v%d" % (RL + 3)))
            seq.append(Ins("v_cmp_u_f32 vcc, v5, v5"))
            seq.append(Ins("s_or_b32 s%d, s%d, vcc_lo" % (S_BAD, S_BAD), rdx='vcc'))
            seq.append(Ins("s_or_b32 s%d, s%d, vcc_hi" % (S_BAD, S_BAD), rdx='vcc'))
            seq.append(Ins("v_min3_f32 v5, v%d, v%d, v%d" % (RL, RL + 1, RL + 2)))
            seq.append(Ins("v_min_f32 v5, v5, v%d" % (RL + 3)))
            seq.append(Ins("v_cmp_ngt_f32 vcc, v5, %s" % "s%d" % (S_HI + 7)))
            seq.append(Ins("s_or_b32 s%d, s%d, vcc_lo" % (S_BAD, S_BAD), rdx='vcc'))
            seq.append(Ins("s_or_b32 s%d, s%d, vcc_hi" % (S_BAD, S_BAD), rdx='vcc'))
        for tt in range(4): seq.append(Ins("v_rcp_f32 v%d, v%d" % (RL + tt, RL + tt)))
        n0 = len(seq)
        lim = spos[16] - 1 if hd == 0 else X2 - 1
        los += [p0] * n0; his += [lim] * n0
        for dq in range(4):
            rdy = vpos[(m, 2 * dq + 1)] + 3 + 4
            dl = vpos[(16, 2 * dq)] - 1 if hd == 0 else X2 - 1
            for tt in range(4):
                a0, a1 = O + (2 * dq * 4 + tt) * 4, O + ((2 * dq + 1) * 4 + tt) * 4
                for a in (a0, a1):
                    for x in range(4): seq.append(Ins("v_mul_f32 v%d, v%d, v%d" % (a + x, RL + tt, a + x)))
                seq.append(Ins("v_cvt_pk_bf16_f32 v%d, v%d, v%d" % (a0, a0, a0 + 1)))
                seq.append(Ins("v_cvt_pk_bf16_f32 v%d, v%d, v%d" % (a0 + 1, a0 + 2, a0 + 3)))
                seq.append(Ins("v_cvt_pk_bf16_f32 v%d, v%d, v%d" % (a0 + 2, a1, a1 + 1)))
                seq.append(Ins("v_cvt_pk_bf16_f32 v%d, v%d, v%d" % (a0 + 3, a1 + 2, a1 + 3)))
                los += [rdy] * (len(seq) - len(los))
                seq.append(Ins("ds_write_b128 v%d, %s offset:%d" % (V_QR, V(a0, 4), dq * 4096 + tt * 1024),
                               wloc=('Q', 0), cid=('Q', 2 + hd), nparts=16, private=(hd == 0), tag='ow', cost=5))
                los.append(rdy if hd == 0 else max(rdy, X1))
                his += [dl] * (len(seq) - len(his))
        if hd == 1 and not slow:
            seq.append(Ins("v_mov_b32 v5, s%d" % S_BAD))
            seq.append(Ins("v_mov_b32 v4, s%d" % (S_HI + 8)))
            seq.append(Ins("ds_write_b32 v4, v5", wloc=('FL', 0), cid=('FL', 0), tag='ow'))
            los += [p0] * 3; his += [X2 - 1] * 3
        spread(items, seq, p0, max(his), stream='valu', los=los, his=his)
        if hd == 0:
            items.append(Item(Ins("v_mov_b32 v%d, v4" % V_DR), it0[18] - 2, it0[18] - 1, stream='valu'))
            if slow:
                for tt in range(4):
                    items.append(Item(Ins("v_accvgpr_read_b32 v%d, a%d" % (V_QS + tt, 96 + tt)), it0[16] - 1, it0[16] - 1, fixed=True))
    for x in late: items.append(Item(Ins(x), it0[30], it0[31], stream='misc'))
    for x in ("s_mov_b32 s%d, %s" % (S_HI, f2h(2.0 ** 60)), "s_mov_b32 s%d, %s" % (S_HI + 7, f2h(2.0 ** -60)),
              "s_lshl_b32 s%d, s%d, 2" % (S_HI + 8, S_W), "s_add_u32 s%d, s%d, %d" % (S_HI + 8, S_HI + 8, FLG)):
        items.append(Item(Ins(x), it0[14], it0[15], stream='misc'))
    def oread(kap, tt, tag):
        hp, dq = divmod(kap & 7, 4)
        return Ins("ds_read_b128 %s, v%d offset:%d" % (A((kap * 4 + tt) * 4, 4), V_OR, hp * 32768 + dq * 4096 + tt * 1024),
                   rloc=('Q', 0), cid=('Q', 2 + (kap >> 3)), tag=tag)
    p = it0[31]
    for kap in range(8):
        for tt in range(4):
            items.append(Item(oread(kap, tt, 'r1'), p, min(EA + kap * 8 - 5, X1 - 4), tgt=p + 2 + 2 * (kap * 4 + tt), stream='xch'))
    if not slow:
        items.append(Item(Ins("v_mov_b32 v4, %d" % FLG), X2, X2 + 2, stream='flg'))
        items.append(Item(Ins("ds_read_b128 v[%d:%d], v4" % (V_QS, V_QS + 3), rloc=('FL', 0), cid=('FL', 0), tag='r2'), X2 + 1, X2 + 4, stream='flg'))
    for kap in range(8, 16):
        for tt in range(4):
            items.append(Item(oread(kap, tt, 'r2'), X2, min(EA + 128 + (kap - 8) * 8 - 5, bars[x3] - 4), tgt=X2 + 1 + (kap - 8) * 4 + tt, stream='xch'))
    CHK = X2 + 16
    if not slow:
        for x in ("v_or3_b32 v%d, v%d, v%d, v%d" % (V_QS, V_QS, V_QS + 1, V_QS + 2), "v_or_b32 v%d, v%d, v%d" % (V_QS, V_QS, V_QS + 3),
                  "v_readfirstlane_b32 s%d, v%d" % (S_BAD, V_QS)):
            items.append(Item(Ins(x), CHK - 5, CHK - 1, stream='misc'))
        items.append(Item(Ins("s_cmp_lg_u32 s%d, 0" % S_BAD, cost=2, pair="s_cbranch_scc1 L_redo"), CHK + 1, CHK + 1, fixed=True))
    for f in range(2 * (9 * 16 + 4)):
        u, tile = divmod(f, 2)
        dq = u >> 1
        loc = R.loc[200 + dq]
        fu = EA + 4 * f
        bp = BD0 if u < 4 else EA + 32 * (u // 4 - 1) + 13
        frag_items(items, f, fu, fu - 29, bp, ('v', V_FR + 4 * (f % 8)), V_DR + 2 * (loc >> 16) + tile, (loc & 65535) + (u & 1) * 1024,
                   loc, 200 + dq, junk=(u >= 144))
        if f % 2 == 0 and fu <= NM:
            items.append(Item(Ins("WAIT %s, %s" % (V(V_FR + 4 * (f % 8), 4), V(V_FR + 4 * ((f + 1) % 8), 4)), last=True), fu - 1, fu - 1, fixed=True))
    for beta in range(9):
        e = EA + (24 * 8 if beta == 0 else 128 * (beta + 1)) - 1
        seq = part_store(ACC[beta % 2], PK + 16 * (beta % 2), V_SA, S_ST)
        if beta == 8:
            tail = seq
            break
        spread(items, seq, e + 4, e + (56 if beta == 0 else 100))
    return bb, items, dict(pre=pre, EQ=EQ, EA=EA, it0=it0, LOOP0=LOOP0, NM=NM, tail=tail, yepi=yepi, CHK=CHK)


def gen_attn(c):
    T = V_TMP
    c("s_lshl_b32 s%d, s%d, 10" % (S_T + 2, S_SL))
    build_srd(c, S_W0, 22, 23, add_sgpr=S_T + 2, add_const=-1024, size=576 * 8192 + 1024, size_sub=S_T + 2)
    c("s_lshl_b32 s%d, s%d, 20\ns_add_u32 s%d, s%d, %d" % (S_T + 2, S_SL, S_T + 2, S_T + 2, 1536 * 256))
    build_srd(c, S_W1, 18, 19, add_sgpr=S_T + 2, size=8388608, size_sub=S_T + 2)
    build_srd(c, S_W3, 20, 21, add_sgpr=S_T + 2, add_const=-1024, size=8388608 + 1024, size_sub=S_T + 2)
    c("s_mul_i32 s%d, s%d, %d" % (S_T + 2, S_SL, 512 * 1152))
    build_srd(c, S_W2, 24, 25, add_sgpr=S_T + 2, size=512 * 1152)
    unit_voff(c, V_D1, 8192, False)
    c("v_add_u32 v%d, 1024, v%d\nv_add_u32 v%d, 256, v%d" % (V_D0, V_D1, V_D1, V_D1))
    bb, items, mk = build(False)
    setup = Code()
    s = setup
    unit_voff(s, V_VD1, 256, True)
    s("v_add_u32 v%d, 1024, v%d\nv_add_u32 v%d, 128, v%d" % (V_VD0, V_VD1, V_VD1, V_VD1))
    unit_voff(s, V_DD0, 1152, True)
    s("v_add_u32 v%d, %d, v%d" % (V_DD1, 32 * 1152 - 1024, V_DD0))
    reader_addr(s, V_RD)
    s("s_lshl_b32 s%d, s%d, 10" % (S_T, S_HH))
    s("v_add_u32 v%d, s%d, v%d" % (V_RD, S_T, V_RD))
    for t in range(1, 4): s("v_xor_b32 v%d, %d, v%d" % (V_RD + t, 32 * t, V_RD))
    for t in range(4): s("v_add_u32 v%d, 0x10000, v%d" % (V_RD + 4 + t, V_RD + t))
    s("v_lshrrev_b32 v%d, 4, v%d\ns_lshl_b32 s%d, s%d, 3\nv_add_u32 v%d, s%d, v%d" % (T, V_LANE, S_T, S_W, T, S_T, T))
    s("v_xor_b32 v%d, v%d, v%d\nv_and_b32 v%d, 15, v%d" % (T + 1, T, V_LANE, T + 1, T + 1))
    s("v_lshlrev_b32 v%d, 8, v%d\nv_lshl_or_b32 v%d, v%d, 4, v%d" % (T, T, V_KD0, T + 1, T))
    s("v_xor_b32 v%d, 64, v%d" % (V_KD1, V_KD0))
    s("v_and_b32 v%d, 15, v%d\nv_lshrrev_b32 v%d, 4, v%d" % (T, V_LANE, T + 1, V_LANE))
    s("v_xor_b32 v%d, v%d, v%d\nv_lshlrev_b32 v%d, 4, v%d\nv_lshl_or_b32 v%d, v%d, 8, v%d" % (T + 2, T, T + 1, T + 2, T + 2, V_KR, T, T + 2))
    for ds in range(1, 4): s("v_xor_b32 v%d, %d, v%d" % (V_KR + ds, 64 * ds, V_KR))
    s("v_lshrrev_b32 v%d, 1, v%d\nv_lshl_add_u32 v%d, v%d, 4, v%d\nv_lshlrev_b32 v%d, 4, v%d" % (T + 2, T + 1, T + 2, T + 2, T, T + 2, T + 2))
    s("v_and_b32 v%d, 1, v%d\nv_lshl_or_b32 v%d, v%d, 3, v%d" % (T + 1, T + 1, T + 2, T + 1, T + 2))
    s("s_lshl_b32 s%d, s%d, 14\ns_add_u32 s%d, s%d, %d\nv_add_u32 v%d, s%d, v%d" % (S_T, S_W, S_T, S_T, QB, V_QW, S_T, T + 2))
    s("v_lshlrev_b32 v%d, 4, v%d\ns_lshl_b32 s%d, s%d, 12\nv_add_u32 v%d, s%d, v%d" % (V_OR, V_LANE, S_T + 1, S_W, V_SA, S_T + 1, V_OR))
    s("v_add_u32 v%d, s%d, v%d" % (V_QR, S_T, V_OR))
    s("s_lshl_b32 s%d, s%d, 14\ns_add_u32 s%d, s%d, %d\nv_add_u32 v%d, s%d, v%d" % (S_T, S_TG, S_T, S_T, QB, V_OR, S_T, V_OR))
    c.add(G.stamp_ins())
    layernorm(c, {('G', 0), ('G', 1)}, setup.p, mk['pre'])
    c.add(G.stamp_ins())
    it0, EQ, EA = mk['it0'], mk['EQ'], mk['EA']
    for g in (EQ - 1, it0[14], EA - 1, mk['LOOP0'] - 2):
        for x in G.stamp_ins(): items.append(Item(x, g, g, fixed=True))
    L4 = it0[6] - it0[2]
    MERGE = mk['CHK'] + 8
    plan = [('s', 0, EQ), ('s', EQ, it0[2]), ('l', it0[2], L4, 3, "L_att", 8), ('s', it0[14], it0[18]), ('l', it0[18], L4, 3, "L_att2", 8),
            ('s', it0[30], MERGE), ('s', MERGE, mk['LOOP0']), ('l', mk['LOOP0'], 256, 3, "L_att_d", 16)]
    regs = emit_regions(c, bb, items, plan, 'attn')
    head = list(c.p)
    fast_mid = regs[1] + regs[2] + regs[3] + regs[4] + regs[5]
    common_tail = [Ins("L_merge:")] + regs[6] + regs[7] + mk['tail']
    c.add(regs[0])
    c.slow = None
    if OPT.get('dbg') == 'q':
        c("v_mbcnt_lo_u32_b32 v1, -1, 0\nv_mbcnt_hi_u32_b32 v1, -1, v1")
        G.dump_regs(c, [A(4 * i, 4) for i in range(16)] + [A(A_KF + 4 * i, 4) for i in range(8)] + [V(Y + 4 * i, 4) for i in range(16)] + [V(20, 4)], tmp=5)
        c("L_merge:"); c.traces = [c.p]
        return
    if OPT.get('dbg') == 'it':
        c.add(regs[1])
        c("v_mbcnt_lo_u32_b32 v1, -1, 0\nv_mbcnt_hi_u32_b32 v1, -1, v1")
        G.dump_regs(c, [V(S0 + 4 * i, 4) for i in range(16)] + [V(P0 + 4 * i, 4) for i in range(8)] + [V(O + 4 * i, 4) for i in range(32)] + [A(A_L + 4 * i, 4) for i in range(5)], tmp=5)
        c("L_merge:"); c.traces = [c.p]
        return
    if str(OPT.get('dbg', '')).startswith('r'):
        for r in regs[1:int(OPT['dbg'][1:]) + 1]: c.add(r)
        c("v_mbcnt_lo_u32_b32 v1, -1, 0\nv_mbcnt_hi_u32_b32 v1, -1, v1")
        c("v_mov_b32 v2, s%d" % S_BAD)
        G.dump_regs(c, [A(4 * i, 4) for i in range(64)] + [V(O + 4 * i, 4) for i in range(32)] + [V(64 + 4 * i, 4) for i in range(16)] + [V(4 * i, 4) for i in range(8)], tmp=5)
        c("L_merge:"); c.traces = [c.p]
        return
    c("s_cmp_lg_u32 s%d, 0\ns_cbranch_scc1 L_slow" % S_MODE)
    c.add(fast_mid)
    c.add(common_tail)
    c.traces = [c.p]
    c.slow = None
```

```python
import sys, math
from asmlib import *

KNAME = "recurrent_scan__sliding_block_cached__swiglu_ffn__prompt"
LOG2E = 1.4426950408889634


def f2h(x):
    import struct
    return "0x%08x" % struct.unpack("<I", struct.pack("<f", x))[0]


def V(n, cnt=1):
    return "v%d" % n if cnt == 1 else "v[%d:%d]" % (n, n + cnt - 1)


def A(n, cnt=1):
    return "a%d" % n if cnt == 1 else "a[%d:%d]" % (n, n + cnt - 1)


def mfma(d, a, b, c):
    return Ins("v_mfma_f32_16x16x32_bf16 %s, %s, %s, %s" % (d, a, b, c))


OPT = dict(st="sc1", stamps=False, map=1, lead=6, cpf=True, xup=18, xsp=3, lag=300, ld='sc1', fused=True)

S_X, S_W0, S_W1, S_W2, S_W3, S_P = 40, 44, 48, 52, 56, 60
S_W, S_M0B, S_OA, S_OB, S_CNT, S_ST = 64, 65, 66, 67, 68, 69
S_SL, S_J, S_RT, S_TY, S_TG, S_HH = 70, 71, 72, 73, 74, 75
S_LO, S_HI = 76, 77
S_T = 78
S_MODE, S_BAD = 88, 89
S_FB = 91 + 7
S_MK = 90


def srd(n):
    return "s[%d:%d]" % (n, n + 3)


V_LANE, V_T0 = 1, 2
V_TID = 0
V_D0, V_D1 = 4, 5
V_RD = 6
V_TMP = 24
V_FR = 32
V_TAIL = 56
V_RAW = 88
PART_BYTES = 147456


def Breg(ks, tt):
    if ks < 16:
        return A((ks * 4 + tt) * 4, 4)
    return V(V_TAIL + ((ks - 16) * 4 + tt) * 4, 4)


class Code:
    def __init__(self):
        self.p = []

    def __call__(self, text, **meta):
        for l in text.split("\n"):
            l = l.strip()
            if l:
                self.p.append(Ins(l, **meta))

    def add(self, x):
        if isinstance(x, list):
            self.p += x
        else:
            self.p.append(x)


def build_srd(c, n, lo, hi, add_sgpr=None, add_const=0, size=None, size_sub=None):
    if add_sgpr is not None:
        c("s_add_u32 s%d, s%d, s%d\ns_addc_u32 s%d, s%d, 0" % (n, lo, add_sgpr, n + 1, hi))
    else:
        c("s_mov_b32 s%d, s%d\ns_mov_b32 s%d, s%d" % (n, lo, n + 1, hi))
    if add_const > 0:
        c("s_add_u32 s%d, s%d, %d\ns_addc_u32 s%d, s%d, 0" % (n, n, add_const, n + 1, n + 1))
    elif add_const < 0:
        c("s_sub_u32 s%d, s%d, %d\ns_subb_u32 s%d, s%d, 0" % (n, n, -add_const, n + 1, n + 1))
    if size_sub is not None:
        c("s_sub_u32 s%d, %d, s%d" % (n + 2, size, size_sub))
    else:
        c("s_mov_b32 s%d, %d" % (n + 2, size))
    c("s_mov_b32 s%d, 0x20000" % (n + 3))


def unit_voff(c, dst, rs, corder, t0=V_TMP):
    rho, pos, h, row = t0, t0 + 1, t0 + 2, t0 + 3
    c("v_lshrrev_b32 v%d, 3, v%d" % (rho, V_LANE))
    c("v_and_b32 v%d, 7, v%d" % (pos, V_LANE))
    c("v_bfe_u32 v%d, v%d, 1, 1" % (h, rho))
    c("s_and_b32 s%d, s%d, 1\ns_lshl_b32 s%d, s%d, 1" % (S_T, S_W, S_T, S_T))
    c("v_or_b32 v%d, s%d, v%d" % (h, S_T, h))
    c("v_lshlrev_b32 v%d, 1, v%d" % (h, h))
    c("v_xor_b32 v%d, v%d, v%d" % (pos, pos, h))
    if not corder:
        c("s_lshl_b32 s%d, s%d, 3" % (S_T, S_W))
        c("v_add_u32 v%d, s%d, v%d" % (row, S_T, rho))
    else:
        c("s_lshl_b32 s%d, s%d, 2" % (S_T, S_W))
        c("v_and_b32 v%d, 3, v%d" % (row, rho))
        c("v_add_u32 v%d, s%d, v%d" % (row, S_T, row))
        c("v_lshrrev_b32 v%d, 2, v%d" % (rho, rho))
        c("v_lshl_add_u32 v%d, v%d, 4, v%d" % (row, rho, row))
    c("v_mul_u32_u24 v%d, %d, v%d" % (row, rs, row))
    c("v_lshl_add_u32 v%d, v%d, 4, v%d" % (dst, pos, row))


def reader_addr(c, dst, t0=V_TMP):
    g, r4, h = t0, t0 + 1, t0 + 2
    c("v_lshrrev_b32 v%d, 4, v%d" % (g, V_LANE))
    c("v_bfe_u32 v%d, v%d, 2, 2" % (r4, V_LANE))
    c("v_lshrrev_b32 v%d, 1, v%d" % (h, r4))
    c("v_and_b32 v%d, 1, v%d" % (dst, g))
    c("v_lshl_or_b32 v%d, v%d, 1, v%d" % (h, dst, h))
    c("v_lshlrev_b32 v%d, 11, v%d" % (dst, g))
    c("v_lshl_or_b32 v%d, v%d, 7, v%d" % (dst, r4, dst))
    c("v_lshl_or_b32 v%d, v%d, 5, v%d" % (dst, h, dst))
    c("v_and_b32 v%d, 3, v%d" % (g, V_LANE))
    c("v_lshl_or_b32 v%d, v%d, 3, v%d" % (dst, g, dst))


V_XO = 52


def xloads(t):
    return [[Ins("s_add_u32 m0, s%d, %d" % (S_MK + 4, t * 36864 + kb * (1024 - 128)), hoist=True),
             Ins("buffer_load_dwordx4 v%d, %s, s%d offen offset:%d lds" % (V_XO, srd(S_X), S_MK + t, kb * 128),
                 wloc=('X', t), cid=('X', t), nparts=9)] for kb in range(9)]


def weave(c, start, extra):
    body = c.p[start:]
    del c.p[start:]
    n = len(extra)
    k = 0
    for i, x in enumerate(body):
        while k < n and k * len(body) <= i * n:
            c.p += extra[k]; k += 1
        c.p.append(x)
    for e in extra[k:]: c.p += e


def weave_safe(c, start, extra):
    body = c.p[start:]
    del c.p[start:]
    n = len(extra)
    k = 0
    for i, x in enumerate(body):
        if ('x', 'scc') not in x.rd:
            while k < n and k * len(body) <= i * n:
                c.p += extra[k]; k += 1
        c.p.append(x)
    for e in extra[k:]: c.p += e


def prologue_common(c):
    c("s_cmp_lt_u32 s2, 256\ns_cbranch_scc1 L_go\ns_endpgm\nL_go:")
    c("s_mov_b32 s%d, 0" % S_MODE)
    c("L_restart:")
    c("s_load_dwordx16 s[16:31], s[0:1], 0\ns_load_dwordx8 s[32:39], s[0:1], 64")
    if OPT['stamps']:
        c("s_memrealtime s[100:101]")
    c("v_and_b32 v%d, 63, v%d\nv_lshrrev_b32 v2, 6, v%d" % (V_LANE, V_TID, V_TID))
    c("v_readfirstlane_b32 s%d, v2" % S_W)
    m = int(OPT['map'])
    c("s_and_b32 s%d, s2, 7\ns_lshr_b32 s%d, s2, 3" % (S_T, S_J))
    c("s_lshr_b32 s%d, s%d, 4\ns_and_b32 s%d, s%d, 15" % (S_TY, S_J, S_J, S_J))
    if m == 0:
        c("s_mov_b32 s%d, s%d\ns_mov_b32 s%d, s%d" % (S_SL, S_T, S_RT, S_J))
    else:
        c("s_andn2_b32 s%d, s%d, %d\ns_and_b32 s%d, s%d, %d\ns_or_b32 s%d, s%d, s%d" % (S_SL, S_T, (1 << m) - 1, S_T + 1, S_J, (1 << m) - 1, S_SL, S_SL, S_T + 1))
        c("s_and_b32 s%d, s%d, %d\ns_lshl_b32 s%d, s%d, %d\ns_lshr_b32 s%d, s%d, %d\ns_or_b32 s%d, s%d, s%d" %
          (S_T, S_T, (1 << m) - 1, S_T, S_T, 4 - m, S_RT, S_J, m, S_RT, S_RT, S_T))
    c("s_and_b32 s%d, s%d, 1\ns_lshr_b32 s%d, s%d, 1\ns_lshl_b32 s%d, s%d, 11" % (S_TG, S_W, S_HH, S_W, S_M0B, S_W))
    c("s_lshl_b32 s%d, s%d, 4\ns_lshl_b32 s%d, s%d, 3\ns_add_u32 s%d, s%d, s%d\ns_add_u32 s%d, s%d, s%d" %
      (S_T, S_RT, S_T + 1, S_TG, S_T, S_T, S_T + 1, S_T, S_T, S_HH))
    c("s_mul_i32 s%d, s%d, %d" % (S_MK, S_T, 8 * 1152))
    for t in range(1, 4):
        c("s_add_u32 s%d, s%d, %d" % (S_MK + t, S_MK, t * 16 * 1152))
    c("s_mul_i32 s%d, s%d, 9216\ns_add_u32 s%d, s%d, %d" % (S_MK + 4, S_W, S_MK + 4, S_MK + 4, XBUF))
    c("v_lshrrev_b32 v2, 3, v%d\nv_and_b32 v3, 6, v2\nv_xor_b32 v3, v3, v%d\nv_and_b32 v3, 7, v3" % (V_LANE, V_LANE))
    c("v_mul_u32_u24 v2, 1152, v2\nv_lshl_add_u32 v%d, v3, 4, v2" % V_XO)
    if OPT['cpf']:
        c("s_getpc_b64 s[84:85]")
        c("L_pc:")
        c("s_mul_i32 s%d, s%d, L_ffn - L_pc\ns_add_u32 s84, s84, s%d\ns_addc_u32 s85, s85, 0" % (S_T, S_TY, S_T))
        c("s_lshl_b32 s%d, s%d, 2\ns_add_u32 s%d, s%d, s%d\ns_and_b32 s%d, s%d, %d" % (S_T, S_J, S_T, S_T, S_W, S_T, S_T, 63))
        c("v_lshlrev_b32 v3, 13, v%d\ns_lshl_b32 s%d, s%d, 7\nv_add_u32 v3, s%d, v3" % (V_LANE, S_T, S_T, S_T))
        c("s_mov_b32 s86, %d\ns_mov_b32 s87, 0x20000" % 73728)
        c("buffer_load_dword v53, v3, s[84:87], 0 offen")
    c("s_waitcnt lgkmcnt(0)")
    build_srd(c, S_X, 16, 17, size=2048 * 1152)
    for g in xloads(0): c.add(g)
    c("s_lshl_b32 s%d, s%d, 3\ns_add_u32 s%d, s%d, s%d\ns_lshl_b32 s%d, s%d, 4\ns_add_u32 s%d, s%d, s%d" %
      (S_T, S_TY, S_T, S_T, S_SL, S_T, S_T, S_T, S_T, S_RT))
    c("s_mul_i32 s%d, s%d, %d" % (S_T, S_T, PART_BYTES))
    build_srd(c, S_P, 38, 39, add_sgpr=S_T, size=PART_BYTES)


V_KK = 20
XBUF = 16384
NPRE = 10
V_GRAM = 232


def layernorm(c, first_tags, setup, pre, vfv):
    T = V_TMP
    XR, ONE, SEL, SUM, NMU, DT = 88, 92, 96, 104, 112, 120
    st = len(c.p)
    c.add(setup)
    for i in range(4): c("v_mov_b32 v%d, 0x3f803f80" % (ONE + i))
    c("v_and_b32 v%d, 7, v%d\nv_bfe_u32 v%d, v%d, 3, 1\nv_lshrrev_b32 v%d, 4, v%d" % (T, V_LANE, T + 1, V_LANE, T + 2, V_LANE))
    c("v_mul_u32_u24 v%d, 18432, v%d\nv_lshl_add_u32 v%d, v%d, 7, v%d" % (T + 1, T + 1, T + 1, T, T + 1))
    c("v_and_b32 v%d, 6, v%d\nv_xor_b32 v%d, v%d, v%d\nv_lshl_add_u32 v%d, v%d, 4, v%d" % (T, T, T, T, T + 2, T + 1, T, T + 1))
    c("s_mul_i32 s%d, s%d, 9216\ns_add_u32 s%d, s%d, %d" % (S_T, S_TG, S_T, S_T, XBUF))
    c("v_add_u32 v%d, s%d, v%d\nv_xor_b32 v%d, 64, v%d" % (XR, S_T, T + 1, XR + 1, XR))
    c("v_add_u32 v%d, %d, v%d\nv_add_u32 v%d, %d, v%d" % (XR + 2, 73728, XR, XR + 3, 73728, XR + 1))
    c("v_bfe_u32 v%d, v%d, 2, 2\nv_cmp_eq_u32 s[%d:%d], v%d, v%d" % (T, V_LANE, S_MK + 6, S_MK + 7, T, T + 2))
    c("v_and_b32 v%d, 1, v%d\nv_lshlrev_b32 v%d, 4, v%d\nv_mov_b32 v%d, 0x3f80\nv_lshlrev_b32 v%d, v%d, v%d" % (T, V_LANE, T, T, T + 1, T + 1, T, T + 1))
    c("v_cndmask_b32 v%d, 0, v%d, s[%d:%d]" % (T + 1, T + 1, S_MK + 6, S_MK + 7))
    c("v_and_b32 v%d, 2, v%d\nv_cmp_eq_u32 vcc, 0, v%d" % (T, V_LANE, T))
    c("v_cndmask_b32 v%d, 0, v%d, vcc\nv_cndmask_b32 v%d, v%d, 0, vcc" % (SEL + 2, T + 1, SEL + 3, T + 1))
    for i in (0, 1, 4, 5): c("v_mov_b32 v%d, 0" % (SEL + i))
    nup = int(OPT['xup'])
    rest = xloads(1) + xloads(2) + xloads(3)
    weave_safe(c, st, rest[:nup])
    c.add(stamp_ins('ln'))
    bb, items = [], []
    spos, cpos = {}, {}

    def S(t, ks):
        spos[(t, ks)] = len(bb)
        d = V(SUM + 4 * (t & 1), 4)
        bb.append(mfma(d, V(ONE, 4), Breg(ks, t), d if ks else "0"))

    def Gm(t, ks):
        d = V(V_GRAM + 4 * t, 4)
        bb.append(mfma(d, Breg(ks, t), Breg(ks, t), d if ks else "0"))

    def C(t, ks, h):
        if h: cpos[(t, ks)] = len(bb)
        bb.append(mfma(V(DT + 8 * ((t * 18 + ks) % 4) + 4 * h, 4), V(SEL + 2 - 2 * h, 4), Breg(ks, t), V(NMU + 4 * (t & 1), 4)))

    for ks in range(18): S(0, ks)
    for ks in range(18): Gm(0, ks)
    ph = {}
    for t in range(4):
        ph[t] = len(bb)
        if t < 3:
            for ks in range(18):
                C(t, ks, 0); S(t + 1, ks) if ks < 14 else None
                C(t, ks, 1); Gm(t + 1, ks)
                if 10 <= ks < 14: S(t + 1, ks + 4)
        else:
            for ks in range(18):
                C(t, ks, 0); C(t, ks, 1)
    N = len(bb)
    bar = {0: -1, 1: ph[0] - 22, 2: ph[1] - 22, 3: ph[2] - 22}
    for t in range(4):
        tags = {('X', t)} | (first_tags if t == 3 else set())
        items.append(Item(Ins("s_barrier", vm_tags=tags, ds_tags={'xr'}, cost=2), bar[t], bar[t], fixed=True))
        for ks in range(18):
            items.append(Item(Ins("ds_read_b128 %s, v%d offset:%d" % (Breg(ks, t), XR + 2 * (t >> 1) + (ks & 1), (t & 1) * 36864 + (ks >> 1) * 1024),
                                  rloc=('X', t), cid=('X', t), tag='xr'), bar[t], max(bar[t], spos[(t, ks)] - 5), tgt=bar[t] + (ks if t else 0), stream='xr'))
        p = spos[(t, 17)] + 4
        for i in range(4):
            items.append(Item(Ins("v_mul_f32 v%d, %s, v%d" % (NMU + 4 * (t & 1) + i, f2h(-1.0 / 576), SUM + 4 * (t & 1) + i)), p, ph[t] - 2, stream='mu'))
        items.append(Item(Ins("v_mov_b32 v%d, v%d" % (V_KK + t, NMU + 4 * (t & 1))), p, ph[t] + 30, stream='mu'))
        for ks in range(18):
            d = DT + 8 * ((t * 18 + ks) % 4)
            n = t * 18 + ks + 4
            dl = (cpos[divmod(n, 18)] - 2 - (n % 18 < 14 and n < 54)) if n < 72 else N - 1
            p = cpos[(t, ks)] + 3
            if ks < 16:
                seq = ["v_cvt_pk_bf16_f32 v%d, v%d, v%d" % (d + 2 * i, d + 2 * i, d + 2 * i + 1) for i in range(4)]
                seq += ["v_accvgpr_write_b32 a%d, v%d" % ((ks * 4 + t) * 4 + i, d + 2 * i) for i in range(4)]
            else:
                seq = ["v_cvt_pk_bf16_f32 v%d, v%d, v%d" % (V_TAIL + ((ks - 16) * 4 + t) * 4 + i, d + 2 * i, d + 2 * i + 1) for i in range(4)]
            for x in seq: items.append(Item(Ins(x), min(p, N - 1), dl, stream='valu'))
    grp = []
    for x in pre:
        if grp and grp[-1][-1].kind != 'dma': grp[-1].append(x)
        else: grp.append([x])
    p = 0
    for g in rest[nup:] + grp[:4]:
        for x in g: items.append(Item(x, -1, bar[2] - 1, tgt=p, stream='dma'))
        p += int(OPT['xsp'])
    if OPT['fused']:
        for x in handoff_reset(vfv): items.append(Item(x, -1, bar[2] - 1, tgt=p, stream='dma'))
    for k, g in enumerate(grp[4:]):
        b = bar[1] if k < 8 else bar[2]
        p = max(p, b + 2)
        for x in g: items.append(Item(x, b, N - 1, tgt=p, stream='dma'))
        p += 6
    if OPT.get('touch'):
        items.append(Item(Ins("v_lshlrev_b32 v53, 12, v%d" % V_LANE), bar[3], N - 1, tgt=bar[3] + 4, stream='tch'))
        items.append(Item(Ins("buffer_load_dword v53, v53, %s, 0 offen" % srd(S_P)), bar[3], N - 1, tgt=bar[3] + 6, stream='tch'))
    for g in (ph[0] - 1, ph[1] - 1, ph[2] - 1, ph[3] - 1):
        for x in stamp_ins('ln'): items.append(Item(x, g, g, fixed=True))
    c.add(schedule(bb, items, 0, N, verbose=True, name='layernorm'))
    c.add(stamp_ins('ln'))


def kk_items(items, lo, hi, tmp):
    seq = ["v_and_b32 v%d, 3, v%d" % (tmp, V_LANE)]
    seq += ["v_cmp_eq_u32 s[%d:%d], %d, v%d" % (S_MK + 2 * i - 2, S_MK + 2 * i - 1, i, tmp) for i in range(1, 4)]
    for t in range(4):
        g = V_GRAM + 4 * t
        seq += ["v_cndmask_b32 v%d, v%d, v%d, s[%d:%d]" % (g, g, g + i, S_MK + 2 * i - 2, S_MK + 2 * i - 1) for i in range(1, 4)]
        seq += ["v_cndmask_b32 v%d, 0, v%d, s[%d:%d]" % (g, g, S_MK + 6, S_MK + 7)]
    for sw in ("v_permlane32_swap_b32", "v_permlane16_swap_b32"):
        seq += ["v_mov_b32 v%d, v%d" % (V_GRAM + 4 * t + 1, V_GRAM + 4 * t) for t in range(4)]
        seq += ["%s v%d, v%d" % (sw, V_GRAM + 4 * t, V_GRAM + 4 * t + 1) for t in range(4)]
        seq += ["v_add_f32 v%d, v%d, v%d" % (V_GRAM + 4 * t, V_GRAM + 4 * t, V_GRAM + 4 * t + 1) for t in range(4)]
    for t in range(4):
        g = V_GRAM + 4 * t
        seq += ["v_mul_f32 v%d, %s, v%d" % (g, f2h(1.0 / 576), g), "v_fma_f32 v%d, -v%d, v%d, v%d" % (g, V_KK + t, V_KK + t, g)]
    seq += ["v_max_f32 v%d, 0, v%d" % (V_GRAM + 4 * t, V_GRAM + 4 * t) for t in range(4)]
    seq += ["v_add_f32 v%d, %s, v%d" % (V_KK + t, f2h(1e-5), V_GRAM + 4 * t) for t in range(4)]
    spread(items, [Ins(x) for x in seq], lo, hi, stream='misc')


class Ring:
    def __init__(self, bars):
        self.bars = bars
        self.free = {}
        self.until = {}
        self.jobs = []
        self.need = {}
        self.loc = {}

    def bar_after(self, pos):
        for i, p in enumerate(self.bars):
            if p > pos: return i
        return len(self.bars)

    def bar_before(self, pos):
        r = -1
        for i, p in enumerate(self.bars):
            if p <= pos: r = i
        return r

    def add(self, q, need, done, make, loc=None):
        self.jobs.append(dict(q=q, need=need, done=done, make=make, loc=loc))
        self.need.setdefault(need, set()).add(('G', q))

    def pick(self, job, w):
        if job['loc'] is not None:
            return job['loc'] if self.free.get(job['loc'], -1) <= w else None
        rel = self.bar_after(job['done'])
        c = [l for l in self.pool if self.free.get(l, -1) <= w and rel <= self.until.get(l, 1 << 30)]
        if not c: return None
        return min(c, key=lambda l: (self.until.get(l, 1 << 30), self.free.get(l, -1), l))

    def plan(self, items, npre, nmax, lead, last_pos, frac=1.0):
        pre = []
        k = 0
        for job in self.jobs[:npre]:
            l = self.pick(job, -1)
            assert l is not None
            self.loc[job['q']] = l; self.free[l] = self.bar_after(job['done'])
            pre += job['make'](l)
            k += 1
        for w in range(len(self.bars)):
            p0 = self.bars[w]
            p1 = self.bars[w + 1] if w + 1 < len(self.bars) else last_pos
            sel = []
            while k < len(self.jobs) and len(sel) < nmax(w):
                job = self.jobs[k]
                if job['need'] - w > lead(w): break
                l = self.pick(job, w)
                if l is None: break
                assert job['need'] > w, ("job late", job['q'], w)
                self.loc[job['q']] = l; self.free[l] = self.bar_after(job['done'])
                sel.append((job, l)); k += 1
            if not sel: continue
            wd = (p1 - p0 - 1) * frac / len(sel)
            for i, (job, l) in enumerate(sel):
                ins = job['make'](l)
                t0 = p0 + 1 + int(i * wd)
                n = len(ins)
                for jx, x in enumerate(ins):
                    tg = t0 + (int(wd / 2) + 1 if jx == n - 1 else max(0, jx - (n - 4)) if jx < n - 2 else 1)
                    items.append(Item(x, p0, p1 - 1, tgt=tg, stream='dma'))
            if k < len(self.jobs): assert self.jobs[k]['need'] > w + 1 or True
        self.left = len(self.jobs) - k
        return pre


def dma_job(q, loc, srdn, soff_ins, vd0=V_D0, vd1=V_D1, cstep=0, soff=S_OA):
    meta = dict(wloc=('R', loc), cid=('G', q), nparts=2)
    if cstep: meta['cstep'] = cstep
    out = []
    if soff_ins: out.append(Ins(soff_ins))
    out.append(Ins("s_add_u32 m0, s%d, %d" % (S_M0B, loc), hoist=True))
    out.append(Ins("buffer_load_dwordx4 v%d, %s, s%d offen lds" % (vd0, srd(srdn), soff), **meta))
    out.append(Ins("buffer_load_dwordx4 v%d, %s, s%d offen offset:1024 lds" % (vd1, srd(srdn), soff), **meta))
    return out


def frag_items(items, f, first_use, slot_free, bar_pos, dst, areg, imm, loc, q, cstep=0, junk=False, lead=17, stream='fr'):
    meta = dict(rloc=('R', loc), cid=('G', q))
    if cstep: meta['cstep'] = cstep
    if junk: meta['junk_ok'] = True
    lo = max(slot_free, bar_pos)
    k = dst[0]
    n = dst[1]
    for h in range(2):
        reg = (V if k == 'v' else A)(n + 2 * h, 2)
        items.append(Item(Ins("ds_read_b64_tr_b16 %s, v%d offset:%d" % (reg, areg, imm + 512 * h), **meta),
                          lo, max(lo, first_use - 6), tgt=first_use - lead + 2 * h, stream=stream))


def part_store(acc, pk, va, soff, sid):
    out = []
    for tt in range(4):
        p = pk + 4 * tt
        for tile in range(2):
            a = acc + (tile * 4 + tt) * 4
            out.append(Ins("v_cvt_pk_bf16_f32 v%d, v%d, v%d" % (p + 2 * tile, a, a + 1)))
            out.append(Ins("v_cvt_pk_bf16_f32 v%d, v%d, v%d" % (p + 2 * tile + 1, a + 2, a + 3)))
        out.append(Ins("buffer_store_dwordx4 %s, v%d, %s, s%d offen offset:%d %s" %
                       (V(p, 4), va, srd(S_P), soff, tt * 1024, OPT['st']), tag='st', cid=('S', sid)))
    out.append(Ins("s_add_u32 s%d, s%d, 16384" % (soff, soff)))
    return out


FLAGS = 0x2800000
S_FL = S_X
S_DB = 92


def handoff_setup(c, vfo, vfv):
    c("s_lshl_b32 s%d, s%d, 3\ns_add_u32 s%d, s%d, s%d\ns_lshl_b32 s%d, s%d, 7" % (S_T, S_TY, S_T, S_T, S_SL, S_T, S_T))
    c("v_mov_b32 v%d, 0x10000\nv_mov_b32 v%d, s%d\nv_cmp_eq_u32 vcc, 0, v%d" % (vfo, vfv, S_T, V_TID))
    c("s_cmp_eq_u32 s%d, 0\ns_cselect_b64 s[%d:%d], vcc, 0" % (S_MODE, S_T + 2, S_T + 3))
    c("v_cndmask_b32 v%d, v%d, v%d, s[%d:%d]" % (53, vfo, vfv, S_T + 2, S_T + 3))
    c("v_cndmask_b32 v%d, v%d, v%d, vcc\nv_mov_b32 v%d, 0" % (vfo, vfo, vfv, vfv))
    c("s_lshl_b32 s%d, s%d, 2\nv_mov_b32 v54, s%d\nv_cndmask_b32 v54, v%d, v54, s[%d:%d]" % (S_T, S_RT, S_T, 53, S_T + 2, S_T + 3))
    c("s_lshl_b32 s%d, s%d, 11\ns_add_u32 s%d, s%d, %d" % (S_FB, S_RT, S_FB, S_FB, FLAGS))


def handoff_reset(vfv):
    return [Ins("s_add_u32 s%d, s38, s%d" % (S_FL, S_FB), pair="s_addc_u32 s%d, s39, 0" % (S_FL + 1), cost=2), Ins("s_mov_b32 s%d, 2048" % (S_FL + 2)),
            Ins("buffer_store_dword v%d, v53, %s, 0 offen sc1" % (vfv, srd(S_FL)), cid=('RST', 0), cost=2)]


def handoff_count(items, pos, vtmp, voff):
    seq = ["s_mov_b32 s%d, s36" % S_DB, "s_mov_b32 s%d, s37" % (S_DB + 1), "s_mov_b32 s%d, 64" % (S_DB + 2), "s_mov_b32 s%d, 0x20000" % (S_DB + 3),
           "v_mov_b32 v%d, 1" % vtmp, "buffer_atomic_add v%d, v%d, %s, 0 offen sc1" % (vtmp, voff, srd(S_DB))]
    for i, x in enumerate(seq): items.append(Item(Ins(x, cost=1), pos, pos + 28, tgt=pos + 2 + 3 * i, stream='cnt'))


def signal_seq(vfo, vfv):
    return [Ins("v_add_u32 v%d, 1, v%d" % (vfv, vfv)), Ins("buffer_store_dword v%d, v%d, %s, 0 offen sc1" % (vfv, vfo, srd(S_FL)), cost=2)]


def signal_plan(R, ends, step, nblk=9):
    cover, pos = {}, []
    for beta in range(nblk + 3):
        if beta not in ends: continue
        b = R.bar_after(ends[beta] + int(OPT['lag']))
        if b >= len(R.bars): break
        cover.setdefault(b, set()).add(('S', beta * step))
        pos.append(R.bars[b])
    return cover, pos


def signal_tail(c, vfo, vfv):
    c("s_waitcnt vmcnt(0)\ns_barrier\nv_mov_b32 v%d, 9" % vfv)
    c("buffer_store_dword v%d, v%d, %s, 0 offen sc1" % (vfv, vfo, srd(S_FL)))


def consumer(c):
    LD = OPT['ld']
    c("s_load_dwordx2 s[96:97], s[0:1], 0\ns_load_dwordx2 s[94:95], s[0:1], 72")
    c("v_mbcnt_lo_u32_b32 v1, -1, 0\nv_mbcnt_hi_u32_b32 v1, -1, v1")
    c("s_lshl_b32 s78, s%d, 1\ns_add_u32 s78, s78, s%d" % (S_SL, S_TG))
    c("s_lshl_b32 s79, s78, 10\ns_lshl_b32 s80, s%d, 14\ns_add_u32 s79, s79, s80\ns_mul_i32 s80, s%d, %d\ns_add_u32 s79, s79, s80" % (S_HH, S_RT, PART_BYTES))
    c("v_lshlrev_b32 v2, 4, v1\nv_add_u32 v2, s79, v2")
    c("s_lshr_b32 s79, s78, 2\ns_and_b32 s80, s79, 1\ns_lshl_b32 s80, s80, 6\ns_and_b32 s81, s78, 3\ns_lshl_b32 s81, s81, 4\ns_add_u32 s80, s80, s81")
    c("s_lshl_b32 s81, s%d, 7\ns_add_u32 s80, s80, s81" % S_RT)
    c("v_and_b32 v3, 15, v1\nv_add_u32 v3, s80, v3\nv_mul_u32_u24 v3, 1152, v3")
    c("s_lshr_b32 s79, s79, 1\ns_lshl_b32 s79, s79, 6\ns_lshl_b32 s80, s%d, 7\ns_add_u32 s79, s79, s80" % S_HH)
    c("v_lshrrev_b32 v4, 4, v1\nv_lshlrev_b32 v4, 3, v4\nv_add3_u32 v3, v3, v4, s79")
    c("v_and_b32 v4, 7, v1\nv_lshlrev_b32 v4, 7, v4\nv_add_u32 v5, 1024, v4")
    c("s_lshl_b32 s79, s%d, 2\nv_mov_b32 v6, s79" % S_RT)
    c("s_waitcnt lgkmcnt(0)")
    c("s_mov_b32 s44, s38\ns_mov_b32 s45, s39\ns_mov_b32 s46, %d\ns_mov_b32 s47, 0x20000" % (256 * PART_BYTES))
    c("s_mov_b32 s48, s96\ns_mov_b32 s49, s97\ns_mov_b32 s50, %d\ns_mov_b32 s51, 0x20000" % (2048 * 1152))
    c("s_mov_b32 s52, s94\ns_mov_b32 s53, s95\ns_mov_b32 s54, %d\ns_mov_b32 s55, 0x20000" % (2048 * 1152))
    c("s_mov_b32 s56, s36\ns_mov_b32 s57, s37\ns_mov_b32 s58, 64\ns_mov_b32 s59, 0x20000")
    for p in range(16): c("s_mov_b32 s%d, %d" % (60 + p if p < 4 else 78 + p, p * 16 * PART_BYTES))
    PS = lambda p: 60 + p if p < 4 else 78 + p
    c("s_mov_b32 s3, 0xffff0000\ns_mov_b32 s%d, 0x40000" % S_CNT)
    XR, G, L = 8, 32, 72
    for i in range(5):
        c("buffer_load_dwordx2 v[%d:%d], v3, s[48:51], 0 offen offset:%d\nbuffer_load_dwordx2 v[%d:%d], v3, s[48:51], 0 offen offset:%d" %
          (XR + 4 * i, XR + 4 * i + 1, i * 256, XR + 4 * i + 2, XR + 4 * i + 3, i * 256 + 32))
    nlab = [0]

    def spin(vaddr, sr, need):
        k = nlab[0]; nlab[0] += 1
        c("L_spin%d:" % k)
        c("buffer_load_dword v7, v%d, %s, 0 offen sc1\ns_waitcnt vmcnt(0)" % (vaddr, sr))
        c("v_cmp_gt_u32 vcc, %s, v7\ns_nop 1\ns_cbranch_vccz L_spun%d" % (need, k))
        c("s_sleep 2\ns_sub_u32 s%d, s%d, 1\ns_cbranch_scc0 L_spin%d" % (S_CNT, S_CNT, k))
        c("s_mov_b32 s%d, 0" % S_CNT)
        c("L_spun%d:" % k)

    def loads(i, ps):
        c("v_add_u32 v7, %d, v2" % (i * 32768))
        for n, p in enumerate(ps):
            c("buffer_load_dwordx4 %s, v7, s[44:47], s%d offen %s" % (V(L + 32 * i + 4 * n, 4), PS(p), LD))

    def total(i, dst):
        for n in range(8):
            for q in range(4):
                r = L + 32 * i + 4 * n + q
                if n == 0:
                    c("v_lshlrev_b32 v%d, 16, v%d\nv_and_b32 v%d, s3, v%d" % (dst + 2 * q, r, dst + 2 * q + 1, r))
                else:
                    c("v_lshlrev_b32 v28, 16, v%d\nv_and_b32 v29, s3, v%d" % (r, r))
                    c("v_add_f32 v%d, v28, v%d\nv_add_f32 v%d, v29, v%d" % (dst + 2 * q, dst + 2 * q, dst + 2 * q + 1, dst + 2 * q + 1))

    spin(6, "s[56:59]", "16")
    spin(5, srd(S_FL), "9")
    for i in range(5): loads(i, range(8, 16))
    c("s_waitcnt vmcnt(32)")
    for i in range(5):
        if i: c("s_waitcnt vmcnt(%d)" % (32 - 8 * i))
        g = G + 8 * i
        total(i, g)
        t = 232
        for e in range(8): c("v_mul_f32 v%d, %s, v%d" % (t + e, f2h(-LOG2E), g + e))
        for e in range(8): c("v_exp_f32 v%d, v%d" % (t + e, t + e))
        for e in range(8): c("v_add_f32 v%d, 1.0, v%d" % (t + e, t + e))
        for e in range(8): c("v_rcp_f32 v%d, v%d" % (t + e, t + e))
        for e in range(8): c("v_mul_f32 v%d, v%d, v%d" % (g + e, t + e, g + e))

    def finish_item(i):
        total(i, 232)
        for q in range(4):
            c("v_lshlrev_b32 v28, 16, v%d\nv_and_b32 v29, s3, v%d" % (XR + 4 * i + q, XR + 4 * i + q))
            c("v_fma_f32 v28, v%d, v%d, v28\nv_fma_f32 v29, v%d, v%d, v29" % (232 + 2 * q, G + 8 * i + 2 * q, 233 + 2 * q, G + 8 * i + 2 * q + 1))
            c("v_cvt_pk_bf16_f32 v%d, v28, v29" % (XR + 4 * i + q))
        c("buffer_store_dwordx2 v[%d:%d], v3, s[52:55], 0 offen offset:%d\nbuffer_store_dwordx2 v[%d:%d], v3, s[52:55], 0 offen offset:%d" %
          (XR + 4 * i, XR + 4 * i + 1, i * 256, XR + 4 * i + 2, XR + 4 * i + 3, i * 256 + 32))

    c("s_add_u32 s78, s%d, 1" % S_HH)
    for i in range(5):
        if i == 4:
            c("s_cmp_lg_u32 s%d, 0\ns_cbranch_scc1 L_last3" % S_HH)
        spin(4, srd(S_FL), "s78")
        loads(i, range(8))
        c("s_add_u32 s78, s78, 2")
        if i: finish_item(i - 1)
    c("s_waitcnt vmcnt(0)")
    finish_item(4)
    c("s_branch L_cdone\nL_last3:\ns_waitcnt vmcnt(0)")
    finish_item(3)
    c("L_cdone:")


def split_regions(items, bounds):
    regs = [[] for _ in range(len(bounds) - 1)]
    for it in items:
        g = min(max(it.tgt, it.lo), it.hi)
        g = max(g, bounds[0])
        for i in range(len(bounds) - 1):
            if bounds[i] <= g < bounds[i + 1] or (i == len(bounds) - 2 and g >= bounds[i + 1]):
                regs[i].append(it)
                break
    return regs


def clip_items(items, g0, g1):
    out = []
    for it in items:
        lo = max(it.lo, g0); hi = min(it.hi, g1 - 1)
        n = Item(it.ins, lo, max(lo, hi), tgt=it.tgt, stream=it.stream, fixed=it.fixed)
        out.append(n)
    return out


def set_cstep(items, st):
    for it in items:
        if it.ins.meta.get('cid') is not None or it.ins.meta.get('vm_tags') is not None:
            it.ins.meta['cstep'] = st


def same_period(a, b, shift):
    ka = [(i.ins.text, i.tgt, i.stream) for i in a]
    kb = [(i.ins.text, i.tgt - shift, i.stream) for i in b]
    if sorted(ka) != sorted(kb):
        sa, sb = set(ka), set(kb)
        print("only in first:", sorted(sa - sb)[:12]); print("only in other:", sorted(sb - sa)[:12])
        return False
    return True


def emit_regions(c, bb, items, plan, name):
    bounds = []
    for r in plan:
        if r[0] == 's': bounds.append(r[1])
        else: bounds += [r[1] + r[2] * k for k in range(r[3])]
    last = plan[-1]
    bounds.append(last[2] if last[0] == 's' else last[1] + last[2] * last[3])
    items = [it for it in items if min(max(it.tgt, it.lo), it.hi) < bounds[-1]]
    regs = split_regions(items, bounds)
    k = 0
    out = []
    first = True
    for r in plan:
        if r[0] == 's':
            its = regs[k]
            if first: its = [Item(it.ins, it.lo, min(it.hi, r[2] - 1), it.tgt, it.stream, it.fixed) for it in its]
            else: its = clip_items(its, r[1], r[2])
            out.append(schedule(bb, its, r[1], r[2], verbose=True, name=name + ' straight'))
            k += 1
        else:
            _, g0, ln, cnt, label, cstep = r
            for x in range(1, cnt):
                assert same_period(regs[k], regs[k + x], ln * x), "%s loop %s not periodic (%d)" % (name, label, x)
            set_cstep(regs[k], cstep)
            body = schedule(bb, clip_items(regs[k], g0, g0 + ln), g0, g0 + ln, verbose=True, name=name + ' loop')
            body += [Ins("s_sub_u32 s%d, s%d, 1" % (S_CNT, S_CNT)), Ins("s_cbranch_scc0 " + label)]
            out.append([Ins("s_mov_b32 s%d, %d" % (S_CNT, cnt - 1)), Ins(".p2align 3"), Loop(label, cnt, body)])
            k += cnt
        first = False
    return out


def spread(items, seq, lo, end, stream='valu', los=None, his=None):
    tot = sum(x.cost for x in seq)
    a = 0
    for i, x in enumerate(seq):
        l = lo if los is None else max(lo, los[i])
        h = end if his is None else min(end, his[i])
        tg = lo + int(a * (end - lo) / tot)
        a += x.cost
        items.append(Item(x, l, max(l, h), tgt=min(max(tg, l), max(l, h)), stream=stream))


def gen_ffn(c):
    V_HA, V_RA = 12, 13
    V_C1 = 16
    GA, GB, U, HREG = 88, 120, 152, 184
    V_SA = 248
    V_DD0, V_DD1 = 250, 251
    V_FO, V_FV, V_CO = 252, 253, 254
    V_H4 = 14
    HB = 98304
    T = V_TMP
    NU_U = 324
    NU = NU_U + 9 * 18
    NUV = NU + 40
    NM = NU * 8
    LOOP0 = (NU_U + 3 * 18) * 8
    LOOPL = 36 * 8
    eU8 = NU_U * 8 - 1
    BX2 = eU8 + 62
    bars = sorted([32 * s + 13 for s in range(NUV // 4)] + [BX2])
    R = Ring(bars)
    R.pool = [i * 8192 for i in range(20)]
    for i in range(15, 20): R.free[i * 8192] = 0
    bx1 = R.bar_after(eU8 - 41)
    bx2 = bars.index(BX2)
    bx3 = R.bar_after(BX2 + 39)

    def hslot(gam):
        sl = gam if gam < 5 else gam - 5
        return (3 - sl) * 16384

    for gam in range(5):
        for h in range(2):
            R.until[HB + hslot(gam) + 8192 * h] = R.bar_before((2 * gam + 2) * 144 + 3)

    def mk_u(q):
        hg, kp = divmod(q, 9)
        gam, isu = divmod(hg, 2)
        return lambda loc: dma_job(q, loc, S_W1 if isu else S_W0, "s_mov_b32 s%d, %d" % (S_OA, kp * 64 * 9216 + gam * 128))

    def mk_d(q):
        dq = q - 162
        if dq == 0: so = "s_mov_b32 s%d, 0" % S_OA
        elif dq % 9 == 0: so = "s_sub_u32 s%d, s%d, %d" % (S_OA, S_OA, 8 * 73728 - 128)
        else: so = "s_add_u32 s%d, s%d, 73728" % (S_OA, S_OA)
        return lambda loc: dma_job(q, loc, S_W2, so, V_DD0, V_DD1)

    for q in range(NUV // 2 - 4):
        need = bars.index(32 * (q // 2 - 1) + 13) if q >= 2 else -1
        R.add(q, need, 16 * q + 15, mk_u(q) if q < 162 else mk_d(q), loc=q * 8192 if q < NPRE else None)
    items = []
    orig_pick = R.pick

    def pick(job, w):
        if w >= bx1:
            for h in range(2):
                l = HB + hslot(4) + 8192 * h
                if R.until.pop(l, None) is not None: R.free[l] = bx1
        if w >= bx3:
            for gam in range(1, 4):
                for h in range(2):
                    l = HB + hslot(gam) + 8192 * h
                    if R.until.pop(l, None) is not None: R.free[l] = bx3
        return orig_pick(job, w)
    R.pick = pick
    pre = R.plan(items, NPRE, lambda w: 2 if bars[w] >= LOOP0 - 32 else 3, lambda w: int(OPT['lead']), NUV * 8)

    c("s_mul_i32 s%d, s%d, 1152" % (S_T + 2, S_SL))
    build_srd(c, S_W0, 28, 29, add_sgpr=S_T + 2, size=576 * 9216, size_sub=S_T + 2)
    build_srd(c, S_W1, 30, 31, add_sgpr=S_T + 2, size=576 * 9216, size_sub=S_T + 2)
    c("s_mul_i32 s%d, s%d, %d" % (S_T + 2, S_SL, 576 * 1152))
    build_srd(c, S_W2, 32, 33, add_sgpr=S_T + 2, size=576 * 1152)
    unit_voff(c, V_D0, 9216, False)
    c("v_add_u32 v%d, %d, v%d" % (V_D1, 32 * 9216 - 1024, V_D0))
    main = c
    c = Code()
    unit_voff(c, V_DD0, 1152, True)
    c("v_add_u32 v%d, %d, v%d" % (V_DD1, 32 * 1152 - 1024, V_DD0))
    reader_addr(c, V_RD)
    c("s_lshl_b32 s%d, s%d, 6" % (S_T, S_HH))
    c("v_xor_b32 v%d, s%d, v%d" % (V_RD, S_T, V_RD))
    c("v_xor_b32 v%d, 32, v%d" % (V_RD + 1, V_RD))
    for s in (1, 2):
        for t in range(2):
            c("v_add_u32 v%d, 0x%x, v%d" % (V_RD + 2 * s + t, 65536 * s, V_RD + t))
    c("s_lshl_b32 s%d, s%d, 12\ns_add_u32 s%d, s%d, %d" % (S_T, S_TG, S_T, S_T, HB))
    c("v_lshlrev_b32 v%d, 4, v%d\nv_add_u32 v%d, s%d, v%d" % (V_RA, V_LANE, V_RA, S_T, V_RA))
    c("s_lshl_b32 s%d, s%d, 13" % (S_T, S_HH))
    c("v_add_u32 v%d, s%d, v%d" % (V_HA, S_T, V_RA))
    for i in range(2):
        c("v_subrev_u32 v%d, 16384, v%d" % (V_H4 + i, V_HA + i))
    c("v_subrev_u32 v%d, %d, v%d" % (V_SA, HB, V_HA))
    c("s_mov_b32 s%d, 0" % S_ST)
    if OPT['fused']:
        handoff_setup(c, V_FO, V_FV)
        c("v_mov_b32 v%d, v54" % V_CO)
    setup = c.p
    c = main
    c.add(stamp_ins())
    layernorm(c, {('G', 0), ('G', 1)}, setup, pre, V_FV)
    c.add(stamp_ins())
    seq = [Ins("v_rsq_f32 v%d, v%d" % (V_C1 + tt, V_KK + tt)) for tt in range(4)]
    seq += [Ins("v_mul_f32 v%d, %s, v%d" % (V_C1 + tt, f2h(-LOG2E), V_C1 + tt)) for tt in range(4)]
    kk_items(items, 6, 90, V_TMP)
    spread(items, seq, 92, 130, stream='misc')

    bb = []
    for u in range(NUV):
        if u < NU_U:
            hg, ks = divmod(u, 18)
            gam, isu = divmod(hg, 2)
            acc = U if isu else (GA if gam % 2 == 0 else GB)
        else:
            beta, ks = divmod(u - NU_U, 18)
            acc = GB if beta % 2 == 0 else GA
        for tile in range(2):
            fr = V(V_FR + 4 * ((2 * u + tile) % 6), 4)
            for tt in range(4):
                d = V(acc + (tile * 4 + tt) * 4, 4)
                bb.append(mfma(d, fr, Breg(ks, tt), d if ks else "0"))
    if OPT['fused']:
        cover, spos = signal_plan(R, {b: (NU_U + 18 * (b + 1)) * 8 - 1 for b in range(10)}, 9)
        for b, t in cover.items(): R.need.setdefault(b, set()).update(t)
        for p in spos:
            for x in signal_seq(V_FO, V_FV): items.append(Item(x, p, p + 20, tgt=p + 3, stream='sig'))
        R.need[5].add(('RST', 0))
        handoff_count(items, bars[5], 249, V_CO)
    for i, p in enumerate(bars):
        tags = {'hw'}
        if i == 0: tags.add('xr')
        if i == bx1: tags.add('r1')
        if i == bx3: tags.add('r2')
        items.append(Item(Ins("s_barrier", vm_tags=R.need.get(i, set()), ds_tags=tags, cost=2), p, p, fixed=True))
    for f in range(2 * (NU + 4)):
        u, tile = divmod(f, 2)
        q = u >> 1
        loc = R.loc[q]
        fu = 4 * f
        bp = 32 * (u // 4 - 1) + 13 if u >= 4 else -1
        frag_items(items, f, fu, fu - 21, bp, ('v', V_FR + 4 * (f % 6)), V_RD + 2 * (loc >> 16) + tile, (loc & 65535) + (u & 1) * 1024,
                   loc, q, junk=(u >= NU))
        if f % 2 == 0 and fu <= NM:
            items.append(Item(Ins("WAIT %s, %s" % (V(V_FR + 4 * (f % 6), 4), V(V_FR + 4 * ((f + 1) % 6), 4)), last=True), fu - 1, fu - 1, fixed=True))

    def haddr(base, gam, tt, extra=0):
        o = hslot(gam)
        r = base
        if o < 0:
            r += V_H4 - V_HA; o += 16384
        return r, o + tt * 1024 + extra

    def hwrite(gam, tt, src):
        r, o = haddr(V_HA, gam, tt)
        return Ins("ds_write_b128 v%d, %s offset:%d" % (r, V(src, 4), o), tag='hw', wloc=('H', hslot(gam)), cid=('H', gam), nparts=4)

    for gam in range(9):
        G = GA if gam % 2 == 0 else GB
        eG = (2 * gam + 1) * 144 - 1
        eU = eG + 144
        seq = []
        for tt in range(4):
            for tile in range(2):
                g = G + (tile * 4 + tt) * 4
                t = T + 4 * tile
                for e in range(4): seq.append(Ins("v_mul_f32 v%d, v%d, v%d" % (t + e, V_C1 + tt, g + e)))
                for e in range(4): seq.append(Ins("v_exp_f32 v%d, v%d" % (t + e, t + e)))
                for e in range(4): seq.append(Ins("v_fma_f32 v%d, v%d, v%d, v%d" % (t + e, t + e, V_KK + tt, V_KK + tt)))
                for e in range(4): seq.append(Ins("v_rcp_f32 v%d, v%d" % (t + e, t + e)))
                for e in range(4): seq.append(Ins("v_mul_f32 v%d, v%d, v%d" % (g + e, t + e, g + e)))
        nA = len(seq)
        for tt in range(4):
            for tile in range(2):
                g = G + (tile * 4 + tt) * 4
                uu = U + (tile * 4 + tt) * 4
                for e in range(4): seq.append(Ins("v_mul_f32 v%d, v%d, v%d" % (uu + e, g + e, uu + e)))
            dst = G + tt * 4 if gam < 5 else HREG + ((gam - 5) * 4 + tt) * 4
            for tile in range(2):
                uu = U + (tile * 4 + tt) * 4
                seq.append(Ins("v_cvt_pk_bf16_f32 v%d, v%d, v%d" % (dst + 2 * tile, uu, uu + 1)))
                seq.append(Ins("v_cvt_pk_bf16_f32 v%d, v%d, v%d" % (dst + 2 * tile + 1, uu + 2, uu + 3)))
            if gam < 5 or gam == 8:
                seq.append(hwrite(gam, tt, dst))
        end = eU + 139 if gam < 8 else BX2 - 1
        spread(items, seq, eG + 4, end, los=[eG + 4] * nA + [eU + 4] * (len(seq) - nA))
    u8 = 17 * 18

    def hread(kap, tt, tag):
        gam, hp = divmod(kap, 2)
        r, o = haddr(V_RA, gam, tt, hp * 8192)
        return Ins("ds_read_b128 %s, v%d offset:%d" % (Breg(kap, tt), r, o), rloc=('H', hslot(gam)), cid=('H', gam), tag=tag)

    for kap in range(10):
        p = (u8 + kap) * 8 + 7
        for tt in range(4):
            items.append(Item(hread(kap, tt, 'r1'), p, bars[bx1] - 6, tgt=p + 2 * tt, stream='xch'))
    p = bars[bx1]
    for gam in range(5, 8):
        for tt in range(4):
            items.append(Item(hwrite(gam, tt, HREG + ((gam - 5) * 4 + tt) * 4), p, BX2 - 1, tgt=p + 2 + 4 * ((gam - 5) * 4 + tt), stream='xch'))
    for kap in range(10, 18):
        for tt in range(4):
            fu = NU_U * 8 + kap * 8
            items.append(Item(hread(kap, tt, 'r2'), BX2, min(fu - 4, bars[bx3] - 4), tgt=BX2 + (kap - 10) * 4 + tt, stream='xch'))
    for beta in range(9):
        acc = GB if beta % 2 == 0 else GA
        e = (NU_U + 18 * (beta + 1)) * 8 - 1
        seq = part_store(acc, U + 16 * (beta % 2), V_SA, S_ST, 9 * beta)
        if beta == 8:
            tail = seq
            break
        spread(items, seq, e + 4, e + 110)
    for g in (143, 143 + 288 * 4, eU8, LOOP0 - 2):
        for x in stamp_ins(): items.append(Item(x, g, g, fixed=True))
    for r in emit_regions(c, bb, items, [('s', 0, LOOP0), ('l', LOOP0, LOOPL, 3, "L_ffn_d", 18)], 'ffn'):
        c.add(r)
    c.add(tail)
    if OPT['fused']:
        signal_tail(c, V_FO, V_FV)
        c.add(stamp_ins())
        consumer(c)


STAMPS = [0]


def dump_regs(c, quads, tmp=2):
    c("s_waitcnt vmcnt(0) lgkmcnt(0)\ns_nop 7\ns_nop 7")
    c("s_lshl_b32 s3, s2, 2\ns_add_u32 s3, s3, s%d\ns_lshl_b32 s3, s3, 17\ns_add_u32 s3, s3, 0x3000000" % S_W)
    c("s_mov_b32 s40, s38\ns_mov_b32 s41, s39\ns_mov_b32 s42, 0x10000000\ns_mov_b32 s43, 0x20000")
    c("v_lshlrev_b32 v%d, 4, v%d" % (tmp, V_LANE))
    for q in quads:
        c("buffer_store_dwordx4 %s, v%d, s[40:43], s3 offen" % (q, tmp))
        c("s_add_u32 s3, s3, 1024\ns_waitcnt vmcnt(0)")
    c("s_endpgm")


def stamp_ins(grp='main'):
    if not OPT['stamps']: return []
    if grp != OPT.get('sgrp', 'main') and grp != 'all': return []
    i = STAMPS[0]
    STAMPS[0] += 1
    assert i < 8
    return [Ins("s_memtime s[%d:%d]" % (4 + 4 * i, 5 + 4 * i), cost=0), Ins("s_memrealtime s[%d:%d]" % (6 + 4 * i, 7 + 4 * i), cost=0)]


def finish(c):
    if OPT['stamps']:
        c("s_waitcnt vmcnt(0)")
        c.add(stamp_ins('all'))
        c("s_waitcnt lgkmcnt(0)")
        n = STAMPS[0]
        for i in range(n):
            c("v_mov_b32 v%d, s%d\nv_mov_b32 v%d, s%d" % (32 + 2 * i, 4 + 4 * i, 33 + 2 * i, 6 + 4 * i))
        c("s_lshl_b32 s3, s2, 7\ns_add_u32 s3, s3, 0x8001000\nv_mov_b32 v7, s3")
        c("s_mov_b32 s40, s38\ns_mov_b32 s41, s39\ns_mov_b32 s42, 0x10000000\ns_mov_b32 s43, 0x20000")
        for i in range(n):
            c("buffer_store_dwordx2 v[%d:%d], v7, s[40:43], 0 offen offset:%d" % (32 + 2 * i, 33 + 2 * i, 8 * i))
        STAMPS[0] = 0
    if OPT['stamps']:
        c("s_waitcnt vmcnt(0)")
        c("s_memrealtime s[98:99]\ns_waitcnt lgkmcnt(0)")
        c("v_mov_b32 v8, s100\nv_mov_b32 v9, s101\nv_mov_b32 v10, s98\nv_mov_b32 v11, s99")
        c("s_lshl_b32 s3, s2, 4\ns_add_u32 s3, s3, 0x8000000\nv_mov_b32 v7, s3")
        c("s_mov_b32 s12, s38\ns_mov_b32 s13, s39\ns_mov_b32 s14, 0x10000000\ns_mov_b32 s15, 0x20000")
        c("buffer_store_dwordx4 v[8:11], v7, s[12:15], 0 offen")
    c("s_endpgm")


def gen_reduce():
    c = Code()
    c("s_cmp_ge_u32 s2, 576\ns_cbranch_scc1 L_rexit")
    c("s_load_dwordx2 s[4:5], s[0:1], 0\ns_load_dwordx2 s[6:7], s[0:1], 72\ns_load_dwordx2 s[8:9], s[0:1], 88")
    c("s_mul_hi_u32 s10, s2, %d" % ((1 << 32) // 36 + 1))
    c("s_mul_i32 s11, s10, 36\ns_sub_u32 s11, s2, s11")
    c("s_lshr_b32 s12, s11, 2\ns_and_b32 s13, s11, 3")
    c("s_and_b32 s14, s13, 1\ns_lshr_b32 s15, s13, 1")
    c("s_mul_i32 s16, s10, %d\ns_lshl_b32 s17, s11, 12\ns_add_u32 s16, s16, s17" % PART_BYTES)
    c("v_lshlrev_b32 v1, 4, v0\nv_add_u32 v1, s16, v1")
    c("s_lshl_b32 s18, s10, 7\ns_lshl_b32 s19, s14, 6\ns_add_u32 s18, s18, s19")
    c("v_lshrrev_b32 v2, 6, v0\nv_lshlrev_b32 v2, 4, v2\nv_and_b32 v3, 15, v0\nv_add3_u32 v2, v2, v3, s18")
    c("v_mul_u32_u24 v2, 1152, v2")
    c("s_lshl_b32 s18, s12, 7\ns_lshl_b32 s19, s15, 6\ns_add_u32 s18, s18, s19")
    c("v_bfe_u32 v3, v0, 4, 2\nv_lshlrev_b32 v3, 3, v3\nv_add3_u32 v2, v2, v3, s18")
    c("s_waitcnt lgkmcnt(0)")
    c("s_mov_b32 s20, s8\ns_mov_b32 s21, s9\ns_mov_b32 s22, %d\ns_mov_b32 s23, 0x20000" % (256 * PART_BYTES))
    c("s_mov_b32 s24, s4\ns_mov_b32 s25, s5\ns_mov_b32 s26, %d\ns_mov_b32 s27, 0x20000" % (2048 * 1152))
    c("s_mov_b32 s28, s6\ns_mov_b32 s29, s7\ns_mov_b32 s30, %d\ns_mov_b32 s31, 0x20000" % (2048 * 1152))
    order = list(range(8, 16)) + list(range(8))
    for i, p in enumerate(order):
        c("s_mov_b32 s%d, %d" % (32 + i, p * 16 * PART_BYTES))
        c("buffer_load_dwordx4 %s, v1, s[20:23], s%d offen" % (V(16 + 4 * p, 4), 32 + i))
    c("buffer_load_dwordx2 v[4:5], v2, s[24:27], 0 offen\nbuffer_load_dwordx2 v[6:7], v2, s[24:27], 0 offen offset:32")
    c("s_mov_b32 s3, 0xffff0000")
    D, S = 80, 88
    for base, ps in ((D, range(8, 16)), (S, range(8))):
        for n, p in enumerate(ps):
            for q in range(4):
                r = 16 + 4 * p + q
                if n == 0:
                    c("v_lshlrev_b32 v%d, 16, v%d\nv_and_b32 v%d, s3, v%d" % (base + 2 * q, r, base + 2 * q + 1, r))
                else:
                    c("v_lshlrev_b32 v8, 16, v%d\nv_and_b32 v9, s3, v%d" % (r, r))
                    c("v_add_f32 v%d, v8, v%d\nv_add_f32 v%d, v9, v%d" % (base + 2 * q, base + 2 * q, base + 2 * q + 1, base + 2 * q + 1))
        if base == D:
            for e in range(8): c("v_mul_f32 v%d, %s, v%d" % (96 + e, f2h(-LOG2E), D + e))
            for e in range(8): c("v_exp_f32 v%d, v%d" % (96 + e, 96 + e))
            for e in range(8): c("v_add_f32 v%d, 1.0, v%d" % (96 + e, 96 + e))
            for e in range(8): c("v_rcp_f32 v%d, v%d" % (96 + e, 96 + e))
            for e in range(8): c("v_mul_f32 v%d, v%d, v%d" % (D + e, 96 + e, D + e))
    for q in range(4):
        c("v_lshlrev_b32 v8, 16, v%d\nv_and_b32 v9, s3, v%d" % (4 + q, 4 + q))
        c("v_fma_f32 v8, v%d, v%d, v8\nv_fma_f32 v9, v%d, v%d, v9" % (S + 2 * q, D + 2 * q, S + 2 * q + 1, D + 2 * q + 1))
        c("v_cvt_pk_bf16_f32 v%d, v8, v9" % (10 + q))
    c("buffer_store_dwordx2 v[10:11], v2, s[28:31], 0 offen\nbuffer_store_dwordx2 v[12:13], v2, s[28:31], 0 offen offset:32")
    if OPT.get('hd'):
        c("s_cmp_lg_u32 s2, 575\ns_cbranch_scc1 L_rexit")
        c("s_load_dwordx2 s[40:41], s[0:1], 80\ns_waitcnt lgkmcnt(0)")
        c("s_mov_b32 s22, 0x10000000")
        c("v_and_b32 v1, 7, v0\nv_bfe_u32 v2, v0, 3, 1\nv_lshlrev_b32 v3, 14, v2\nv_lshl_add_u32 v3, v1, 3, v3\nv_add_u32 v3, 0x8001004, v3")
        c("v_lshlrev_b32 v4, 11, v2\nv_add_u32 v4, 0x8000000, v4")
        c("buffer_load_dword v5, v3, s[20:23], 0 offen\nbuffer_load_dword v6, v4, s[20:23], 0 offen\ns_waitcnt vmcnt(0)")
        c("s_memrealtime s[46:47]\ns_waitcnt lgkmcnt(0)\nv_mov_b32 v7, s46\nv_cmp_eq_u32 vcc, 1, v1\ns_nop 1\nv_cndmask_b32 v5, v5, v7, vcc\nv_sub_u32 v5, v5, v6")
        c("s_mov_b32 s42, 64\ns_mov_b32 s43, 0x20000\nv_lshlrev_b32 v1, 2, v0")
        c("buffer_store_dword v5, v1, s[40:43], 0 offen")
    c("L_rexit:\ns_endpgm")
    return c


def kd(name, nv, ao, ns=102):
    return """.p2align 6
.amdhsa_kernel %s
  .amdhsa_next_free_vgpr %d
  .amdhsa_next_free_sgpr %d
  .amdhsa_accum_offset %d
  .amdhsa_group_segment_fixed_size 0
  .amdhsa_kernarg_size 96
  .amdhsa_user_sgpr_count 2
  .amdhsa_user_sgpr_kernarg_segment_ptr 1
  .amdhsa_system_sgpr_workgroup_id_x 1
.end_amdhsa_kernel""" % (name, nv, ns, ao)


def alias_map(regions):
    rg = dict(regions)
    for i in range(20): rg[('R', i * 8192)] = (i * 8192, i * 8192 + 8192)
    al = {}
    for a, (s0, e0) in rg.items():
        al[a] = [b for b, (s1, e1) in rg.items() if b != a and s0 < e1 and s1 < e0]
    return al


def build_all():
    import gen_attn as GA_
    GA_.G.OPT.update(OPT); gen_attn = GA_.gen_attn
    main = KNAME + "_kernel"
    out = ["; @launch kernel=%s grid=(256,1,1) block=(256,1,1) lds=163840" % main,
           "; @launch kernel=reduce_kernel grid=(576,1,1) block=(256,1,1) lds=0"]
    if OPT['fused']: out = out[:1] if OPT.get('aslist') or OPT['stamps'] else ["; @launch grid=(256,1,1) block=(256,1,1) lds=163840"]
    out = out + (["; @launch kernel=empty_kernel grid=(1,1,1) block=(64,1,1) lds=0"] if OPT.get('empty') else []) + [
           '.amdgcn_target "amdgcn-amd-amdhsa--gfx950"', ".text",
           ".globl %s" % main, ".p2align 8", ".type %s,@function" % main, main + ":"]
    pro = Code(); prologue_common(pro)
    pro("s_cmp_eq_u32 s%d, 0\ns_cbranch_scc0 L_ffn" % S_TY)
    att = Code(); gen_attn(att); finish(att)
    ffn = Code(); gen_ffn(ffn); finish(ffn)
    base = {('X', t): (XBUF + t * 36864, XBUF + (t + 1) * 36864) for t in range(4)}
    fa = dict(base)
    for o in (-16384, 0, 16384, 32768, 49152): fa[('H', o)] = (98304 + o, 98304 + o + 16384)
    aa = dict(base)
    aa[('Q', 0)] = (98304, 163840)
    aa[('FL', 0)] = (98304 - 64, 98304)
    w = 0
    for tr in att.traces: w += analyze(pro.p + tr, alias=alias_map(aa))
    w += analyze(pro.p + ffn.p, alias=alias_map(fa))
    print("attn", stats(att.p)); print("ffn", stats(ffn.p))
    assert w == 0, "LDS model warnings"
    abl = str(OPT.get('abl', ''))
    if abl:
        def filt(p, inmain=False):
            o = []
            for x in p:
                if isinstance(x, Loop):
                    x.body = filt(x.body, True); o.append(x); continue
                if x.kind == 'mfma': inmain = True
                if inmain:
                    if 'd' in abl and x.kind == 'dma': continue
                    if 'b' in abl and x.kind == 'bar':
                        x.kind = 'pseudo'
                    if 's' in abl and x.kind == 'vst' and x.meta.get('tag') == 'st': continue
                    if 'v' in abl and x.kind in ('valu', 'trans') and not x.text.startswith('v_mov') and not 'readfirst' in x.text and not 'v_or' in x.text: continue
                    if 'r' in abl and x.kind == 'dsr' and 'tr_b16' in x.text: continue
                    if 'x' in abl and 'L_redo' in str(x.meta.get('pair')): continue
                o.append(x)
            return o
        att.p = filt(att.p); ffn.p = filt(ffn.p)
    emit(pro.p, out); emit(att.p, out)
    redo = Code()
    redo("L_redo:\ns_waitcnt vmcnt(0) lgkmcnt(0)\ns_barrier\ns_mov_b32 s%d, 1" % S_MODE)
    redo("v_mbcnt_lo_u32_b32 v0, -1, 0\nv_mbcnt_hi_u32_b32 v0, -1, v0\ns_lshl_b32 s%d, s%d, 6\nv_or_b32 v0, s%d, v0\ns_branch L_restart" % (S_T, S_W, S_T))
    if OPT.get('dbg'): redo.p = [Ins("L_redo:"), Ins("s_endpgm")]
    emit(redo.p, out)
    out.append("L_slow:")
    if att.slow: emit(att.slow, out)
    else: out.append("s_endpgm")
    out.append(".p2align 6\nL_ffn:")
    emit(ffn.p, out)
    if not OPT['fused']:
        red = gen_reduce()
        analyze(red.p)
        out += [".globl reduce_kernel", ".p2align 8", ".type reduce_kernel,@function", "reduce_kernel:"]
        emit(red.p, out)
    if OPT.get('empty'):
        out += [".globl empty_kernel", ".p2align 8", ".type empty_kernel,@function", "empty_kernel:", "s_endpgm"]
    out.append('.section .rodata,"a"')
    if OPT.get('empty'): out.append(kd("empty_kernel", 8, 8, 16))
    out.append(kd(main, 512, 256))
    if not OPT['fused']: out.append(kd("reduce_kernel", 104, 104, 64))
    return "\n".join(out) + "\n"


if __name__ == "__main__":
    for a in sys.argv[2:]:
        k, v = a.split("=")
        OPT[k] = {'True': True, 'False': False}.get(v, v)
    t = build_all()
    open(sys.argv[1], "w").write(t)
    print("bytes", len(t))
```

```python
from gen import *
import gen as G

V_QW, V_QR = 0, 27
V_VD0, V_VD1 = 2, 3
V_KD0, V_KD1 = 14, 15
V_KR = 16
V_QS = 20
V_OR, V_SA, V_DD0, V_DD1 = 28, 29, 30, 31
V_FO, V_FV = 25, 26
V_VR = 6
V_DR = 10
X, Y = 88, 152
S0, P0, O = 32, 96, 128
A_Q, A_KF, A_VF, A_L, A_ONE = 0, 64, 128, 224, 240
QB = 98304
FLG = QB - 64
S_KO, S_VO, S_JMP = 80, 81, 82
ACC = (64, 96)
PK = 128


def build(slow):
    bb = []
    items = []
    for q in range(72):
        gi, ks = divmod(q, 18)
        acc = X if gi % 2 == 0 else Y
        for t in range(4):
            fr = V(V_FR + 4 * ((4 * q + t) % 6), 4)
            for tt in range(4):
                d = V(acc + (t * 4 + tt) * 4, 4)
                bb.append(mfma(d, fr, Breg(ks, tt), d if ks else "0"))
    EQ = len(bb)
    it0 = {}
    kpos = {}
    vpos = {}
    spos = {}

    def kgroup(m, i):
        kt, ds = divmod(i, 4)
        kpos[(m, i)] = len(bb)
        for tt in range(4):
            d = V(S0 + 32 * (m & 1) + (kt * 4 + tt) * 4, 4)
            bb.append(mfma(d, A(A_KF + 4 * i, 4), A(A_Q + (ds * 4 + tt) * 4, 4), d if ds else "0"))

    def vgroup(m, dt):
        vpos[(m, dt)] = len(bb)
        for tt in range(4):
            d = V(O + (dt * 4 + tt) * 4, 4)
            bb.append(mfma(d, A(A_VF + 4 * dt, 4), V(P0 + 16 * (m & 1) + 4 * tt, 4), d if m % 16 else "0"))

    def sgroup(m):
        spos[m] = len(bb)
        for tt in range(4):
            d = A(A_L + 4 * tt, 4)
            bb.append(mfma(d, A(A_ONE, 4), V(P0 + 16 * (m & 1) + 4 * tt, 4), d if m % 16 else "0"))

    for n in range(-1, 33):
        it0[n] = len(bb)
        k, v = n + 1 <= 31, n - 1 >= 0
        if n == 16:
            sgroup(n - 1)
            for i in range(8): vgroup(n - 1, i)
            for i in range(8): kgroup(n + 1, i)
        elif n == 17:
            for i in range(8): kgroup(n + 1, i)
            for i in range(8): vgroup(n - 1, i)
            sgroup(n - 1)
        elif n == 32:
            sgroup(n - 1)
            for i in range(8): vgroup(n - 1, i)
        else:
            for i in range(8):
                if k: kgroup(n + 1, i)
                if v: vgroup(n - 1, i)
            if v: sgroup(n - 1)
    it0[33] = EA = len(bb)
    units = [(0, k) for k in range(8)] + [(1, k) for k in range(8)] + [(0, k) for k in range(8, 16)] + [(1, k) for k in range(8, 16)]
    units += [(b, k) for b in range(2, 12) for k in range(16)]
    for u, (beta, kap) in enumerate(units):
        for tile in range(2):
            fr = V(V_FR + 4 * ((2 * u + tile) % 8), 4)
            for tt in range(4):
                d = V(ACC[beta % 2] + (tile * 4 + tt) * 4, 4)
                bb.append(mfma(d, fr, A((kap * 4 + tt) * 4, 4), d if kap else "0"))
    NM = EA + 9 * 128
    LOOP0 = EA + 48 * 8
    LEAD = 24
    barsQ = [32 * s + 13 for s in range(36)]
    barA = {}
    for n in range(-1, 32):
        barA[n] = it0[n + 1] - LEAD - 2
    barA[-1] = it0[0] - 20
    barA[30] = it0[31] - LEAD - 2
    barA[31] = it0[32] - 20
    BD0 = EA - 19
    X1 = EA + 13
    X2 = EA + 104
    barsD = [EA + 32 * s + 13 for s in range(len(units) // 4 - 1)]
    bars = sorted(set(barsQ + list(barA.values()) + [BD0, X2] + barsD))
    R = Ring(bars)
    bi = {p: i for i, p in enumerate(bars)}
    x1, x2 = bi[X1], bi[X2]
    x3 = R.bar_after(X2 + 44)
    R.pool = [i * 8192 for i in range(12)]

    def mk_q(q):
        gi, ks = divmod(q, 18)
        return lambda loc: dma_job(q, loc, S_W0, "s_mov_b32 s%d, %d" % (S_OA, ks * 32 * 8192 + (gi >> 1) * 512 + (gi & 1) * 128))

    for q in range(72):
        R.add(q, bi[32 * (q // 2 - 1) + 13] if q >= 2 else -1, 16 * q + 15, mk_q(q), loc=(q % 12) * 8192)

    def mk_k(m):
        if m == 0: so = "s_mov_b32 s%d, 0" % S_KO
        elif m % 4 == 0 and m >= 8: so = "s_add_u32 s%d, s%d, s%d" % (S_KO, S_KO, S_JMP)
        else: so = "s_add_u32 s%d, s%d, 8192" % (S_KO, S_KO)
        return lambda loc: dma_job(100 + 2 * m, loc, S_W1, so, V_KD0, V_KD1, soff=S_KO)

    def mk_v(m):
        if m == 0: so = "s_mov_b32 s%d, 0" % S_VO
        elif m == 16: so = "s_add_u32 s%d, s%d, %d" % (S_VO, S_VO, 524288 - 15 * 8192)
        else: so = "s_add_u32 s%d, s%d, 8192" % (S_VO, S_VO)
        return lambda loc: dma_job(101 + 2 * m, loc, S_W3, so, V_VD0, V_VD1, soff=S_VO)

    def kneed(m): return bi[barsQ[35]] if m == 0 else bi[barA[min(m - 2, 31)]]
    def kdone(m): return kpos[(m, 7)] + 3 if m <= 31 else bars[bi[barA[31]]] - 1
    order = [('k', 0), ('k', 1), ('k', 2), ('v', 0)]
    for n in range(-1, 30):
        order += [('k', n + 4), ('v', n + 2)]
    for kind, m in order:
        if kind == 'k':
            R.add(100 + 2 * m, kneed(m), kdone(m), mk_k(m), loc=(m % 4) * 8192)
        else:
            R.add(101 + 2 * m, bi[barA[m]], max(vpos[(m, 7)] + 3, spos[m]), mk_v(m), loc=32768 + (m % 4) * 8192)

    def mk_d(dq):
        beta, kap = units[2 * dq]
        off = (kap // 2) * 73728 + beta * 128
        if dq < 16:
            so = "s_mov_b32 s%d, %d" % (S_OA, off)
        elif kap == 0:
            so = "s_sub_u32 s%d, s%d, %d" % (S_OA, S_OA, 7 * 73728 - 128)
        else:
            so = "s_add_u32 s%d, s%d, 73728" % (S_OA, S_OA)
        return lambda loc: dma_job(200 + dq, loc, S_W2, so, V_DD0, V_DD1)

    ND = len(units) // 2 - 6
    for dq in range(ND):
        R.add(200 + dq, bi[BD0] if dq < 2 else bi[EA + 32 * (dq // 2 - 1) + 13], EA + 16 * dq + 15, mk_d(dq))
    orig_pick = R.pick
    aw0, aw1 = bi[barA[-1]], bi[barA[30]]

    def pick(job, w):
        if job['q'] >= 200:
            if w < aw1: return None
            R.pool = [i * 8192 for i in range(16)]
            if 12 * 8192 not in R.free:
                for i in range(11, 16): R.free[i * 8192] = x3
        return orig_pick(job, w)
    R.pick = pick

    def nmax(w):
        if aw0 <= w < aw1: return 2
        if w == aw1: return 4
        return 2 if bars[w] >= LOOP0 - 32 else 3

    def lead(w):
        if aw0 <= w < aw1: return 2
        return int(OPT['lead'])

    pre = R.plan(items, NPRE, nmax, lead, len(bb), frac=0.8)
    if OPT['fused']:
        ends = {b: EA + 128 * (b + 1) - 1 for b in range(1, 10)}
        ends[0] = EA + 127
        cover, sgp = signal_plan(R, ends, 8)
        for b, t in cover.items(): R.need.setdefault(b, set()).update(t)
        for p in sgp:
            for x in signal_seq(V_FO, V_FV): items.append(Item(x, p, p + 20, tgt=p + 3, stream='sig'))
        R.need[5].add(('RST', 0))
        handoff_count(items, bars[5], 249, 248)
    for i, p in enumerate(bars):
        tags = {'ow'}
        if i == 0: tags.add('xr')
        if i == x1: tags.add('r1')
        if i == x3: tags.add('r2')
        items.append(Item(Ins("s_barrier", vm_tags=R.need.get(i, set()), ds_tags=tags, cost=2), p, p, fixed=True))
    for n in range(2, 30, 4):
        if 14 <= n < 18: continue
        p = it0[n] + 4
        items.append(Item(Ins("s_cmp_eq_u32 s%d, 0" % S_CNT, cost=2, pair="s_cselect_b32 s%d, %d, s87" % (S_JMP, 524288 - 15 * 8192)), p, p + 40, tgt=p, stream='jmp'))
    items.append(Item(Ins("s_mov_b32 s%d, 8192" % S_JMP), it0[14], it0[14] + 40, stream='jmp2'))
    for f in range(288):
        q, t = divmod(f, 4)
        loc = R.loc[q]
        fu = 4 * f
        bp = 32 * (q // 2 - 1) + 13 if q >= 2 else -1
        frag_items(items, f, fu, fu - 21, bp, ('v', V_FR + 4 * (f % 6)), V_RD + 4 * (loc >> 16) + t, loc & 65535, loc, q)
        if f % 2 == 0:
            items.append(Item(Ins("WAIT %s, %s" % (V(V_FR + 4 * (f % 6), 4), V(V_FR + 4 * ((f + 1) % 6), 4)), last=True), fu - 1, fu - 1, fixed=True))
    T = S_T + 5
    su = []
    for tt in range(4): su.append("v_rsq_f32 v%d, v%d" % (V_QS + tt, V_QS + tt))
    for tt in range(4): su.append("v_mul_f32 v%d, %s, v%d" % (V_QS + tt, f2h(LOG2E / 128 ** 0.5), V_QS + tt))
    kk_items(items, 6, 120, 24)
    spread(items, [Ins(x) for x in su], 122, 200, stream='misc')
    qwrites = {}
    yepi = None
    for gi in range(4):
        acc = X if gi % 2 == 0 else Y
        dh = gi & 1
        e = 288 * (gi + 1) - 1
        seq = []
        wr = []
        for i in range(2):
            for tt in range(4):
                for t in (2 * i, 2 * i + 1):
                    a = acc + (t * 4 + tt) * 4
                    for x in range(4): seq.append(Ins("v_mul_f32 v%d, v%d, v%d" % (a + x, V_QS + tt, a + x)))
                    seq.append(Ins("v_cvt_pk_bf16_f32 v%d, v%d, v%d" % (a, a, a + 1)))
                    seq.append(Ins("v_cvt_pk_bf16_f32 v%d, v%d, v%d" % (a + 1, a + 2, a + 3)))
                F = (2 * dh + i) * 4 + tt
                w = Ins("ds_write2st64_b64 v%d, %s, %s offset0:%d offset1:%d" %
                        (V_QW, V(acc + (2 * i * 4 + tt) * 4, 2), V(acc + ((2 * i + 1) * 4 + tt) * 4, 2), 2 * F, 2 * F + 1),
                        wloc=('Q', 0), cid=('Q', gi >> 1), nparts=16, private=(gi >= 1), tag='qw')
                if gi == 2: wr.append(w)
                else: seq.append(w)
        if gi < 3:
            spread(items, seq, e + 4, e + 200)
            if gi == 2: q1a = wr
        else:
            yepi = seq
    p = 864 + 4 * 16
    for F in range(16):
        items.append(Item(Ins("ds_read_b128 %s, v%d offset:%d" % (A(A_Q + 4 * F, 4), V_QR, F * 1024), rloc=('Q', 0), cid=('Q', 0), private=True),
                          p, EQ - 30, tgt=p + 4 * F, stream='xch'))
    for i, w in enumerate(q1a):
        items.append(Item(w, 863 + 202, EQ + 20, tgt=863 + 204 + 8 * i, stream='xch'))
    su = ["s_lshl_b32 s%d, s%d, 10" % (T, S_HH), "s_sub_u32 s%d, 0x8000, s%d" % (T + 1, T), "s_lshl_b32 s%d, s%d, 6" % (T + 2, S_HH)]
    for x in su: items.append(Item(Ins(x), 700, 800, stream='misc'))
    su = ["v_subrev_u32 v%d, s%d, v%d" % (V_DR, T, V_RD), "v_xor_b32 v%d, s%d, v%d" % (V_DR, T + 2, V_DR)]
    su += ["v_add_u32 v%d, s%d, v%d" % (V_VR + t, T + 1, V_RD + t) for t in range(4)]
    late = ["v_xor_b32 v%d, 32, v%d" % (V_DR + 1, V_DR), "v_add_u32 v%d, 0x10000, v%d" % (V_DR + 2, V_DR), "v_add_u32 v%d, 0x10000, v%d" % (V_DR + 3, V_DR + 1)]
    su += ["v_mov_b32 v%d, v%d" % (4, V_DR)]
    for x in su: items.append(Item(Ins(x), EQ - 5, EQ + 12, stream='misc'))
    for i in range(4):
        items.append(Item(Ins("v_accvgpr_write_b32 a%d, s%d" % (A_ONE + i, S_LO)), EQ + 8, it0[1] - 4, tgt=EQ + 30 + i, stream='misc'))
    items.append(Item(Ins("s_mov_b32 s%d, 0x3f803f80" % S_LO), 600, 650, stream='misc2'))
    items.append(Item(Ins("s_mov_b32 s%d, 0" % S_BAD), 600, 650, stream='misc2'))
    items.append(Item(Ins("s_mov_b32 s87, 8192"), 600, 650, stream='misc2'))
    items.append(Item(Ins("s_mov_b32 s%d, 0" % S_ST), 600, 650, stream='misc2'))
    if not slow:
        spread(items, yepi, EQ + 3, it0[1] - 3)
    for m in range(32):
        bp = bars[kneed(m)]
        loc = (m % 4) * 8192
        for i in range(8):
            kt, ds = divmod(i, 4)
            fu = kpos[(m, i)]
            fr = kpos[(m - 1, i)] + 3 if m else 864 + (4 + i // 4) * 16 + 15
            lo = max(bp, fr)
            items.append(Item(Ins("ds_read_b128 %s, v%d offset:%d" % (A(A_KF + 4 * i, 4), V_KR + ds, loc + kt * 4096), rloc=('R', loc), cid=('G', 100 + 2 * m)),
                              lo, max(lo, fu - 6), tgt=fu - LEAD, stream='kf'))
        bp = barA[m]
        loc = 32768 + (m % 4) * 8192
        for dt in range(8):
            fu = vpos[(m, dt)]
            fr = vpos[(m - 1, dt)] + 3 if m else EQ + 13
            frag_items(items, 0, fu, fr, bp, ('a', A_VF + 4 * dt), V_VR + (dt & 3), (m % 4) * 8192 + (dt >> 2) * 1024, loc, 101 + 2 * m, lead=LEAD, stream='vf')
    g = EQ
    while g < EA:
        regs = []
        n_it = max(n for n in it0 if it0[n] <= g)
        nxt = min(g + 8, it0[n_it + 1])
        for x in bb[g:nxt]:
            r = "a[%d:%d]" % (x.A[0][1], x.A[-1][1])
            if r not in regs and x.A[0][1] != A_ONE: regs.append(r)
        if regs: items.append(Item(Ins("WAIT " + ", ".join(regs), last=True), g - 1, g - 1, fixed=True))
        g = nxt
    for ds in range(4):
        for tt in range(4):
            p = kpos[(15, 4 + ds)] + 3
            items.append(Item(Ins("ds_read_b128 %s, v%d offset:%d" % (A(A_Q + (ds * 4 + tt) * 4, 4), V_QR, (ds * 4 + tt) * 1024), rloc=('Q', 0), cid=('Q', 1), private=True),
                              p, kpos[(16, ds)] - 5, tgt=p + 2 * tt, stream='xch'))
    for n in range(32):
        S = S0 + 32 * (n & 1)
        P = P0 + 16 * (n & 1)
        seq, los = [], []
        for kt in range(2):
            rdy = kpos[(n, 4 * kt + 3)] + 3 + 4
            for tt in range(4):
                s = S + (kt * 4 + tt) * 4
                if slow:
                    for x in range(4): seq.append(Ins("v_add_f32 v%d, v%d, v%d" % (s + x, V_QS + tt, s + x)))
                for x in range(4): seq.append(Ins("v_exp_f32 v%d, v%d" % (s + x, s + x)))
                seq.append(Ins("v_cvt_pk_bf16_f32 v%d, v%d, v%d" % (P + 4 * tt + 2 * kt, s, s + 1)))
                seq.append(Ins("v_cvt_pk_bf16_f32 v%d, v%d, v%d" % (P + 4 * tt + 2 * kt + 1, s + 2, s + 3)))
                los += [rdy] * (len(seq) - len(los))
        lo = it0[n] - 1
        pfree = max(vpos[(n - 2, 7)], spos[n - 2]) + 3 if n >= 2 else 0
        first_pv = min(vpos[(n, 0)], spos[n])
        end = min(it0[n + 1] - 1, first_pv - 2)
        if n == 16: end = first_pv - 2 - 20
        if n + 2 <= 31: end = min(end, kpos[(n + 2, 0)] - 1)
        spread(items, seq, max(lo, 0), end, stream='exp', los=los)
    for hd in range(2):
        m = 15 + 16 * hd
        RL = V_DR if hd == 0 else V_KR
        p0 = spos[m] + 3 + 4
        seq, los, his = [], [], []
        for tt in range(4): seq.append(Ins("v_accvgpr_read_b32 v%d, a%d" % (RL + tt, A_L + 4 * tt)))
        if not slow:
            seq.append(Ins("v_max3_f32 v5, v%d, v%d, v%d" % (RL, RL + 1, RL + 2)))
            seq.append(Ins("v_max_f32 v5, v5, v%d" % (RL + 3)))
            seq.append(Ins("v_cmp_nlt_f32 vcc, v5, %s" % "s%d" % S_HI))
            seq.append(Ins("s_or_b32 s%d, s%d, vcc_lo" % (S_BAD, S_BAD), rdx='vcc'))
            seq.append(Ins("s_or_b32 s%d, s%d, vcc_hi" % (S_BAD, S_BAD), rdx='vcc'))
            seq.append(Ins("v_add_f32 v5, v%d, v%d" % (RL, RL + 1)))
            seq.append(Ins("v_add_f32 v5, v5, v%d" % (RL + 2)))
            seq.append(Ins("v_add_f32 v5, v5, v%d" % (RL + 3)))
            seq.append(Ins("v_cmp_u_f32 vcc, v5, v5"))
            seq.append(Ins("s_or_b32 s%d, s%d, vcc_lo" % (S_BAD, S_BAD), rdx='vcc'))
            seq.append(Ins("s_or_b32 s%d, s%d, vcc_hi" % (S_BAD, S_BAD), rdx='vcc'))
            seq.append(Ins("v_min3_f32 v5, v%d, v%d, v%d" % (RL, RL + 1, RL + 2)))
            seq.append(Ins("v_min_f32 v5, v5, v%d" % (RL + 3)))
            seq.append(Ins("v_cmp_ngt_f32 vcc, v5, %s" % "s%d" % (S_HI + 7)))
            seq.append(Ins("s_or_b32 s%d, s%d, vcc_lo" % (S_BAD, S_BAD), rdx='vcc'))
            seq.append(Ins("s_or_b32 s%d, s%d, vcc_hi" % (S_BAD, S_BAD), rdx='vcc'))
        for tt in range(4): seq.append(Ins("v_rcp_f32 v%d, v%d" % (RL + tt, RL + tt)))
        n0 = len(seq)
        lim = spos[16] - 1 if hd == 0 else X2 - 1
        los += [p0] * n0; his += [lim] * n0
        for dq in range(4):
            rdy = vpos[(m, 2 * dq + 1)] + 3 + 4
            dl = vpos[(16, 2 * dq)] - 1 if hd == 0 else X2 - 1
            for tt in range(4):
                a0, a1 = O + (2 * dq * 4 + tt) * 4, O + ((2 * dq + 1) * 4 + tt) * 4
                for a in (a0, a1):
                    for x in range(4): seq.append(Ins("v_mul_f32 v%d, v%d, v%d" % (a + x, RL + tt, a + x)))
                seq.append(Ins("v_cvt_pk_bf16_f32 v%d, v%d, v%d" % (a0, a0, a0 + 1)))
                seq.append(Ins("v_cvt_pk_bf16_f32 v%d, v%d, v%d" % (a0 + 1, a0 + 2, a0 + 3)))
                seq.append(Ins("v_cvt_pk_bf16_f32 v%d, v%d, v%d" % (a0 + 2, a1, a1 + 1)))
                seq.append(Ins("v_cvt_pk_bf16_f32 v%d, v%d, v%d" % (a0 + 3, a1 + 2, a1 + 3)))
                los += [rdy] * (len(seq) - len(los))
                seq.append(Ins("ds_write_b128 v%d, %s offset:%d" % (V_QR, V(a0, 4), dq * 4096 + tt * 1024),
                               wloc=('Q', 0), cid=('Q', 2 + hd), nparts=16, private=(hd == 0), tag='ow', cost=5))
                los.append(rdy if hd == 0 else max(rdy, X1))
                his += [dl] * (len(seq) - len(his))
        if hd == 1 and not slow:
            seq.append(Ins("v_mov_b32 v5, s%d" % S_BAD))
            seq.append(Ins("v_mov_b32 v4, s%d" % (S_HI + 8)))
            seq.append(Ins("ds_write_b32 v4, v5", wloc=('FL', 0), cid=('FL', 0), tag='ow'))
            los += [p0] * 3; his += [X2 - 1] * 3
        spread(items, seq, p0, max(his), stream='valu', los=los, his=his)
        if hd == 0:
            items.append(Item(Ins("v_mov_b32 v%d, v4" % V_DR), it0[18] - 2, it0[18] - 1, stream='valu'))
            if slow:
                for tt in range(4):
                    items.append(Item(Ins("v_accvgpr_read_b32 v%d, a%d" % (V_QS + tt, 96 + tt)), it0[16] - 1, it0[16] - 1, fixed=True))
    for x in late: items.append(Item(Ins(x), it0[30], it0[31], stream='misc'))
    for x in ("s_mov_b32 s%d, %s" % (S_HI, f2h(2.0 ** 60)), "s_mov_b32 s%d, %s" % (S_HI + 7, f2h(2.0 ** -60)),
              "s_lshl_b32 s%d, s%d, 2" % (S_HI + 8, S_W), "s_add_u32 s%d, s%d, %d" % (S_HI + 8, S_HI + 8, FLG)):
        items.append(Item(Ins(x), it0[14], it0[15], stream='misc'))
    def oread(kap, tt, tag):
        hp, dq = divmod(kap & 7, 4)
        return Ins("ds_read_b128 %s, v%d offset:%d" % (A((kap * 4 + tt) * 4, 4), V_OR, hp * 32768 + dq * 4096 + tt * 1024),
                   rloc=('Q', 0), cid=('Q', 2 + (kap >> 3)), tag=tag)
    p = it0[31]
    for kap in range(8):
        for tt in range(4):
            items.append(Item(oread(kap, tt, 'r1'), p, min(EA + kap * 8 - 5, X1 - 4), tgt=p + 2 + 2 * (kap * 4 + tt), stream='xch'))
    if not slow:
        items.append(Item(Ins("v_mov_b32 v4, %d" % FLG), X2, X2 + 2, stream='flg'))
        items.append(Item(Ins("ds_read_b128 v[%d:%d], v4" % (V_QS, V_QS + 3), rloc=('FL', 0), cid=('FL', 0), tag='r2'), X2 + 1, X2 + 4, stream='flg'))
    for kap in range(8, 16):
        for tt in range(4):
            items.append(Item(oread(kap, tt, 'r2'), X2, min(EA + 128 + (kap - 8) * 8 - 5, bars[x3] - 4), tgt=X2 + 1 + (kap - 8) * 4 + tt, stream='xch'))
    CHK = X2 + 16
    if not slow:
        for x in ("v_or3_b32 v%d, v%d, v%d, v%d" % (V_QS, V_QS, V_QS + 1, V_QS + 2), "v_or_b32 v%d, v%d, v%d" % (V_QS, V_QS, V_QS + 3),
                  "v_readfirstlane_b32 s%d, v%d" % (S_BAD, V_QS)):
            items.append(Item(Ins(x), CHK - 5, CHK - 1, stream='misc'))
        items.append(Item(Ins("s_cmp_lg_u32 s%d, 0" % S_BAD, cost=2, pair="s_cbranch_scc1 L_redo"), CHK + 1, CHK + 1, fixed=True))
    for f in range(2 * (9 * 16 + 4)):
        u, tile = divmod(f, 2)
        dq = u >> 1
        loc = R.loc[200 + dq]
        fu = EA + 4 * f
        bp = BD0 if u < 4 else EA + 32 * (u // 4 - 1) + 13
        frag_items(items, f, fu, fu - 29, bp, ('v', V_FR + 4 * (f % 8)), V_DR + 2 * (loc >> 16) + tile, (loc & 65535) + (u & 1) * 1024,
                   loc, 200 + dq, junk=(u >= 144))
        if f % 2 == 0 and fu <= NM:
            items.append(Item(Ins("WAIT %s, %s" % (V(V_FR + 4 * (f % 8), 4), V(V_FR + 4 * ((f + 1) % 8), 4)), last=True), fu - 1, fu - 1, fixed=True))
    for beta in range(9):
        e = EA + (24 * 8 if beta == 0 else 128 * (beta + 1)) - 1
        seq = part_store(ACC[beta % 2], PK + 16 * (beta % 2), V_SA, S_ST, 8 * beta)
        if beta == 8:
            tail = seq
            break
        spread(items, seq, e + 4, e + (56 if beta == 0 else 100))
    return bb, items, dict(pre=pre, EQ=EQ, EA=EA, it0=it0, LOOP0=LOOP0, NM=NM, tail=tail, yepi=yepi, CHK=CHK)


def gen_attn(c):
    T = V_TMP
    c("s_lshl_b32 s%d, s%d, 10" % (S_T + 2, S_SL))
    build_srd(c, S_W0, 22, 23, add_sgpr=S_T + 2, add_const=-1024, size=576 * 8192 + 1024, size_sub=S_T + 2)
    c("s_lshl_b32 s%d, s%d, 20\ns_add_u32 s%d, s%d, %d" % (S_T + 2, S_SL, S_T + 2, S_T + 2, 1536 * 256))
    build_srd(c, S_W1, 18, 19, add_sgpr=S_T + 2, size=8388608, size_sub=S_T + 2)
    build_srd(c, S_W3, 20, 21, add_sgpr=S_T + 2, add_const=-1024, size=8388608 + 1024, size_sub=S_T + 2)
    c("s_mul_i32 s%d, s%d, %d" % (S_T + 2, S_SL, 512 * 1152))
    build_srd(c, S_W2, 24, 25, add_sgpr=S_T + 2, size=512 * 1152)
    unit_voff(c, V_D1, 8192, False)
    c("v_add_u32 v%d, 1024, v%d\nv_add_u32 v%d, 256, v%d" % (V_D0, V_D1, V_D1, V_D1))
    bb, items, mk = build(False)
    setup = Code()
    s = setup
    if OPT['fused']:
        handoff_setup(s, 250, 251)
        s("v_mov_b32 v248, v54")
    unit_voff(s, V_VD1, 256, True)
    s("v_add_u32 v%d, 1024, v%d\nv_add_u32 v%d, 128, v%d" % (V_VD0, V_VD1, V_VD1, V_VD1))
    unit_voff(s, V_DD0, 1152, True)
    s("v_add_u32 v%d, %d, v%d" % (V_DD1, 32 * 1152 - 1024, V_DD0))
    reader_addr(s, V_RD)
    s("s_lshl_b32 s%d, s%d, 10" % (S_T, S_HH))
    s("v_add_u32 v%d, s%d, v%d" % (V_RD, S_T, V_RD))
    for t in range(1, 4): s("v_xor_b32 v%d, %d, v%d" % (V_RD + t, 32 * t, V_RD))
    for t in range(4): s("v_add_u32 v%d, 0x10000, v%d" % (V_RD + 4 + t, V_RD + t))
    s("v_lshrrev_b32 v%d, 4, v%d\ns_lshl_b32 s%d, s%d, 3\nv_add_u32 v%d, s%d, v%d" % (T, V_LANE, S_T, S_W, T, S_T, T))
    s("v_xor_b32 v%d, v%d, v%d\nv_and_b32 v%d, 15, v%d" % (T + 1, T, V_LANE, T + 1, T + 1))
    s("v_lshlrev_b32 v%d, 8, v%d\nv_lshl_or_b32 v%d, v%d, 4, v%d" % (T, T, V_KD0, T + 1, T))
    s("v_xor_b32 v%d, 64, v%d" % (V_KD1, V_KD0))
    s("v_and_b32 v%d, 15, v%d\nv_lshrrev_b32 v%d, 4, v%d" % (T, V_LANE, T + 1, V_LANE))
    s("v_xor_b32 v%d, v%d, v%d\nv_lshlrev_b32 v%d, 4, v%d\nv_lshl_or_b32 v%d, v%d, 8, v%d" % (T + 2, T, T + 1, T + 2, T + 2, V_KR, T, T + 2))
    for ds in range(1, 4): s("v_xor_b32 v%d, %d, v%d" % (V_KR + ds, 64 * ds, V_KR))
    s("v_lshrrev_b32 v%d, 1, v%d\nv_lshl_add_u32 v%d, v%d, 4, v%d\nv_lshlrev_b32 v%d, 4, v%d" % (T + 2, T + 1, T + 2, T + 2, T, T + 2, T + 2))
    s("v_and_b32 v%d, 1, v%d\nv_lshl_or_b32 v%d, v%d, 3, v%d" % (T + 1, T + 1, T + 2, T + 1, T + 2))
    s("s_lshl_b32 s%d, s%d, 14\ns_add_u32 s%d, s%d, %d\nv_add_u32 v%d, s%d, v%d" % (S_T, S_W, S_T, S_T, QB, V_QW, S_T, T + 2))
    s("v_lshlrev_b32 v%d, 4, v%d\ns_lshl_b32 s%d, s%d, 12\nv_add_u32 v%d, s%d, v%d" % (V_OR, V_LANE, S_T + 1, S_W, V_SA, S_T + 1, V_OR))
    s("v_add_u32 v%d, s%d, v%d" % (V_QR, S_T, V_OR))
    s("s_lshl_b32 s%d, s%d, 14\ns_add_u32 s%d, s%d, %d\nv_add_u32 v%d, s%d, v%d" % (S_T, S_TG, S_T, S_T, QB, V_OR, S_T, V_OR))
    c.add(G.stamp_ins())
    layernorm(c, {('G', 0), ('G', 1)}, setup.p, mk['pre'], 251)
    if OPT['fused']: c("v_mov_b32 v%d, v250\nv_mov_b32 v%d, 0" % (V_FO, V_FV))
    c.add(G.stamp_ins())
    it0, EQ, EA = mk['it0'], mk['EQ'], mk['EA']
    for g in (EQ - 1, it0[14], EA - 1, mk['LOOP0'] - 2):
        for x in G.stamp_ins(): items.append(Item(x, g, g, fixed=True))
    L4 = it0[6] - it0[2]
    MERGE = mk['CHK'] + 8
    plan = [('s', 0, EQ), ('s', EQ, it0[2]), ('l', it0[2], L4, 3, "L_att", 8), ('s', it0[14], it0[18]), ('l', it0[18], L4, 3, "L_att2", 8),
            ('s', it0[30], MERGE), ('s', MERGE, mk['LOOP0']), ('l', mk['LOOP0'], 256, 3, "L_att_d", 16)]
    regs = emit_regions(c, bb, items, plan, 'attn')
    head = list(c.p)
    fast_mid = regs[1] + regs[2] + regs[3] + regs[4] + regs[5]
    common_tail = [Ins("L_merge:")] + regs[6] + regs[7] + mk['tail']
    c.add(regs[0])
    c.slow = None
    if OPT.get('dbg') == 'q':
        c("v_mbcnt_lo_u32_b32 v1, -1, 0\nv_mbcnt_hi_u32_b32 v1, -1, v1")
        G.dump_regs(c, [A(4 * i, 4) for i in range(16)] + [A(A_KF + 4 * i, 4) for i in range(8)] + [V(Y + 4 * i, 4) for i in range(16)] + [V(20, 4)], tmp=5)
        c("L_merge:"); c.traces = [c.p]
        return
    if OPT.get('dbg') == 'it':
        c.add(regs[1])
        c("v_mbcnt_lo_u32_b32 v1, -1, 0\nv_mbcnt_hi_u32_b32 v1, -1, v1")
        G.dump_regs(c, [V(S0 + 4 * i, 4) for i in range(16)] + [V(P0 + 4 * i, 4) for i in range(8)] + [V(O + 4 * i, 4) for i in range(32)] + [A(A_L + 4 * i, 4) for i in range(5)], tmp=5)
        c("L_merge:"); c.traces = [c.p]
        return
    if str(OPT.get('dbg', '')).startswith('r'):
        for r in regs[1:int(OPT['dbg'][1:]) + 1]: c.add(r)
        c("v_mbcnt_lo_u32_b32 v1, -1, 0\nv_mbcnt_hi_u32_b32 v1, -1, v1")
        c("v_mov_b32 v2, s%d" % S_BAD)
        G.dump_regs(c, [A(4 * i, 4) for i in range(64)] + [V(O + 4 * i, 4) for i in range(32)] + [V(64 + 4 * i, 4) for i in range(16)] + [V(4 * i, 4) for i in range(8)], tmp=5)
        c("L_merge:"); c.traces = [c.p]
        return
    c("s_cmp_lg_u32 s%d, 0\ns_cbranch_scc1 L_slow" % S_MODE)
    c.add(fast_mid)
    c.add(common_tail)
    if OPT['fused']: signal_tail(c, V_FO, V_FV)
    c.traces = [c.p]
    c.slow = None
```

```python
import sys, math
from asmlib import *

KNAME = "recurrent_scan__sliding_block_cached__swiglu_ffn__prompt"
LOG2E = 1.4426950408889634


def f2h(x):
    import struct
    return "0x%08x" % struct.unpack("<I", struct.pack("<f", x))[0]


def V(n, cnt=1):
    return "v%d" % n if cnt == 1 else "v[%d:%d]" % (n, n + cnt - 1)


def A(n, cnt=1):
    return "a%d" % n if cnt == 1 else "a[%d:%d]" % (n, n + cnt - 1)


def mfma(d, a, b, c):
    return Ins("v_mfma_f32_16x16x32_bf16 %s, %s, %s, %s" % (d, a, b, c))


OPT = dict(st="sc1", stamps=False, map=1, lead=6, cpf=True, xup=18, xsp=3, lag=300, ld='sc1', fused=True, pfd=1, tlb=False)

S_X, S_W0, S_W1, S_W2, S_W3, S_P = 40, 44, 48, 52, 56, 60
S_W, S_M0B, S_OA, S_OB, S_CNT, S_ST = 64, 65, 66, 67, 68, 69
S_SL, S_J, S_RT, S_TY, S_TG, S_HH = 70, 71, 72, 73, 74, 75
S_LO, S_HI = 76, 77
S_T = 78
S_MODE, S_BAD = 88, 89
S_FB = 91 + 7
S_PF = 86
S_MK = 90


def srd(n):
    return "s[%d:%d]" % (n, n + 3)


V_LANE, V_T0 = 1, 2
V_TID = 0
V_D0, V_D1 = 4, 5
V_RD = 6
V_TMP = 24
V_FR = 32
V_TAIL = 56
V_RAW = 88
PART_BYTES = 147456


def Breg(ks, tt):
    if ks < 16:
        return A((ks * 4 + tt) * 4, 4)
    return V(V_TAIL + ((ks - 16) * 4 + tt) * 4, 4)


class Code:
    def __init__(self):
        self.p = []

    def __call__(self, text, **meta):
        for l in text.split("\n"):
            l = l.strip()
            if l:
                self.p.append(Ins(l, **meta))

    def add(self, x):
        if isinstance(x, list):
            self.p += x
        else:
            self.p.append(x)


def build_srd(c, n, lo, hi, add_sgpr=None, add_const=0, size=None, size_sub=None):
    if add_sgpr is not None:
        c("s_add_u32 s%d, s%d, s%d\ns_addc_u32 s%d, s%d, 0" % (n, lo, add_sgpr, n + 1, hi))
    else:
        c("s_mov_b32 s%d, s%d\ns_mov_b32 s%d, s%d" % (n, lo, n + 1, hi))
    if add_const > 0:
        c("s_add_u32 s%d, s%d, %d\ns_addc_u32 s%d, s%d, 0" % (n, n, add_const, n + 1, n + 1))
    elif add_const < 0:
        c("s_sub_u32 s%d, s%d, %d\ns_subb_u32 s%d, s%d, 0" % (n, n, -add_const, n + 1, n + 1))
    if size_sub is not None:
        c("s_sub_u32 s%d, %d, s%d" % (n + 2, size, size_sub))
    else:
        c("s_mov_b32 s%d, %d" % (n + 2, size))
    c("s_mov_b32 s%d, 0x20000" % (n + 3))


def unit_voff(c, dst, rs, corder, t0=V_TMP):
    rho, pos, h, row = t0, t0 + 1, t0 + 2, t0 + 3
    c("v_lshrrev_b32 v%d, 3, v%d" % (rho, V_LANE))
    c("v_and_b32 v%d, 7, v%d" % (pos, V_LANE))
    c("v_bfe_u32 v%d, v%d, 1, 1" % (h, rho))
    c("s_and_b32 s%d, s%d, 1\ns_lshl_b32 s%d, s%d, 1" % (S_T, S_W, S_T, S_T))
    c("v_or_b32 v%d, s%d, v%d" % (h, S_T, h))
    c("v_lshlrev_b32 v%d, 1, v%d" % (h, h))
    c("v_xor_b32 v%d, v%d, v%d" % (pos, pos, h))
    if not corder:
        c("s_lshl_b32 s%d, s%d, 3" % (S_T, S_W))
        c("v_add_u32 v%d, s%d, v%d" % (row, S_T, rho))
    else:
        c("s_lshl_b32 s%d, s%d, 2" % (S_T, S_W))
        c("v_and_b32 v%d, 3, v%d" % (row, rho))
        c("v_add_u32 v%d, s%d, v%d" % (row, S_T, row))
        c("v_lshrrev_b32 v%d, 2, v%d" % (rho, rho))
        c("v_lshl_add_u32 v%d, v%d, 4, v%d" % (row, rho, row))
    c("v_mul_u32_u24 v%d, %d, v%d" % (row, rs, row))
    c("v_lshl_add_u32 v%d, v%d, 4, v%d" % (dst, pos, row))


def reader_addr(c, dst, t0=V_TMP):
    g, r4, h = t0, t0 + 1, t0 + 2
    c("v_lshrrev_b32 v%d, 4, v%d" % (g, V_LANE))
    c("v_bfe_u32 v%d, v%d, 2, 2" % (r4, V_LANE))
    c("v_lshrrev_b32 v%d, 1, v%d" % (h, r4))
    c("v_and_b32 v%d, 1, v%d" % (dst, g))
    c("v_lshl_or_b32 v%d, v%d, 1, v%d" % (h, dst, h))
    c("v_lshlrev_b32 v%d, 11, v%d" % (dst, g))
    c("v_lshl_or_b32 v%d, v%d, 7, v%d" % (dst, r4, dst))
    c("v_lshl_or_b32 v%d, v%d, 5, v%d" % (dst, h, dst))
    c("v_and_b32 v%d, 3, v%d" % (g, V_LANE))
    c("v_lshl_or_b32 v%d, v%d, 3, v%d" % (dst, g, dst))


V_XO = 52


def xloads(t):
    return [[Ins("s_add_u32 m0, s%d, %d" % (S_MK + 4, t * 36864 + kb * (1024 - 128)), hoist=True),
             Ins("buffer_load_dwordx4 v%d, %s, s%d offen offset:%d lds" % (V_XO, srd(S_X), S_MK + t, kb * 128),
                 wloc=('X', t), cid=('X', t), nparts=9)] for kb in range(9)]


def weave(c, start, extra):
    body = c.p[start:]
    del c.p[start:]
    n = len(extra)
    k = 0
    for i, x in enumerate(body):
        while k < n and k * len(body) <= i * n:
            c.p += extra[k]; k += 1
        c.p.append(x)
    for e in extra[k:]: c.p += e


def weave_safe(c, start, extra):
    body = c.p[start:]
    del c.p[start:]
    n = len(extra)
    k = 0
    for i, x in enumerate(body):
        if ('x', 'scc') not in x.rd:
            while k < n and k * len(body) <= i * n:
                c.p += extra[k]; k += 1
        c.p.append(x)
    for e in extra[k:]: c.p += e


def prologue_common(c):
    c("s_cmp_lt_u32 s2, 256\ns_cbranch_scc1 L_go\ns_endpgm\nL_go:")
    c("s_mov_b32 s%d, 0" % S_MODE)
    c("L_restart:")
    c("s_load_dwordx16 s[16:31], s[0:1], 0\ns_load_dwordx8 s[32:39], s[0:1], 64")
    if OPT['stamps']:
        c("s_memrealtime s[100:101]")
    c("v_and_b32 v%d, 63, v%d\nv_lshrrev_b32 v2, 6, v%d" % (V_LANE, V_TID, V_TID))
    c("v_readfirstlane_b32 s%d, v2" % S_W)
    m = int(OPT['map'])
    c("s_and_b32 s%d, s2, 7\ns_lshr_b32 s%d, s2, 3" % (S_T, S_J))
    c("s_lshr_b32 s%d, s%d, 4\ns_and_b32 s%d, s%d, 15" % (S_TY, S_J, S_J, S_J))
    if m == 0:
        c("s_mov_b32 s%d, s%d\ns_mov_b32 s%d, s%d" % (S_SL, S_T, S_RT, S_J))
    else:
        c("s_andn2_b32 s%d, s%d, %d\ns_and_b32 s%d, s%d, %d\ns_or_b32 s%d, s%d, s%d" % (S_SL, S_T, (1 << m) - 1, S_T + 1, S_J, (1 << m) - 1, S_SL, S_SL, S_T + 1))
        c("s_and_b32 s%d, s%d, %d\ns_lshl_b32 s%d, s%d, %d\ns_lshr_b32 s%d, s%d, %d\ns_or_b32 s%d, s%d, s%d" %
          (S_T, S_T, (1 << m) - 1, S_T, S_T, 4 - m, S_RT, S_J, m, S_RT, S_RT, S_T))
    c("s_and_b32 s%d, s%d, 1\ns_lshr_b32 s%d, s%d, 1\ns_lshl_b32 s%d, s%d, 11" % (S_TG, S_W, S_HH, S_W, S_M0B, S_W))
    c("s_lshl_b32 s%d, s%d, 4\ns_lshl_b32 s%d, s%d, 3\ns_add_u32 s%d, s%d, s%d\ns_add_u32 s%d, s%d, s%d" %
      (S_T, S_RT, S_T + 1, S_TG, S_T, S_T, S_T + 1, S_T, S_T, S_HH))
    c("s_mul_i32 s%d, s%d, %d" % (S_MK, S_T, 8 * 1152))
    for t in range(1, 4):
        c("s_add_u32 s%d, s%d, %d" % (S_MK + t, S_MK, t * 16 * 1152))
    c("s_mul_i32 s%d, s%d, 9216\ns_add_u32 s%d, s%d, %d" % (S_MK + 4, S_W, S_MK + 4, S_MK + 4, XBUF))
    c("v_lshrrev_b32 v2, 3, v%d\nv_and_b32 v3, 6, v2\nv_xor_b32 v3, v3, v%d\nv_and_b32 v3, 7, v3" % (V_LANE, V_LANE))
    c("v_mul_u32_u24 v2, 1152, v2\nv_lshl_add_u32 v%d, v3, 4, v2" % V_XO)
    if OPT['cpf']:
        c("s_getpc_b64 s[84:85]")
        c("L_pc:")
        c("s_mul_i32 s%d, s%d, L_ffn - L_pc\ns_add_u32 s84, s84, s%d\ns_addc_u32 s85, s85, 0" % (S_T, S_TY, S_T))
        c("s_lshl_b32 s%d, s%d, 2\ns_add_u32 s%d, s%d, s%d\ns_and_b32 s%d, s%d, %d" % (S_T, S_J, S_T, S_T, S_W, S_T, S_T, 63))
        c("v_lshlrev_b32 v3, 13, v%d\ns_lshl_b32 s%d, s%d, 7\nv_add_u32 v3, s%d, v3" % (V_LANE, S_T, S_T, S_T))
        c("s_mov_b32 s86, %d\ns_mov_b32 s87, 0x20000" % 73728)
        c("buffer_load_dword v53, v3, s[84:87], 0 offen")
    c("s_waitcnt lgkmcnt(0)")
    build_srd(c, S_X, 16, 17, size=2048 * 1152)
    for g in xloads(0): c.add(g)
    c("s_lshl_b32 s%d, s%d, 3\ns_add_u32 s%d, s%d, s%d\ns_lshl_b32 s%d, s%d, 4\ns_add_u32 s%d, s%d, s%d" %
      (S_T, S_TY, S_T, S_T, S_SL, S_T, S_T, S_T, S_T, S_RT))
    c("s_mul_i32 s%d, s%d, %d" % (S_T, S_T, PART_BYTES))
    build_srd(c, S_P, 38, 39, add_sgpr=S_T, size=PART_BYTES)


V_KK = 20
XBUF = 16384
NPRE = 10
V_GRAM = 232


def layernorm(c, first_tags, setup, pre, vfv):
    T = V_TMP
    XR, ONE, SEL, SUM, NMU, DT = 88, 92, 96, 104, 112, 120
    st = len(c.p)
    c.add(setup)
    for i in range(4): c("v_mov_b32 v%d, 0x3f803f80" % (ONE + i))
    c("v_and_b32 v%d, 7, v%d\nv_bfe_u32 v%d, v%d, 3, 1\nv_lshrrev_b32 v%d, 4, v%d" % (T, V_LANE, T + 1, V_LANE, T + 2, V_LANE))
    c("v_mul_u32_u24 v%d, 18432, v%d\nv_lshl_add_u32 v%d, v%d, 7, v%d" % (T + 1, T + 1, T + 1, T, T + 1))
    c("v_and_b32 v%d, 6, v%d\nv_xor_b32 v%d, v%d, v%d\nv_lshl_add_u32 v%d, v%d, 4, v%d" % (T, T, T, T, T + 2, T + 1, T, T + 1))
    c("s_mul_i32 s%d, s%d, 9216\ns_add_u32 s%d, s%d, %d" % (S_T, S_TG, S_T, S_T, XBUF))
    c("v_add_u32 v%d, s%d, v%d\nv_xor_b32 v%d, 64, v%d" % (XR, S_T, T + 1, XR + 1, XR))
    c("v_add_u32 v%d, %d, v%d\nv_add_u32 v%d, %d, v%d" % (XR + 2, 73728, XR, XR + 3, 73728, XR + 1))
    c("v_bfe_u32 v%d, v%d, 2, 2\nv_cmp_eq_u32 s[%d:%d], v%d, v%d" % (T, V_LANE, S_MK + 6, S_MK + 7, T, T + 2))
    c("v_and_b32 v%d, 1, v%d\nv_lshlrev_b32 v%d, 4, v%d\nv_mov_b32 v%d, 0x3f80\nv_lshlrev_b32 v%d, v%d, v%d" % (T, V_LANE, T, T, T + 1, T + 1, T, T + 1))
    c("v_cndmask_b32 v%d, 0, v%d, s[%d:%d]" % (T + 1, T + 1, S_MK + 6, S_MK + 7))
    c("v_and_b32 v%d, 2, v%d\nv_cmp_eq_u32 vcc, 0, v%d" % (T, V_LANE, T))
    c("v_cndmask_b32 v%d, 0, v%d, vcc\nv_cndmask_b32 v%d, v%d, 0, vcc" % (SEL + 2, T + 1, SEL + 3, T + 1))
    for i in (0, 1, 4, 5): c("v_mov_b32 v%d, 0" % (SEL + i))
    nup = int(OPT['xup'])
    rest = xloads(1) + xloads(2) + xloads(3)
    weave_safe(c, st, rest[:nup])
    c.add(stamp_ins('ln'))
    bb, items = [], []
    spos, cpos = {}, {}

    def S(t, ks):
        spos[(t, ks)] = len(bb)
        d = V(SUM + 4 * (t & 1), 4)
        bb.append(mfma(d, V(ONE, 4), Breg(ks, t), d if ks else "0"))

    def Gm(t, ks):
        d = V(V_GRAM + 4 * t, 4)
        bb.append(mfma(d, Breg(ks, t), Breg(ks, t), d if ks else "0"))

    def C(t, ks, h):
        if h: cpos[(t, ks)] = len(bb)
        bb.append(mfma(V(DT + 8 * ((t * 18 + ks) % 4) + 4 * h, 4), V(SEL + 2 - 2 * h, 4), Breg(ks, t), V(NMU + 4 * (t & 1), 4)))

    for ks in range(18): S(0, ks)
    for ks in range(18): Gm(0, ks)
    ph = {}
    for t in range(4):
        ph[t] = len(bb)
        if t < 3:
            for ks in range(18):
                C(t, ks, 0); S(t + 1, ks) if ks < 14 else None
                C(t, ks, 1); Gm(t + 1, ks)
                if 10 <= ks < 14: S(t + 1, ks + 4)
        else:
            for ks in range(18):
                C(t, ks, 0); C(t, ks, 1)
    N = len(bb)
    bar = {0: -1, 1: ph[0] - 22, 2: ph[1] - 22, 3: ph[2] - 22}
    for t in range(4):
        tags = {('X', t)} | (first_tags if t == 3 else set())
        items.append(Item(Ins("s_barrier", vm_tags=tags, ds_tags={'xr'}, cost=2), bar[t], bar[t], fixed=True))
        for ks in range(18):
            items.append(Item(Ins("ds_read_b128 %s, v%d offset:%d" % (Breg(ks, t), XR + 2 * (t >> 1) + (ks & 1), (t & 1) * 36864 + (ks >> 1) * 1024),
                                  rloc=('X', t), cid=('X', t), tag='xr'), bar[t], max(bar[t], spos[(t, ks)] - 5), tgt=bar[t] + (ks if t else 0), stream='xr'))
        p = spos[(t, 17)] + 4
        for i in range(4):
            items.append(Item(Ins("v_mul_f32 v%d, %s, v%d" % (NMU + 4 * (t & 1) + i, f2h(-1.0 / 576), SUM + 4 * (t & 1) + i)), p, ph[t] - 2, stream='mu'))
        items.append(Item(Ins("v_mov_b32 v%d, v%d" % (V_KK + t, NMU + 4 * (t & 1))), p, ph[t] + 30, stream='mu'))
        for ks in range(18):
            d = DT + 8 * ((t * 18 + ks) % 4)
            n = t * 18 + ks + 4
            dl = (cpos[divmod(n, 18)] - 2 - (n % 18 < 14 and n < 54)) if n < 72 else N - 1
            p = cpos[(t, ks)] + 3
            if ks < 16:
                seq = ["v_cvt_pk_bf16_f32 v%d, v%d, v%d" % (d + 2 * i, d + 2 * i, d + 2 * i + 1) for i in range(4)]
                seq += ["v_accvgpr_write_b32 a%d, v%d" % ((ks * 4 + t) * 4 + i, d + 2 * i) for i in range(4)]
            else:
                seq = ["v_cvt_pk_bf16_f32 v%d, v%d, v%d" % (V_TAIL + ((ks - 16) * 4 + t) * 4 + i, d + 2 * i, d + 2 * i + 1) for i in range(4)]
            for x in seq: items.append(Item(Ins(x), min(p, N - 1), dl, stream='valu'))
    grp = []
    for x in pre:
        if grp and grp[-1][-1].kind != 'dma': grp[-1].append(x)
        else: grp.append([x])
    p = 0
    for g in rest[nup:] + grp[:4]:
        for x in g: items.append(Item(x, -1, bar[2] - 1, tgt=p, stream='dma'))
        p += int(OPT['xsp'])
    if OPT['fused']:
        for x in handoff_reset(vfv): items.append(Item(x, -1, bar[2] - 1, tgt=p, stream='dma'))
    for k, g in enumerate(grp[4:]):
        b = bar[1] if k < 8 else bar[2]
        p = max(p, b + 2)
        for x in g: items.append(Item(x, b, N - 1, tgt=p, stream='dma'))
        p += 6
    if OPT.get('touch'):
        items.append(Item(Ins("v_lshlrev_b32 v53, 12, v%d" % V_LANE), bar[3], N - 1, tgt=bar[3] + 4, stream='tch'))
        items.append(Item(Ins("buffer_load_dword v53, v53, %s, 0 offen" % srd(S_P)), bar[3], N - 1, tgt=bar[3] + 6, stream='tch'))
    for g in (ph[0] - 1, ph[1] - 1, ph[2] - 1, ph[3] - 1):
        for x in stamp_ins('ln'): items.append(Item(x, g, g, fixed=True))
    c.add(schedule(bb, items, 0, N, verbose=True, name='layernorm'))
    c.add(stamp_ins('ln'))
    c("WAIT", main0=True)


def kk_items(items, lo, hi, tmp, lane=V_LANE):
    seq = ["v_and_b32 v%d, 3, v%d" % (tmp, lane)]
    seq += ["v_cmp_eq_u32 s[%d:%d], %d, v%d" % (S_MK + 2 * i - 2, S_MK + 2 * i - 1, i, tmp) for i in range(1, 4)]
    for t in range(4):
        g = V_GRAM + 4 * t
        seq += ["v_cndmask_b32 v%d, v%d, v%d, s[%d:%d]" % (g, g, g + i, S_MK + 2 * i - 2, S_MK + 2 * i - 1) for i in range(1, 4)]
        seq += ["v_cndmask_b32 v%d, 0, v%d, s[%d:%d]" % (g, g, S_MK + 6, S_MK + 7)]
    for sw in ("v_permlane32_swap_b32", "v_permlane16_swap_b32"):
        seq += ["v_mov_b32 v%d, v%d" % (V_GRAM + 4 * t + 1, V_GRAM + 4 * t) for t in range(4)]
        seq += ["%s v%d, v%d" % (sw, V_GRAM + 4 * t, V_GRAM + 4 * t + 1) for t in range(4)]
        seq += ["v_add_f32 v%d, v%d, v%d" % (V_GRAM + 4 * t, V_GRAM + 4 * t, V_GRAM + 4 * t + 1) for t in range(4)]
    for t in range(4):
        g = V_GRAM + 4 * t
        seq += ["v_mul_f32 v%d, %s, v%d" % (g, f2h(1.0 / 576), g), "v_fma_f32 v%d, -v%d, v%d, v%d" % (g, V_KK + t, V_KK + t, g)]
    seq += ["v_max_f32 v%d, 0, v%d" % (V_GRAM + 4 * t, V_GRAM + 4 * t) for t in range(4)]
    seq += ["v_add_f32 v%d, %s, v%d" % (V_KK + t, f2h(1e-5), V_GRAM + 4 * t) for t in range(4)]
    spread(items, [Ins(x) for x in seq], lo, hi, stream='misc')


class Ring:
    def __init__(self, bars):
        self.bars = bars
        self.free = {}
        self.until = {}
        self.jobs = []
        self.need = {}
        self.loc = {}

    def bar_after(self, pos):
        for i, p in enumerate(self.bars):
            if p > pos: return i
        return len(self.bars)

    def bar_before(self, pos):
        r = -1
        for i, p in enumerate(self.bars):
            if p <= pos: r = i
        return r

    def add(self, q, need, done, make, loc=None):
        self.jobs.append(dict(q=q, need=need, done=done, make=make, loc=loc))
        self.need.setdefault(need, set()).add(('G', q))

    def pick(self, job, w):
        if job['loc'] is not None:
            return job['loc'] if self.free.get(job['loc'], -1) <= w else None
        rel = self.bar_after(job['done'])
        c = [l for l in self.pool if self.free.get(l, -1) <= w and rel <= self.until.get(l, 1 << 30)]
        if not c: return None
        return min(c, key=lambda l: (self.until.get(l, 1 << 30), self.free.get(l, -1), l))

    def plan(self, items, npre, nmax, lead, last_pos, frac=1.0):
        pre = []
        k = 0
        for job in self.jobs[:npre]:
            l = self.pick(job, -1)
            assert l is not None
            self.loc[job['q']] = l; self.free[l] = self.bar_after(job['done'])
            pre += job['make'](l)
            k += 1
        for w in range(len(self.bars)):
            p0 = self.bars[w]
            p1 = self.bars[w + 1] if w + 1 < len(self.bars) else last_pos
            sel = []
            while k < len(self.jobs) and len(sel) < nmax(w):
                job = self.jobs[k]
                if job['need'] - w > lead(w): break
                l = self.pick(job, w)
                if l is None: break
                assert job['need'] > w, ("job late", job['q'], w)
                self.loc[job['q']] = l; self.free[l] = self.bar_after(job['done'])
                sel.append((job, l)); k += 1
            if not sel: continue
            wd = (p1 - p0 - 1) * frac / len(sel)
            for i, (job, l) in enumerate(sel):
                ins = job['make'](l)
                t0 = p0 + 1 + int(i * wd)
                n = len(ins)
                for jx, x in enumerate(ins):
                    tg = t0 + (int(wd / 2) + 1 if jx == n - 1 else max(0, jx - (n - 4)) if jx < n - 2 else 1)
                    items.append(Item(x, p0, p1 - 1, tgt=tg, stream='dma'))
            if k < len(self.jobs): assert self.jobs[k]['need'] > w + 1 or True
        self.left = len(self.jobs) - k
        return pre


def dma_job(q, loc, srdn, soff_ins, vd0=V_D0, vd1=V_D1, cstep=0, soff=S_OA):
    meta = dict(wloc=('R', loc), cid=('G', q), nparts=2)
    if cstep: meta['cstep'] = cstep
    out = []
    if soff_ins: out.append(Ins(soff_ins))
    out.append(Ins("s_add_u32 m0, s%d, %d" % (S_M0B, loc), hoist=True))
    out.append(Ins("buffer_load_dwordx4 v%d, %s, s%d offen lds" % (vd0, srd(srdn), soff), **meta))
    out.append(Ins("buffer_load_dwordx4 v%d, %s, s%d offen offset:1024 lds" % (vd1, srd(srdn), soff), **meta))
    return out


def frag_items(items, f, first_use, slot_free, bar_pos, dst, areg, imm, loc, q, cstep=0, junk=False, lead=17, stream='fr'):
    meta = dict(rloc=('R', loc), cid=('G', q))
    if cstep: meta['cstep'] = cstep
    if junk: meta['junk_ok'] = True
    lo = max(slot_free, bar_pos)
    k = dst[0]
    n = dst[1]
    for h in range(2):
        reg = (V if k == 'v' else A)(n + 2 * h, 2)
        items.append(Item(Ins("ds_read_b64_tr_b16 %s, v%d offset:%d" % (reg, areg, imm + 512 * h), **meta),
                          lo, max(lo, first_use - 6), tgt=first_use - lead + 2 * h, stream=stream))


def part_store(acc, pk, va, soff, sid):
    out = []
    for tt in range(4):
        p = pk + 4 * tt
        for tile in range(2):
            a = acc + (tile * 4 + tt) * 4
            out.append(Ins("v_cvt_pk_bf16_f32 v%d, v%d, v%d" % (p + 2 * tile, a, a + 1)))
            out.append(Ins("v_cvt_pk_bf16_f32 v%d, v%d, v%d" % (p + 2 * tile + 1, a + 2, a + 3)))
        out.append(Ins("buffer_store_dwordx4 %s, v%d, %s, s%d offen offset:%d %s" %
                       (V(p, 4), va, srd(S_P), soff, tt * 1024, OPT['st']), tag='st', cid=('S', sid)))
    out.append(Ins("s_add_u32 s%d, s%d, 16384" % (soff, soff)))
    return out


FLAGS = 0x2800000
S_FL = S_X
S_DB = 92


def handoff_setup(c, vfo, vfv):
    c("s_lshl_b32 s%d, s%d, 3\ns_add_u32 s%d, s%d, s%d\ns_lshl_b32 s%d, s%d, 7" % (S_T, S_TY, S_T, S_T, S_SL, S_T, S_T))
    c("v_mov_b32 v%d, 0x10000\nv_mov_b32 v%d, s%d\nv_cmp_eq_u32 vcc, 0, v%d" % (vfo, vfv, S_T, V_TID))
    c("s_cmp_eq_u32 s%d, 0\ns_cselect_b64 s[%d:%d], vcc, 0" % (S_MODE, S_T + 2, S_T + 3))
    c("v_cndmask_b32 v%d, v%d, v%d, s[%d:%d]" % (53, vfo, vfv, S_T + 2, S_T + 3))
    c("v_cndmask_b32 v%d, v%d, v%d, vcc\nv_mov_b32 v%d, 0" % (vfo, vfo, vfv, vfv))
    c("s_lshl_b32 s%d, s%d, 2\nv_mov_b32 v54, s%d\nv_cndmask_b32 v54, v%d, v54, s[%d:%d]" % (S_T, S_RT, S_T, 53, S_T + 2, S_T + 3))
    c("s_lshl_b32 s%d, s%d, 11\ns_add_u32 s%d, s%d, %d" % (S_FB, S_RT, S_FB, S_FB, FLAGS))


def handoff_reset(vfv):
    return [Ins("s_add_u32 s%d, s38, s%d" % (S_FL, S_FB), pair="s_addc_u32 s%d, s39, 0" % (S_FL + 1), cost=2), Ins("s_mov_b32 s%d, 2048" % (S_FL + 2)),
            Ins("buffer_store_dword v%d, v53, %s, 0 offen sc1" % (vfv, srd(S_FL)), cid=('RST', 0), cost=2)]


def handoff_count(items, pos, vtmp, voff):
    seq = ["s_mov_b32 s%d, s36" % S_DB, "s_mov_b32 s%d, s37" % (S_DB + 1), "s_mov_b32 s%d, 64" % (S_DB + 2), "s_mov_b32 s%d, 0x20000" % (S_DB + 3),
           "v_mov_b32 v%d, 1" % vtmp, "buffer_atomic_add v%d, v%d, %s, 0 offen sc1" % (vtmp, voff, srd(S_DB))]
    for i, x in enumerate(seq): items.append(Item(Ins(x, cost=1), pos, pos + 28, tgt=pos + 2 + 3 * i, stream='cnt'))


def signal_seq(vfo, vfv):
    return [Ins("v_add_u32 v%d, 1, v%d" % (vfv, vfv)), Ins("buffer_store_dword v%d, v%d, %s, 0 offen sc1" % (vfv, vfo, srd(S_FL)), cost=2)]


def signal_plan(R, ends, step, nblk=9):
    cover, pos = {}, []
    for beta in range(nblk + 3):
        if beta not in ends: continue
        b = R.bar_after(ends[beta] + int(OPT['lag']))
        if b >= len(R.bars): break
        cover.setdefault(b, set()).add(('S', beta * step))
        pos.append(R.bars[b])
    return cover, pos


def signal_tail(c, vfo, vfv):
    c("WAIT", trace_end=True)
    c("s_waitcnt vmcnt(0)\ns_barrier\nv_mov_b32 v%d, 9" % vfv)
    c("buffer_store_dword v%d, v%d, %s, 0 offen sc1" % (vfv, vfo, srd(S_FL)))


def consumer(c):
    LD = OPT['ld']
    c("s_load_dwordx2 s[96:97], s[0:1], 0\ns_load_dwordx2 s[94:95], s[0:1], 72")
    c("v_mbcnt_lo_u32_b32 v1, -1, 0\nv_mbcnt_hi_u32_b32 v1, -1, v1")
    c("s_lshl_b32 s78, s%d, 1\ns_add_u32 s78, s78, s%d" % (S_SL, S_TG))
    c("s_lshl_b32 s79, s78, 10\ns_lshl_b32 s80, s%d, 14\ns_add_u32 s79, s79, s80\ns_mul_i32 s80, s%d, %d\ns_add_u32 s79, s79, s80" % (S_HH, S_RT, PART_BYTES))
    c("v_lshlrev_b32 v2, 4, v1\nv_add_u32 v2, s79, v2")
    c("s_lshr_b32 s79, s78, 2\ns_and_b32 s80, s79, 1\ns_lshl_b32 s80, s80, 6\ns_and_b32 s81, s78, 3\ns_lshl_b32 s81, s81, 4\ns_add_u32 s80, s80, s81")
    c("s_lshl_b32 s81, s%d, 7\ns_add_u32 s80, s80, s81" % S_RT)
    c("v_and_b32 v3, 15, v1\nv_add_u32 v3, s80, v3\nv_mul_u32_u24 v3, 1152, v3")
    c("s_lshr_b32 s79, s79, 1\ns_lshl_b32 s79, s79, 6\ns_lshl_b32 s80, s%d, 7\ns_add_u32 s79, s79, s80" % S_HH)
    c("v_lshrrev_b32 v4, 4, v1\nv_lshlrev_b32 v4, 3, v4\nv_add3_u32 v3, v3, v4, s79")
    c("v_and_b32 v4, 15, v1\nv_lshlrev_b32 v4, 7, v4")
    c("v_and_b32 v5, 8, v1\nv_cmp_eq_u32 s[78:79], 0, v5\nv_cmp_ne_u32 s[80:81], 0, v5")
    c("s_waitcnt lgkmcnt(0)")
    c("s_mov_b32 s44, s38\ns_mov_b32 s45, s39\ns_mov_b32 s46, %d\ns_mov_b32 s47, 0x20000" % (256 * PART_BYTES))
    c("s_mov_b32 s48, s96\ns_mov_b32 s49, s97\ns_mov_b32 s50, %d\ns_mov_b32 s51, 0x20000" % (2048 * 1152))
    c("s_mov_b32 s52, s94\ns_mov_b32 s53, s95\ns_mov_b32 s54, %d\ns_mov_b32 s55, 0x20000" % (2048 * 1152))
    c("s_mov_b32 s64, s36\ns_mov_b32 s65, s37\ns_mov_b32 s66, 64\ns_mov_b32 s67, 0x20000")
    PS = lambda p: 60 + p if p < 4 else 78 + p
    for p in range(16): c("s_mov_b32 s%d, %d" % (PS(p), p * 16 * PART_BYTES))
    c("s_mov_b32 s56, 0x3f80\ns_mov_b32 s57, 0x3f800000\ns_mov_b32 s%d, 0x40000" % S_CNT)
    XR, G, L = 8, 32, 72
    nlab = [0]

    def valid():
        c("L_val:\nv_cmp_gt_u32 vcc, 16, v6\ns_nop 1\ns_cbranch_vccz L_valid")
        c("buffer_load_dword v6, v30, s[64:67], 0 offen sc1\ns_waitcnt vmcnt(0)")
        c("s_sub_u32 s%d, s%d, 1\ns_cbranch_scc0 L_val\ns_mov_b32 s%d, 0\nL_valid:" % (S_CNT, S_CNT, S_CNT))

    def spin(mask, need, fail=None):
        k = nlab[0]; nlab[0] += 1
        c("L_spin%d:\nv_cmp_gt_u32 vcc, %s, v7\ns_nop 0\ns_and_b64 vcc, vcc, %s" % (k, need, mask))
        if fail:
            c("s_cbranch_scc1 %s" % fail)
            return
        c("s_cbranch_scc0 L_spun%d" % k)
        c("buffer_load_dword v7, v4, %s, 0 offen sc1\ns_waitcnt vmcnt(0)" % srd(S_FL))
        c("s_sub_u32 s%d, s%d, 1\ns_cbranch_scc0 L_spin%d\ns_mov_b32 s%d, 0\nL_spun%d:" % (S_CNT, S_CNT, k, S_CNT, k))

    def loads(i, ps, reg):
        c("v_add_u32 v5, %d, v2" % (i * 32768))
        for n, p in enumerate(ps):
            c("buffer_load_dwordx4 %s, v5, s[44:47], s%d offen %s" % (reg(L0[reg] + 32 * i + 4 * n, 4), PS(p), LD))

    L0 = {A: 0, V: L}

    def total(src, dst, init):
        for n in range(8):
            for q in range(4):
                for h in range(2):
                    c("v_dot2_f32_bf16 v%d, v%d, s%d, %s" % (dst + 2 * q + h, src + 4 * n + q, 56 + h, "v%d" % (dst + 2 * q + h) if n else init(q, h)))

    def finish_item(i):
        total(L + 32 * i, 232, lambda q, h: "0")
        for q in range(4):
            for h in range(2): c("v_dot2_f32_bf16 v%d, v%d, s%d, 0" % (240 + 2 * q + h, XR + 4 * i + q, 56 + h))
        for e in range(8): c("v_fmac_f32 v%d, v%d, v%d" % (240 + e, 232 + e, G + 8 * i + e))
        for q in range(4): c("v_cvt_pk_bf16_f32 v%d, v%d, v%d" % (XR + 4 * i + q, 240 + 2 * q, 241 + 2 * q))
        c("buffer_store_dwordx2 v[%d:%d], v3, s[52:55], 0 offen offset:%d\nbuffer_store_dwordx2 v[%d:%d], v3, s[52:55], 0 offen offset:%d" %
          (XR + 4 * i, XR + 4 * i + 1, i * 256, XR + 4 * i + 2, XR + 4 * i + 3, i * 256 + 32))

    valid()
    c("buffer_load_dword v7, v4, %s, 0 offen sc1" % srd(S_FL))
    for i in range(5):
        c("buffer_load_dwordx2 v[%d:%d], v3, s[48:51], 0 offen offset:%d\nbuffer_load_dwordx2 v[%d:%d], v3, s[48:51], 0 offen offset:%d" %
          (XR + 4 * i, XR + 4 * i + 1, i * 256, XR + 4 * i + 2, XR + 4 * i + 3, i * 256 + 32))
    c("s_add_u32 s58, s%d, 1\ns_mov_b32 s59, 0\ns_waitcnt vmcnt(10)" % S_HH)
    for i in range(4):
        spin("s[78:79]", "s58", fail="L_dside")
        loads(i, range(8), V)
        c("s_add_u32 s58, s58, 2\ns_add_u32 s59, s59, 1")
    c("L_dside:")
    c("s_add_u32 s3, s%d, 1" % S_HH)
    for i in range(5):
        if i == 4: c("s_min_u32 s3, s3, 9")
        spin("s[80:81]", "s3")
        loads(i, range(8, 16), A)
        c("s_add_u32 s3, s3, 2")
    for i in range(5):
        c("s_waitcnt vmcnt(%d)" % (32 - 8 * i))
        g = G + 8 * i
        for n in range(8):
            for q in range(4): c("v_accvgpr_read_b32 v%d, a%d" % (240 + q + 4 * (n & 1), 32 * i + 4 * n + q))
            for q in range(4):
                for h in range(2):
                    c("v_dot2_f32_bf16 v%d, v%d, s%d, %s" % (g + 2 * q + h, 240 + q + 4 * (n & 1), 56 + h, "v%d" % (g + 2 * q + h) if n else "0"))
        t = 232
        for e in range(8): c("v_mul_f32 v%d, %s, v%d" % (t + e, f2h(-LOG2E), g + e))
        for e in range(8): c("v_exp_f32 v%d, v%d" % (t + e, t + e))
        for e in range(8): c("v_add_f32 v%d, 1.0, v%d" % (t + e, t + e))
        for e in range(8): c("v_rcp_f32 v%d, v%d" % (t + e, t + e))
        for e in range(8): c("v_mul_f32 v%d, v%d, v%d" % (g + e, t + e, g + e))
    for i in range(5):
        if i == 4: c("s_cmp_lg_u32 s%d, 0\ns_cbranch_scc1 L_last3" % S_HH)
        c("s_cmp_gt_u32 s59, %d\ns_cbranch_scc1 L_have%d" % (i, i))
        spin("s[78:79]", "s58")
        loads(i, range(8), V)
        c("s_add_u32 s58, s58, 2\ns_waitcnt vmcnt(8)\nL_have%d:" % i)
        if i: finish_item(i - 1)
    c("s_waitcnt vmcnt(0)")
    finish_item(4)
    c("s_branch L_cdone\nL_last3:\ns_waitcnt vmcnt(0)")
    finish_item(3)
    c("L_cdone:")


def l2_prefetch(items, srdn, nbytes, vtmp, vdst, setup_pos, positions, lane, vc=None):
    m = int(OPT['map'])
    grp = 16 >> m
    nl = -(-nbytes // (128 * grp * 4 * len(positions)))
    seq = ["s_and_b32 s%d, s%d, %d" % (S_PF, S_RT, grp - 1), "s_lshl_b32 s%d, s%d, 2" % (S_PF, S_PF), "s_add_u32 s%d, s%d, s%d" % (S_PF, S_PF, S_W),
           "s_mul_i32 s%d, s%d, %d" % (S_PF, S_PF, nl * 128)] + lane
    seq += ["v_cmp_gt_u32 vcc, %d, v%d" % (nl, vtmp), "v_lshlrev_b32 v%d, 7, v%d" % (vtmp, vtmp), "v_mov_b32 v%d, 0x7fffffff" % (vc or vdst),
            "v_cndmask_b32 v%d, v%d, v%d, vcc" % (vtmp, vc or vdst, vtmp)]
    for i, x in enumerate(seq): items.append(Item(Ins(x), setup_pos, setup_pos + 60, tgt=setup_pos + 3 * i, stream='pf0'))
    for p in positions:
        items.append(Item(Ins("buffer_load_dword v%d, v%d, %s, s%d offen" % (vdst, vtmp, srd(srdn), S_PF)), p, p + 20, tgt=p, stream='pf'))
        items.append(Item(Ins("s_add_u32 s%d, s%d, %d" % (S_PF, S_PF, grp * 4 * nl * 128)), p, p + 20, tgt=p + 1, stream='pf'))


def tlb_touch(c, wide, narrow):
    if not OPT['tlb']: return
    c("v_lshlrev_b32 v54, 18, v%d\nv_mov_b32 v55, 0x7fffffff" % V_LANE)
    c("v_cmp_gt_u32 vcc, 22, v%d\nv_cndmask_b32 v53, v55, v54, vcc\nv_cmp_gt_u32 vcc, 3, v%d\nv_cndmask_b32 v54, v55, v54, vcc" % (V_LANE, V_LANE))
    for n in wide: c("buffer_load_dword v55, v53, %s, 0 offen offset:1024" % srd(n))
    for n in narrow: c("buffer_load_dword v55, v54, %s, 0 offen offset:1024" % srd(n))


def split_regions(items, bounds):
    regs = [[] for _ in range(len(bounds) - 1)]
    for it in items:
        g = min(max(it.tgt, it.lo), it.hi)
        g = max(g, bounds[0])
        for i in range(len(bounds) - 1):
            if bounds[i] <= g < bounds[i + 1] or (i == len(bounds) - 2 and g >= bounds[i + 1]):
                regs[i].append(it)
                break
    return regs


def clip_items(items, g0, g1):
    out = []
    for it in items:
        lo = max(it.lo, g0); hi = min(it.hi, g1 - 1)
        n = Item(it.ins, lo, max(lo, hi), tgt=it.tgt, stream=it.stream, fixed=it.fixed)
        out.append(n)
    return out


def set_cstep(items, st):
    for it in items:
        if it.ins.meta.get('cid') is not None or it.ins.meta.get('vm_tags') is not None:
            it.ins.meta['cstep'] = st


def same_period(a, b, shift):
    ka = [(i.ins.text, i.tgt, i.stream) for i in a]
    kb = [(i.ins.text, i.tgt - shift, i.stream) for i in b]
    if sorted(ka) != sorted(kb):
        sa, sb = set(ka), set(kb)
        print("only in first:", sorted(sa - sb)[:12]); print("only in other:", sorted(sb - sa)[:12])
        return False
    return True


def emit_regions(c, bb, items, plan, name):
    bounds = []
    for r in plan:
        if r[0] == 's': bounds.append(r[1])
        else: bounds += [r[1] + r[2] * k for k in range(r[3])]
    last = plan[-1]
    bounds.append(last[2] if last[0] == 's' else last[1] + last[2] * last[3])
    items = [it for it in items if min(max(it.tgt, it.lo), it.hi) < bounds[-1]]
    regs = split_regions(items, bounds)
    k = 0
    out = []
    first = True
    for r in plan:
        if r[0] == 's':
            its = regs[k]
            if first: its = [Item(it.ins, it.lo, min(it.hi, r[2] - 1), it.tgt, it.stream, it.fixed) for it in its]
            else: its = clip_items(its, r[1], r[2])
            out.append(schedule(bb, its, r[1], r[2], verbose=True, name=name + ' straight'))
            k += 1
        else:
            _, g0, ln, cnt, label, cstep = r
            for x in range(1, cnt):
                assert same_period(regs[k], regs[k + x], ln * x), "%s loop %s not periodic (%d)" % (name, label, x)
            set_cstep(regs[k], cstep)
            body = schedule(bb, clip_items(regs[k], g0, g0 + ln), g0, g0 + ln, verbose=True, name=name + ' loop')
            body += [Ins("s_sub_u32 s%d, s%d, 1" % (S_CNT, S_CNT)), Ins("s_cbranch_scc0 " + label)]
            out.append([Ins("s_mov_b32 s%d, %d" % (S_CNT, cnt - 1)), Ins(".p2align 3"), Loop(label, cnt, body)])
            k += cnt
        first = False
    return out


def spread(items, seq, lo, end, stream='valu', los=None, his=None):
    tot = sum(x.cost for x in seq)
    a = 0
    for i, x in enumerate(seq):
        l = lo if los is None else max(lo, los[i])
        h = end if his is None else min(end, his[i])
        tg = lo + int(a * (end - lo) / tot)
        a += x.cost
        items.append(Item(x, l, max(l, h), tgt=min(max(tg, l), max(l, h)), stream=stream))


def gen_ffn(c):
    V_HA, V_RA = 12, 13
    V_C1 = 16
    GA, GB, U, HREG = 88, 120, 152, 184
    V_SA = 248
    V_DD0, V_DD1 = 250, 251
    V_FO, V_FV, V_CO = 252, 253, 254
    V_H4 = 14
    HB = 98304
    T = V_TMP
    NU_U = 324
    NU = NU_U + 9 * 18
    NUV = NU + 40
    NM = NU * 8
    LOOP0 = (NU_U + 3 * 18) * 8
    LOOPL = 36 * 8
    eU8 = NU_U * 8 - 1
    BX2 = eU8 + 62
    bars = sorted([32 * s + 13 for s in range(NUV // 4)] + [BX2])
    R = Ring(bars)
    R.pool = [i * 8192 for i in range(20)]
    for i in range(15, 20): R.free[i * 8192] = 0
    bx1 = R.bar_after(eU8 - 41)
    bx2 = bars.index(BX2)
    bx3 = R.bar_after(BX2 + 39)

    def hslot(gam):
        sl = gam if gam < 5 else gam - 5
        return (3 - sl) * 16384

    for gam in range(5):
        for h in range(2):
            R.until[HB + hslot(gam) + 8192 * h] = R.bar_before((2 * gam + 2) * 144 + 3)

    def mk_u(q):
        hg, kp = divmod(q, 9)
        gam, isu = divmod(hg, 2)
        return lambda loc: dma_job(q, loc, S_W1 if isu else S_W0, "s_mov_b32 s%d, %d" % (S_OA, kp * 64 * 9216 + gam * 128))

    def mk_d(q):
        dq = q - 162
        if dq == 0: so = "s_mov_b32 s%d, 0" % S_OA
        elif dq % 9 == 0: so = "s_sub_u32 s%d, s%d, %d" % (S_OA, S_OA, 8 * 73728 - 128)
        else: so = "s_add_u32 s%d, s%d, 73728" % (S_OA, S_OA)
        return lambda loc: dma_job(q, loc, S_W2, so, V_DD0, V_DD1)

    for q in range(NUV // 2 - 4):
        need = bars.index(32 * (q // 2 - 1) + 13) if q >= 2 else -1
        R.add(q, need, 16 * q + 15, mk_u(q) if q < 162 else mk_d(q), loc=q * 8192 if q < NPRE else None)
    items = []
    orig_pick = R.pick

    def pick(job, w):
        if w >= bx1:
            for h in range(2):
                l = HB + hslot(4) + 8192 * h
                if R.until.pop(l, None) is not None: R.free[l] = bx1
        if w >= bx3:
            for gam in range(1, 4):
                for h in range(2):
                    l = HB + hslot(gam) + 8192 * h
                    if R.until.pop(l, None) is not None: R.free[l] = bx3
        return orig_pick(job, w)
    R.pick = pick
    pre = R.plan(items, NPRE, lambda w: 2 if bars[w] >= LOOP0 - 32 else 3, lambda w: int(OPT['lead']), NUV * 8)

    c("s_mul_i32 s%d, s%d, 1152" % (S_T + 2, S_SL))
    build_srd(c, S_W0, 28, 29, add_sgpr=S_T + 2, size=576 * 9216, size_sub=S_T + 2)
    build_srd(c, S_W1, 30, 31, add_sgpr=S_T + 2, size=576 * 9216, size_sub=S_T + 2)
    c("s_mul_i32 s%d, s%d, %d" % (S_T + 2, S_SL, 576 * 1152))
    build_srd(c, S_W2, 32, 33, add_sgpr=S_T + 2, size=576 * 1152)
    tlb_touch(c, [S_W0, S_W1], [S_W2, S_P])
    unit_voff(c, V_D0, 9216, False)
    c("v_add_u32 v%d, %d, v%d" % (V_D1, 32 * 9216 - 1024, V_D0))
    main = c
    c = Code()
    unit_voff(c, V_DD0, 1152, True)
    c("v_add_u32 v%d, %d, v%d" % (V_DD1, 32 * 1152 - 1024, V_DD0))
    reader_addr(c, V_RD)
    c("s_lshl_b32 s%d, s%d, 6" % (S_T, S_HH))
    c("v_xor_b32 v%d, s%d, v%d" % (V_RD, S_T, V_RD))
    c("v_xor_b32 v%d, 32, v%d" % (V_RD + 1, V_RD))
    for s in (1, 2):
        for t in range(2):
            c("v_add_u32 v%d, 0x%x, v%d" % (V_RD + 2 * s + t, 65536 * s, V_RD + t))
    c("s_lshl_b32 s%d, s%d, 12\ns_add_u32 s%d, s%d, %d" % (S_T, S_TG, S_T, S_T, HB))
    c("v_lshlrev_b32 v%d, 4, v%d\nv_add_u32 v%d, s%d, v%d" % (V_RA, V_LANE, V_RA, S_T, V_RA))
    c("s_lshl_b32 s%d, s%d, 13" % (S_T, S_HH))
    c("v_add_u32 v%d, s%d, v%d" % (V_HA, S_T, V_RA))
    for i in range(2):
        c("v_subrev_u32 v%d, 16384, v%d" % (V_H4 + i, V_HA + i))
    c("v_subrev_u32 v%d, %d, v%d" % (V_SA, HB, V_HA))
    c("s_mov_b32 s%d, 0" % S_ST)
    if OPT['fused']:
        handoff_setup(c, V_FO, V_FV)
        c("v_mov_b32 v%d, v54" % V_CO)
    setup = c.p
    c = main
    c.add(stamp_ins())
    layernorm(c, {('G', 0), ('G', 1)}, setup, pre, V_FV)
    c.add(stamp_ins())
    seq = [Ins("v_rsq_f32 v%d, v%d" % (V_C1 + tt, V_KK + tt)) for tt in range(4)]
    seq += [Ins("v_mul_f32 v%d, %s, v%d" % (V_C1 + tt, f2h(-LOG2E), V_C1 + tt)) for tt in range(4)]
    kk_items(items, 6, 90, V_TMP)
    spread(items, seq, 92, 130, stream='misc')

    bb = []
    for u in range(NUV):
        if u < NU_U:
            hg, ks = divmod(u, 18)
            gam, isu = divmod(hg, 2)
            acc = U if isu else (GA if gam % 2 == 0 else GB)
        else:
            beta, ks = divmod(u - NU_U, 18)
            acc = GB if beta % 2 == 0 else GA
        for tile in range(2):
            fr = V(V_FR + 4 * ((2 * u + tile) % 6), 4)
            for tt in range(4):
                d = V(acc + (tile * 4 + tt) * 4, 4)
                bb.append(mfma(d, fr, Breg(ks, tt), d if ks else "0"))
    if OPT['fused']:
        cover, spos = signal_plan(R, {b: (NU_U + 18 * (b + 1)) * 8 - 1 for b in range(10)}, 9)
        for b, t in cover.items(): R.need.setdefault(b, set()).update(t)
        for p in spos:
            for x in signal_seq(V_FO, V_FV): items.append(Item(x, p, p + 20, tgt=p + 3, stream='sig'))
        R.need[24].add(('RST', 0))
        handoff_count(items, bars[24], 249, V_CO)
    for i, p in enumerate(bars):
        tags = {'hw'}
        if i == 0: tags.add('xr')
        if i == bx1: tags.add('r1')
        if i == bx3: tags.add('r2')
        items.append(Item(Ins("s_barrier", vm_tags=R.need.get(i, set()), ds_tags=tags, cost=2), p, p, fixed=True))
    for f in range(2 * (NU + 4)):
        u, tile = divmod(f, 2)
        q = u >> 1
        loc = R.loc[q]
        fu = 4 * f
        bp = 32 * (u // 4 - 1) + 13 if u >= 4 else -1
        frag_items(items, f, fu, fu - 21, bp, ('v', V_FR + 4 * (f % 6)), V_RD + 2 * (loc >> 16) + tile, (loc & 65535) + (u & 1) * 1024,
                   loc, q, junk=(u >= NU))
        if f % 2 == 0 and fu <= NM:
            items.append(Item(Ins("WAIT %s, %s" % (V(V_FR + 4 * (f % 6), 4), V(V_FR + 4 * ((f + 1) % 6), 4)), last=True), fu - 1, fu - 1, fixed=True))

    def haddr(base, gam, tt, extra=0):
        o = hslot(gam)
        r = base
        if o < 0:
            r += V_H4 - V_HA; o += 16384
        return r, o + tt * 1024 + extra

    def hwrite(gam, tt, src):
        r, o = haddr(V_HA, gam, tt)
        return Ins("ds_write_b128 v%d, %s offset:%d" % (r, V(src, 4), o), tag='hw', wloc=('H', hslot(gam)), cid=('H', gam), nparts=4)

    for gam in range(9):
        G = GA if gam % 2 == 0 else GB
        eG = (2 * gam + 1) * 144 - 1
        eU = eG + 144
        seq = []
        for tt in range(4):
            for tile in range(2):
                g = G + (tile * 4 + tt) * 4
                t = T + 4 * tile
                for e in range(4): seq.append(Ins("v_mul_f32 v%d, v%d, v%d" % (t + e, V_C1 + tt, g + e)))
                for e in range(4): seq.append(Ins("v_exp_f32 v%d, v%d" % (t + e, t + e)))
                for e in range(4): seq.append(Ins("v_fma_f32 v%d, v%d, v%d, v%d" % (t + e, t + e, V_KK + tt, V_KK + tt)))
                for e in range(4): seq.append(Ins("v_rcp_f32 v%d, v%d" % (t + e, t + e)))
                for e in range(4): seq.append(Ins("v_mul_f32 v%d, v%d, v%d" % (g + e, t + e, g + e)))
        nA = len(seq)
        for tt in range(4):
            for tile in range(2):
                g = G + (tile * 4 + tt) * 4
                uu = U + (tile * 4 + tt) * 4
                for e in range(4): seq.append(Ins("v_mul_f32 v%d, v%d, v%d" % (uu + e, g + e, uu + e)))
            dst = G + tt * 4 if gam < 5 else HREG + ((gam - 5) * 4 + tt) * 4
            for tile in range(2):
                uu = U + (tile * 4 + tt) * 4
                seq.append(Ins("v_cvt_pk_bf16_f32 v%d, v%d, v%d" % (dst + 2 * tile, uu, uu + 1)))
                seq.append(Ins("v_cvt_pk_bf16_f32 v%d, v%d, v%d" % (dst + 2 * tile + 1, uu + 2, uu + 3)))
            if gam < 5 or gam == 8:
                seq.append(hwrite(gam, tt, dst))
        end = eU + 139 if gam < 8 else BX2 - 1
        spread(items, seq, eG + 4, end, los=[eG + 4] * nA + [eU + 4] * (len(seq) - nA))
    u8 = 17 * 18

    def hread(kap, tt, tag):
        gam, hp = divmod(kap, 2)
        r, o = haddr(V_RA, gam, tt, hp * 8192)
        return Ins("ds_read_b128 %s, v%d offset:%d" % (Breg(kap, tt), r, o), rloc=('H', hslot(gam)), cid=('H', gam), tag=tag)

    for kap in range(10):
        p = (u8 + kap) * 8 + 7
        for tt in range(4):
            items.append(Item(hread(kap, tt, 'r1'), p, bars[bx1] - 6, tgt=p + 2 * tt, stream='xch'))
    p = bars[bx1]
    for gam in range(5, 8):
        for tt in range(4):
            items.append(Item(hwrite(gam, tt, HREG + ((gam - 5) * 4 + tt) * 4), p, BX2 - 1, tgt=p + 2 + 4 * ((gam - 5) * 4 + tt), stream='xch'))
    for kap in range(10, 18):
        for tt in range(4):
            fu = NU_U * 8 + kap * 8
            items.append(Item(hread(kap, tt, 'r2'), BX2, min(fu - 4, bars[bx3] - 4), tgt=BX2 + (kap - 10) * 4 + tt, stream='xch'))
    if OPT['pfd']:
        l2_prefetch(items, S_W2, 576 * 1152, 255, 249, 900, [1000 + 64 * i + 20 for i in range(22)], ["v_mov_b32 v255, v%d" % V_LANE])
    for beta in range(9):
        acc = GB if beta % 2 == 0 else GA
        e = (NU_U + 18 * (beta + 1)) * 8 - 1
        seq = part_store(acc, U + 16 * (beta % 2), V_SA, S_ST, 9 * beta)
        if beta == 8:
            tail = seq
            break
        spread(items, seq, e + 4, e + 110)
    for g in (143, 143 + 288 * 4, eU8, LOOP0 - 2):
        for x in stamp_ins(): items.append(Item(x, g, g, fixed=True))
    for r in emit_regions(c, bb, items, [('s', 0, LOOP0), ('l', LOOP0, LOOPL, 3, "L_ffn_d", 18)], 'ffn'):
        c.add(r)
    c.add(tail)
    if OPT['fused']:
        c("s_lshl_b32 s%d, s%d, 2\nv_mov_b32 v30, s%d\nbuffer_load_dword v6, v30, %s, 0 offen sc1" % (S_T, S_RT, S_T, srd(S_DB)))
        signal_tail(c, V_FO, V_FV)
        c.add(stamp_ins())
        consumer(c)


STAMPS = [0]


def dump_regs(c, quads, tmp=2):
    c("s_waitcnt vmcnt(0) lgkmcnt(0)\ns_nop 7\ns_nop 7")
    c("s_lshl_b32 s3, s2, 2\ns_add_u32 s3, s3, s%d\ns_lshl_b32 s3, s3, 17\ns_add_u32 s3, s3, 0x3000000" % S_W)
    c("s_mov_b32 s40, s38\ns_mov_b32 s41, s39\ns_mov_b32 s42, 0x10000000\ns_mov_b32 s43, 0x20000")
    c("v_lshlrev_b32 v%d, 4, v%d" % (tmp, V_LANE))
    for q in quads:
        c("buffer_store_dwordx4 %s, v%d, s[40:43], s3 offen" % (q, tmp))
        c("s_add_u32 s3, s3, 1024\ns_waitcnt vmcnt(0)")
    c("s_endpgm")


def stamp_ins(grp='main'):
    if not OPT['stamps']: return []
    if grp != OPT.get('sgrp', 'main') and grp != 'all': return []
    i = STAMPS[0]
    STAMPS[0] += 1
    assert i < 8
    return [Ins("s_memtime s[%d:%d]" % (4 + 4 * i, 5 + 4 * i), cost=0), Ins("s_memrealtime s[%d:%d]" % (6 + 4 * i, 7 + 4 * i), cost=0)]


def finish(c):
    if OPT['stamps']:
        c("s_waitcnt vmcnt(0)")
        c.add(stamp_ins('all'))
        c("s_waitcnt lgkmcnt(0)")
        n = STAMPS[0]
        for i in range(n):
            c("v_mov_b32 v%d, s%d\nv_mov_b32 v%d, s%d" % (32 + 2 * i, 4 + 4 * i, 33 + 2 * i, 6 + 4 * i))
        c("s_lshl_b32 s3, s2, 7\ns_add_u32 s3, s3, 0x8001000\nv_mov_b32 v7, s3")
        c("s_mov_b32 s40, s38\ns_mov_b32 s41, s39\ns_mov_b32 s42, 0x10000000\ns_mov_b32 s43, 0x20000")
        for i in range(n):
            c("buffer_store_dwordx2 v[%d:%d], v7, s[40:43], 0 offen offset:%d" % (32 + 2 * i, 33 + 2 * i, 8 * i))
        STAMPS[0] = 0
    if OPT['stamps']:
        c("s_waitcnt vmcnt(0)")
        c("s_memrealtime s[98:99]\ns_waitcnt lgkmcnt(0)")
        c("v_mov_b32 v8, s100\nv_mov_b32 v9, s101\nv_mov_b32 v10, s98\nv_mov_b32 v11, s99")
        c("s_lshl_b32 s3, s2, 4\ns_add_u32 s3, s3, 0x8000000\nv_mov_b32 v7, s3")
        c("s_mov_b32 s12, s38\ns_mov_b32 s13, s39\ns_mov_b32 s14, 0x10000000\ns_mov_b32 s15, 0x20000")
        c("buffer_store_dwordx4 v[8:11], v7, s[12:15], 0 offen")
    c("s_endpgm")


def gen_reduce():
    c = Code()
    c("s_cmp_ge_u32 s2, 576\ns_cbranch_scc1 L_rexit")
    c("s_load_dwordx2 s[4:5], s[0:1], 0\ns_load_dwordx2 s[6:7], s[0:1], 72\ns_load_dwordx2 s[8:9], s[0:1], 88")
    c("s_mul_hi_u32 s10, s2, %d" % ((1 << 32) // 36 + 1))
    c("s_mul_i32 s11, s10, 36\ns_sub_u32 s11, s2, s11")
    c("s_lshr_b32 s12, s11, 2\ns_and_b32 s13, s11, 3")
    c("s_and_b32 s14, s13, 1\ns_lshr_b32 s15, s13, 1")
    c("s_mul_i32 s16, s10, %d\ns_lshl_b32 s17, s11, 12\ns_add_u32 s16, s16, s17" % PART_BYTES)
    c("v_lshlrev_b32 v1, 4, v0\nv_add_u32 v1, s16, v1")
    c("s_lshl_b32 s18, s10, 7\ns_lshl_b32 s19, s14, 6\ns_add_u32 s18, s18, s19")
    c("v_lshrrev_b32 v2, 6, v0\nv_lshlrev_b32 v2, 4, v2\nv_and_b32 v3, 15, v0\nv_add3_u32 v2, v2, v3, s18")
    c("v_mul_u32_u24 v2, 1152, v2")
    c("s_lshl_b32 s18, s12, 7\ns_lshl_b32 s19, s15, 6\ns_add_u32 s18, s18, s19")
    c("v_bfe_u32 v3, v0, 4, 2\nv_lshlrev_b32 v3, 3, v3\nv_add3_u32 v2, v2, v3, s18")
    c("s_waitcnt lgkmcnt(0)")
    c("s_mov_b32 s20, s8\ns_mov_b32 s21, s9\ns_mov_b32 s22, %d\ns_mov_b32 s23, 0x20000" % (256 * PART_BYTES))
    c("s_mov_b32 s24, s4\ns_mov_b32 s25, s5\ns_mov_b32 s26, %d\ns_mov_b32 s27, 0x20000" % (2048 * 1152))
    c("s_mov_b32 s28, s6\ns_mov_b32 s29, s7\ns_mov_b32 s30, %d\ns_mov_b32 s31, 0x20000" % (2048 * 1152))
    order = list(range(8, 16)) + list(range(8))
    for i, p in enumerate(order):
        c("s_mov_b32 s%d, %d" % (32 + i, p * 16 * PART_BYTES))
        c("buffer_load_dwordx4 %s, v1, s[20:23], s%d offen" % (V(16 + 4 * p, 4), 32 + i))
    c("buffer_load_dwordx2 v[4:5], v2, s[24:27], 0 offen\nbuffer_load_dwordx2 v[6:7], v2, s[24:27], 0 offen offset:32")
    c("s_mov_b32 s3, 0xffff0000")
    D, S = 80, 88
    for base, ps in ((D, range(8, 16)), (S, range(8))):
        for n, p in enumerate(ps):
            for q in range(4):
                r = 16 + 4 * p + q
                if n == 0:
                    c("v_lshlrev_b32 v%d, 16, v%d\nv_and_b32 v%d, s3, v%d" % (base + 2 * q, r, base + 2 * q + 1, r))
                else:
                    c("v_lshlrev_b32 v8, 16, v%d\nv_and_b32 v9, s3, v%d" % (r, r))
                    c("v_add_f32 v%d, v8, v%d\nv_add_f32 v%d, v9, v%d" % (base + 2 * q, base + 2 * q, base + 2 * q + 1, base + 2 * q + 1))
        if base == D:
            for e in range(8): c("v_mul_f32 v%d, %s, v%d" % (96 + e, f2h(-LOG2E), D + e))
            for e in range(8): c("v_exp_f32 v%d, v%d" % (96 + e, 96 + e))
            for e in range(8): c("v_add_f32 v%d, 1.0, v%d" % (96 + e, 96 + e))
            for e in range(8): c("v_rcp_f32 v%d, v%d" % (96 + e, 96 + e))
            for e in range(8): c("v_mul_f32 v%d, v%d, v%d" % (D + e, 96 + e, D + e))
    for q in range(4):
        c("v_lshlrev_b32 v8, 16, v%d\nv_and_b32 v9, s3, v%d" % (4 + q, 4 + q))
        c("v_fma_f32 v8, v%d, v%d, v8\nv_fma_f32 v9, v%d, v%d, v9" % (S + 2 * q, D + 2 * q, S + 2 * q + 1, D + 2 * q + 1))
        c("v_cvt_pk_bf16_f32 v%d, v8, v9" % (10 + q))
    c("buffer_store_dwordx2 v[10:11], v2, s[28:31], 0 offen\nbuffer_store_dwordx2 v[12:13], v2, s[28:31], 0 offen offset:32")
    if OPT.get('hd'):
        c("s_cmp_lg_u32 s2, 575\ns_cbranch_scc1 L_rexit")
        c("s_load_dwordx2 s[40:41], s[0:1], 80\ns_waitcnt lgkmcnt(0)")
        c("s_mov_b32 s22, 0x10000000")
        c("v_and_b32 v1, 7, v0\nv_bfe_u32 v2, v0, 3, 1\nv_lshlrev_b32 v3, 14, v2\nv_lshl_add_u32 v3, v1, 3, v3\nv_add_u32 v3, 0x8001004, v3")
        c("v_lshlrev_b32 v4, 11, v2\nv_add_u32 v4, 0x8000000, v4")
        c("buffer_load_dword v5, v3, s[20:23], 0 offen\nbuffer_load_dword v6, v4, s[20:23], 0 offen\ns_waitcnt vmcnt(0)")
        c("s_memrealtime s[46:47]\ns_waitcnt lgkmcnt(0)\nv_mov_b32 v7, s46\nv_cmp_eq_u32 vcc, 1, v1\ns_nop 1\nv_cndmask_b32 v5, v5, v7, vcc\nv_sub_u32 v5, v5, v6")
        c("s_mov_b32 s42, 64\ns_mov_b32 s43, 0x20000\nv_lshlrev_b32 v1, 2, v0")
        c("buffer_store_dword v5, v1, s[40:43], 0 offen")
    c("L_rexit:\ns_endpgm")
    return c


def kd(name, nv, ao, ns=102):
    return """.p2align 6
.amdhsa_kernel %s
  .amdhsa_next_free_vgpr %d
  .amdhsa_next_free_sgpr %d
  .amdhsa_accum_offset %d
  .amdhsa_group_segment_fixed_size 0
  .amdhsa_kernarg_size 96
  .amdhsa_user_sgpr_count 2
  .amdhsa_user_sgpr_kernarg_segment_ptr 1
  .amdhsa_system_sgpr_workgroup_id_x 1
.end_amdhsa_kernel""" % (name, nv, ns, ao)


def add_trace(p, vreg, every):
    cnt = [0]
    started = [False]

    def go(lst):
        o = []
        for x in lst:
            if isinstance(x, Loop):
                x.body = go(x.body); o.append(x); continue
            o.append(x)
            if x.meta.get('main0'):
                started[0] = True
                o += [Ins("s_mov_b64 s[6:7], 1"), Ins("v_mov_b32 v%d, 0" % vreg), Ins("s_memtime s[4:5]")]
            elif x.kind == 'bar' and started[0]:
                cnt[0] += 1
                if cnt[0] % every == 0:
                    o += [Ins("s_mov_b64 exec, s[6:7]"), Ins("v_mov_b32 v%d, s4" % vreg), Ins("s_mov_b64 exec, -1"), Ins("s_lshl_b64 s[6:7], s[6:7], 1"), Ins("s_memtime s[4:5]")]
            elif x.meta.get('trace_end'):
                o += [Ins("s_waitcnt lgkmcnt(0)"), Ins("s_mov_b64 exec, s[6:7]"), Ins("v_mov_b32 v%d, s4" % vreg), Ins("s_mov_b64 exec, -1"), Ins("s_lshl_b32 s3, s2, 8"), Ins("s_add_u32 s3, s3, 0x8010000"),
                      Ins("v_mbcnt_lo_u32_b32 v7, -1, 0"), Ins("v_mbcnt_hi_u32_b32 v7, -1, v7"), Ins("v_lshlrev_b32 v7, 2, v7"),
                      Ins("s_mov_b32 s8, s38"), Ins("s_mov_b32 s9, s39"), Ins("s_mov_b32 s10, 0x10000000"), Ins("s_mov_b32 s11, 0x20000"),
                      Ins("buffer_store_dword v%d, v7, s[8:11], s3 offen" % vreg)]
        return o
    return go(p)


def alias_map(regions):
    rg = dict(regions)
    for i in range(20): rg[('R', i * 8192)] = (i * 8192, i * 8192 + 8192)
    al = {}
    for a, (s0, e0) in rg.items():
        al[a] = [b for b, (s1, e1) in rg.items() if b != a and s0 < e1 and s1 < e0]
    return al


def build_all():
    import gen_attn as GA_
    GA_.G.OPT.update(OPT); gen_attn = GA_.gen_attn
    main = KNAME + "_kernel"
    out = ["; @launch kernel=%s grid=(256,1,1) block=(256,1,1) lds=163840" % main,
           "; @launch kernel=reduce_kernel grid=(576,1,1) block=(256,1,1) lds=0"]
    if OPT['fused']: out = out[:1] if OPT.get('aslist') or OPT['stamps'] else ["; @launch grid=(256,1,1) block=(256,1,1) lds=163840"]
    out = out + (["; @launch kernel=empty_kernel grid=(1,1,1) block=(64,1,1) lds=0"] if OPT.get('empty') else []) + [
           '.amdgcn_target "amdgcn-amd-amdhsa--gfx950"', ".text",
           ".globl %s" % main, ".p2align 8", ".type %s,@function" % main, main + ":"]
    pro = Code(); prologue_common(pro)
    pro("s_cmp_eq_u32 s%d, 0\ns_cbranch_scc0 L_ffn" % S_TY)
    att = Code(); gen_attn(att); finish(att)
    ffn = Code(); gen_ffn(ffn); finish(ffn)
    if OPT.get('trace'):
        att.p[:] = add_trace(att.p, 1, 2); ffn.p[:] = add_trace(ffn.p, 2, 2)
    base = {('X', t): (XBUF + t * 36864, XBUF + (t + 1) * 36864) for t in range(4)}
    fa = dict(base)
    for o in (-16384, 0, 16384, 32768, 49152): fa[('H', o)] = (98304 + o, 98304 + o + 16384)
    aa = dict(base)
    aa[('Q', 0)] = (98304, 163840)
    aa[('FL', 0)] = (98304 - 64, 98304)
    w = 0
    for tr in att.traces: w += analyze(pro.p + tr, alias=alias_map(aa))
    w += analyze(pro.p + ffn.p, alias=alias_map(fa))
    print("attn", stats(att.p)); print("ffn", stats(ffn.p))
    assert w == 0, "LDS model warnings"
    abl = str(OPT.get('abl', ''))
    if abl:
        def filt(p, inmain=False):
            o = []
            for x in p:
                if isinstance(x, Loop):
                    x.body = filt(x.body, True); o.append(x); continue
                if x.kind == 'mfma': inmain = True
                if inmain:
                    if 'd' in abl and x.kind == 'dma': continue
                    if 'b' in abl and x.kind == 'bar':
                        x.kind = 'pseudo'
                    if 's' in abl and x.kind == 'vst' and x.meta.get('tag') == 'st': continue
                    if 'v' in abl and x.kind in ('valu', 'trans') and not x.text.startswith('v_mov') and not 'readfirst' in x.text and not 'v_or' in x.text: continue
                    if 'r' in abl and x.kind == 'dsr' and 'tr_b16' in x.text: continue
                    if 'x' in abl and 'L_redo' in str(x.meta.get('pair')): continue
                o.append(x)
            return o
        att.p = filt(att.p); ffn.p = filt(ffn.p)
    emit(pro.p, out); emit(att.p, out)
    redo = Code()
    redo("L_redo:\ns_waitcnt vmcnt(0) lgkmcnt(0)\ns_barrier\ns_mov_b32 s%d, 1" % S_MODE)
    redo("v_mbcnt_lo_u32_b32 v0, -1, 0\nv_mbcnt_hi_u32_b32 v0, -1, v0\ns_lshl_b32 s%d, s%d, 6\nv_or_b32 v0, s%d, v0\ns_branch L_restart" % (S_T, S_W, S_T))
    if OPT.get('dbg'): redo.p = [Ins("L_redo:"), Ins("s_endpgm")]
    emit(redo.p, out)
    out.append("L_slow:")
    if att.slow: emit(att.slow, out)
    else: out.append("s_endpgm")
    out.append(".p2align 6\nL_ffn:")
    emit(ffn.p, out)
    if not OPT['fused']:
        red = gen_reduce()
        analyze(red.p)
        out += [".globl reduce_kernel", ".p2align 8", ".type reduce_kernel,@function", "reduce_kernel:"]
        emit(red.p, out)
    if OPT.get('empty'):
        out += [".globl empty_kernel", ".p2align 8", ".type empty_kernel,@function", "empty_kernel:", "s_endpgm"]
    out.append('.section .rodata,"a"')
    if OPT.get('empty'): out.append(kd("empty_kernel", 8, 8, 16))
    out.append(kd(main, 512, 256))
    if not OPT['fused']: out.append(kd("reduce_kernel", 104, 104, 64))
    return "\n".join(out) + "\n"


if __name__ == "__main__":
    for a in sys.argv[2:]:
        k, v = a.split("=")
        OPT[k] = {'True': True, 'False': False}.get(v, v)
    t = build_all()
    open(sys.argv[1], "w").write(t)
    print("bytes", len(t))
```

```python
from gen import *
import gen as G

V_QW, V_QR = 0, 27
V_VD0, V_VD1 = 2, 3
V_KD0, V_KD1 = 14, 15
V_KR = 16
V_QS = 20
V_OR, V_SA, V_DD0, V_DD1 = 28, 29, 30, 31
V_FO, V_FV = 25, 26
V_VR = 6
V_DR = 10
X, Y = 88, 152
S0, P0, O = 32, 96, 128
A_Q, A_KF, A_VF, A_L, A_ONE = 0, 64, 128, 224, 240
QB = 98304
FLG = QB - 64
S_KO, S_VO, S_JMP = 80, 81, 82
ACC = (64, 96)
PK = 128


def build(slow):
    bb = []
    items = []
    for q in range(72):
        gi, ks = divmod(q, 18)
        acc = X if gi % 2 == 0 else Y
        for t in range(4):
            fr = V(V_FR + 4 * ((4 * q + t) % 6), 4)
            for tt in range(4):
                d = V(acc + (t * 4 + tt) * 4, 4)
                bb.append(mfma(d, fr, Breg(ks, tt), d if ks else "0"))
    EQ = len(bb)
    it0 = {}
    kpos = {}
    vpos = {}
    spos = {}

    def kgroup(m, i):
        kt, ds = divmod(i, 4)
        kpos[(m, i)] = len(bb)
        for tt in range(4):
            d = V(S0 + 32 * (m & 1) + (kt * 4 + tt) * 4, 4)
            bb.append(mfma(d, A(A_KF + 4 * i, 4), A(A_Q + (ds * 4 + tt) * 4, 4), d if ds else "0"))

    def vgroup(m, dt):
        vpos[(m, dt)] = len(bb)
        for tt in range(4):
            d = V(O + (dt * 4 + tt) * 4, 4)
            bb.append(mfma(d, A(A_VF + 4 * dt, 4), V(P0 + 16 * (m & 1) + 4 * tt, 4), d if m % 16 else "0"))

    def sgroup(m):
        spos[m] = len(bb)
        for tt in range(4):
            d = A(A_L + 4 * tt, 4)
            bb.append(mfma(d, A(A_ONE, 4), V(P0 + 16 * (m & 1) + 4 * tt, 4), d if m % 16 else "0"))

    for n in range(-1, 33):
        it0[n] = len(bb)
        k, v = n + 1 <= 31, n - 1 >= 0
        if n == 16:
            sgroup(n - 1)
            for i in range(8): vgroup(n - 1, i)
            for i in range(8): kgroup(n + 1, i)
        elif n == 17:
            for i in range(8): kgroup(n + 1, i)
            for i in range(8): vgroup(n - 1, i)
            sgroup(n - 1)
        elif n == 32:
            sgroup(n - 1)
            for i in range(8): vgroup(n - 1, i)
        else:
            for i in range(8):
                if k: kgroup(n + 1, i)
                if v: vgroup(n - 1, i)
            if v: sgroup(n - 1)
    it0[33] = EA = len(bb)
    units = [(0, k) for k in range(8)] + [(1, k) for k in range(8)] + [(0, k) for k in range(8, 16)] + [(1, k) for k in range(8, 16)]
    units += [(b, k) for b in range(2, 12) for k in range(16)]
    for u, (beta, kap) in enumerate(units):
        for tile in range(2):
            fr = V(V_FR + 4 * ((2 * u + tile) % 8), 4)
            for tt in range(4):
                d = V(ACC[beta % 2] + (tile * 4 + tt) * 4, 4)
                bb.append(mfma(d, fr, A((kap * 4 + tt) * 4, 4), d if kap else "0"))
    NM = EA + 9 * 128
    LOOP0 = EA + 48 * 8
    LEAD = 24
    barsQ = [32 * s + 13 for s in range(36)]
    barA = {}
    for n in range(-1, 32):
        barA[n] = it0[n + 1] - LEAD - 2
    barA[-1] = it0[0] - 20
    barA[30] = it0[31] - LEAD - 2
    barA[31] = it0[32] - 20
    BD0 = EA - 19
    X1 = EA + 13
    X2 = EA + 104
    barsD = [EA + 32 * s + 13 for s in range(len(units) // 4 - 1)]
    bars = sorted(set(barsQ + list(barA.values()) + [BD0, X2] + barsD))
    R = Ring(bars)
    bi = {p: i for i, p in enumerate(bars)}
    x1, x2 = bi[X1], bi[X2]
    x3 = R.bar_after(X2 + 44)
    R.pool = [i * 8192 for i in range(12)]

    def mk_q(q):
        gi, ks = divmod(q, 18)
        return lambda loc: dma_job(q, loc, S_W0, "s_mov_b32 s%d, %d" % (S_OA, ks * 32 * 8192 + (gi >> 1) * 512 + (gi & 1) * 128))

    for q in range(72):
        R.add(q, bi[32 * (q // 2 - 1) + 13] if q >= 2 else -1, 16 * q + 15, mk_q(q), loc=(q % 12) * 8192)

    def mk_k(m):
        if m == 0: so = "s_mov_b32 s%d, 0" % S_KO
        elif m % 4 == 0 and m >= 8: so = "s_add_u32 s%d, s%d, s%d" % (S_KO, S_KO, S_JMP)
        else: so = "s_add_u32 s%d, s%d, 8192" % (S_KO, S_KO)
        return lambda loc: dma_job(100 + 2 * m, loc, S_W1, so, V_KD0, V_KD1, soff=S_KO)

    def mk_v(m):
        if m == 0: so = "s_mov_b32 s%d, 0" % S_VO
        elif m == 16: so = "s_add_u32 s%d, s%d, %d" % (S_VO, S_VO, 524288 - 15 * 8192)
        else: so = "s_add_u32 s%d, s%d, 8192" % (S_VO, S_VO)
        return lambda loc: dma_job(101 + 2 * m, loc, S_W3, so, V_VD0, V_VD1, soff=S_VO)

    def kneed(m): return bi[barsQ[35]] if m == 0 else bi[barA[min(m - 2, 31)]]
    def kdone(m): return kpos[(m, 7)] + 3 if m <= 31 else bars[bi[barA[31]]] - 1
    order = [('k', 0), ('k', 1), ('k', 2), ('v', 0)]
    for n in range(-1, 30):
        order += [('k', n + 4), ('v', n + 2)]
    for kind, m in order:
        if kind == 'k':
            R.add(100 + 2 * m, kneed(m), kdone(m), mk_k(m), loc=(m % 4) * 8192)
        else:
            R.add(101 + 2 * m, bi[barA[m]], max(vpos[(m, 7)] + 3, spos[m]), mk_v(m), loc=32768 + (m % 4) * 8192)

    def mk_d(dq):
        beta, kap = units[2 * dq]
        off = (kap // 2) * 73728 + beta * 128
        if dq < 16:
            so = "s_mov_b32 s%d, %d" % (S_OA, off)
        elif kap == 0:
            so = "s_sub_u32 s%d, s%d, %d" % (S_OA, S_OA, 7 * 73728 - 128)
        else:
            so = "s_add_u32 s%d, s%d, 73728" % (S_OA, S_OA)
        return lambda loc: dma_job(200 + dq, loc, S_W2, so, V_DD0, V_DD1)

    ND = len(units) // 2 - 6
    for dq in range(ND):
        R.add(200 + dq, bi[BD0] if dq < 2 else bi[EA + 32 * (dq // 2 - 1) + 13], EA + 16 * dq + 15, mk_d(dq))
    orig_pick = R.pick
    aw0, aw1 = bi[barA[-1]], bi[barA[30]]

    def pick(job, w):
        if job['q'] >= 200:
            if w < aw1: return None
            R.pool = [i * 8192 for i in range(16)]
            if 12 * 8192 not in R.free:
                for i in range(11, 16): R.free[i * 8192] = x3
        return orig_pick(job, w)
    R.pick = pick

    def nmax(w):
        if aw0 <= w < aw1: return 2
        if w == aw1: return 4
        return 2 if bars[w] >= LOOP0 - 32 else 3

    def lead(w):
        if aw0 <= w < aw1: return 2
        return int(OPT['lead'])

    pre = R.plan(items, NPRE, nmax, lead, len(bb), frac=0.8)
    if OPT['fused']:
        ends = {b: EA + 128 * (b + 1) - 1 for b in range(1, 10)}
        ends[0] = EA + 127
        cover, sgp = signal_plan(R, ends, 8)
        for b, t in cover.items(): R.need.setdefault(b, set()).update(t)
        for p in sgp:
            for x in signal_seq(V_FO, V_FV): items.append(Item(x, p, p + 20, tgt=p + 3, stream='sig'))
        R.need[14].add(('RST', 0))
        handoff_count(items, bars[14], 24, 248)
    for i, p in enumerate(bars):
        tags = {'ow'}
        if i == 0: tags.add('xr')
        if i == x1: tags.add('r1')
        if i == x3: tags.add('r2')
        items.append(Item(Ins("s_barrier", vm_tags=R.need.get(i, set()), ds_tags=tags, cost=2), p, p, fixed=True))
    for n in range(2, 30, 4):
        if 14 <= n < 18: continue
        p = it0[n] + 4
        items.append(Item(Ins("s_cmp_eq_u32 s%d, 0" % S_CNT, cost=2, pair="s_cselect_b32 s%d, %d, s87" % (S_JMP, 524288 - 15 * 8192)), p, p + 40, tgt=p, stream='jmp'))
    items.append(Item(Ins("s_mov_b32 s%d, 8192" % S_JMP), it0[14], it0[14] + 40, stream='jmp2'))
    for f in range(288):
        q, t = divmod(f, 4)
        loc = R.loc[q]
        fu = 4 * f
        bp = 32 * (q // 2 - 1) + 13 if q >= 2 else -1
        frag_items(items, f, fu, fu - 21, bp, ('v', V_FR + 4 * (f % 6)), V_RD + 4 * (loc >> 16) + t, loc & 65535, loc, q)
        if f % 2 == 0:
            items.append(Item(Ins("WAIT %s, %s" % (V(V_FR + 4 * (f % 6), 4), V(V_FR + 4 * ((f + 1) % 6), 4)), last=True), fu - 1, fu - 1, fixed=True))
    T = S_T + 5
    su = []
    for tt in range(4): su.append("v_rsq_f32 v%d, v%d" % (V_QS + tt, V_QS + tt))
    for tt in range(4): su.append("v_mul_f32 v%d, %s, v%d" % (V_QS + tt, f2h(LOG2E / 128 ** 0.5), V_QS + tt))
    kk_items(items, 6, 120, 24, 249)
    spread(items, [Ins(x) for x in su], 122, 200, stream='misc')
    qwrites = {}
    yepi = None
    for gi in range(4):
        acc = X if gi % 2 == 0 else Y
        dh = gi & 1
        e = 288 * (gi + 1) - 1
        seq = []
        wr = []
        for i in range(2):
            for tt in range(4):
                for t in (2 * i, 2 * i + 1):
                    a = acc + (t * 4 + tt) * 4
                    for x in range(4): seq.append(Ins("v_mul_f32 v%d, v%d, v%d" % (a + x, V_QS + tt, a + x)))
                    seq.append(Ins("v_cvt_pk_bf16_f32 v%d, v%d, v%d" % (a, a, a + 1)))
                    seq.append(Ins("v_cvt_pk_bf16_f32 v%d, v%d, v%d" % (a + 1, a + 2, a + 3)))
                F = (2 * dh + i) * 4 + tt
                w = Ins("ds_write2st64_b64 v%d, %s, %s offset0:%d offset1:%d" %
                        (V_QW, V(acc + (2 * i * 4 + tt) * 4, 2), V(acc + ((2 * i + 1) * 4 + tt) * 4, 2), 2 * F, 2 * F + 1),
                        wloc=('Q', 0), cid=('Q', gi >> 1), nparts=16, private=(gi >= 1), tag='qw')
                if gi == 2: wr.append(w)
                else: seq.append(w)
        if gi < 3:
            spread(items, seq, e + 4, e + 200)
            if gi == 2: q1a = wr
        else:
            yepi = seq
    p = 864 + 4 * 16
    for F in range(16):
        items.append(Item(Ins("ds_read_b128 %s, v%d offset:%d" % (A(A_Q + 4 * F, 4), V_QR, F * 1024), rloc=('Q', 0), cid=('Q', 0), private=True),
                          p, EQ - 30, tgt=p + 4 * F, stream='xch'))
    for i, w in enumerate(q1a):
        items.append(Item(w, 863 + 202, EQ + 20, tgt=863 + 204 + 8 * i, stream='xch'))
    su = ["s_lshl_b32 s%d, s%d, 10" % (T, S_HH), "s_sub_u32 s%d, 0x8000, s%d" % (T + 1, T), "s_lshl_b32 s%d, s%d, 6" % (T + 2, S_HH)]
    for x in su: items.append(Item(Ins(x), 700, 800, stream='misc'))
    su = ["v_subrev_u32 v%d, s%d, v%d" % (V_DR, T, V_RD), "v_xor_b32 v%d, s%d, v%d" % (V_DR, T + 2, V_DR)]
    su += ["v_add_u32 v%d, s%d, v%d" % (V_VR + t, T + 1, V_RD + t) for t in range(4)]
    late = ["v_xor_b32 v%d, 32, v%d" % (V_DR + 1, V_DR), "v_add_u32 v%d, 0x10000, v%d" % (V_DR + 2, V_DR), "v_add_u32 v%d, 0x10000, v%d" % (V_DR + 3, V_DR + 1)]
    su += ["v_mov_b32 v%d, v%d" % (4, V_DR)]
    for x in su: items.append(Item(Ins(x), EQ - 5, EQ + 12, stream='misc'))
    for i in range(4):
        items.append(Item(Ins("v_accvgpr_write_b32 a%d, s%d" % (A_ONE + i, S_LO)), EQ + 8, it0[1] - 4, tgt=EQ + 30 + i, stream='misc'))
    items.append(Item(Ins("s_mov_b32 s%d, 0x3f803f80" % S_LO), 600, 650, stream='misc2'))
    items.append(Item(Ins("s_mov_b32 s%d, 0" % S_BAD), 600, 650, stream='misc2'))
    items.append(Item(Ins("s_mov_b32 s87, 8192"), 600, 650, stream='misc2'))
    items.append(Item(Ins("s_mov_b32 s%d, 0" % S_ST), 600, 650, stream='misc2'))
    if not slow:
        spread(items, yepi, EQ + 3, it0[1] - 3)
    for m in range(32):
        bp = bars[kneed(m)]
        loc = (m % 4) * 8192
        for i in range(8):
            kt, ds = divmod(i, 4)
            fu = kpos[(m, i)]
            fr = kpos[(m - 1, i)] + 3 if m else 864 + (4 + i // 4) * 16 + 15
            lo = max(bp, fr)
            items.append(Item(Ins("ds_read_b128 %s, v%d offset:%d" % (A(A_KF + 4 * i, 4), V_KR + ds, loc + kt * 4096), rloc=('R', loc), cid=('G', 100 + 2 * m)),
                              lo, max(lo, fu - 6), tgt=fu - LEAD, stream='kf'))
        bp = barA[m]
        loc = 32768 + (m % 4) * 8192
        for dt in range(8):
            fu = vpos[(m, dt)]
            fr = vpos[(m - 1, dt)] + 3 if m else EQ + 13
            frag_items(items, 0, fu, fr, bp, ('a', A_VF + 4 * dt), V_VR + (dt & 3), (m % 4) * 8192 + (dt >> 2) * 1024, loc, 101 + 2 * m, lead=LEAD, stream='vf')
    g = EQ
    while g < EA:
        regs = []
        n_it = max(n for n in it0 if it0[n] <= g)
        nxt = min(g + 8, it0[n_it + 1])
        for x in bb[g:nxt]:
            r = "a[%d:%d]" % (x.A[0][1], x.A[-1][1])
            if r not in regs and x.A[0][1] != A_ONE: regs.append(r)
        if regs: items.append(Item(Ins("WAIT " + ", ".join(regs), last=True), g - 1, g - 1, fixed=True))
        g = nxt
    for ds in range(4):
        for tt in range(4):
            p = kpos[(15, 4 + ds)] + 3
            items.append(Item(Ins("ds_read_b128 %s, v%d offset:%d" % (A(A_Q + (ds * 4 + tt) * 4, 4), V_QR, (ds * 4 + tt) * 1024), rloc=('Q', 0), cid=('Q', 1), private=True),
                              p, kpos[(16, ds)] - 5, tgt=p + 2 * tt, stream='xch'))
    for n in range(32):
        S = S0 + 32 * (n & 1)
        P = P0 + 16 * (n & 1)
        seq, los = [], []
        for kt in range(2):
            rdy = kpos[(n, 4 * kt + 3)] + 3 + 4
            for tt in range(4):
                s = S + (kt * 4 + tt) * 4
                if slow:
                    for x in range(4): seq.append(Ins("v_add_f32 v%d, v%d, v%d" % (s + x, V_QS + tt, s + x)))
                for x in range(4): seq.append(Ins("v_exp_f32 v%d, v%d" % (s + x, s + x)))
                seq.append(Ins("v_cvt_pk_bf16_f32 v%d, v%d, v%d" % (P + 4 * tt + 2 * kt, s, s + 1)))
                seq.append(Ins("v_cvt_pk_bf16_f32 v%d, v%d, v%d" % (P + 4 * tt + 2 * kt + 1, s + 2, s + 3)))
                los += [rdy] * (len(seq) - len(los))
        lo = it0[n] - 1
        pfree = max(vpos[(n - 2, 7)], spos[n - 2]) + 3 if n >= 2 else 0
        first_pv = min(vpos[(n, 0)], spos[n])
        end = min(it0[n + 1] - 1, first_pv - 2)
        if n == 16: end = first_pv - 2 - 20
        if n + 2 <= 31: end = min(end, kpos[(n + 2, 0)] - 1)
        spread(items, seq, max(lo, 0), end, stream='exp', los=los)
    for hd in range(2):
        m = 15 + 16 * hd
        RL = V_DR if hd == 0 else V_KR
        p0 = spos[m] + 3 + 4
        seq, los, his = [], [], []
        for tt in range(4): seq.append(Ins("v_accvgpr_read_b32 v%d, a%d" % (RL + tt, A_L + 4 * tt)))
        if not slow:
            seq.append(Ins("v_max3_f32 v5, v%d, v%d, v%d" % (RL, RL + 1, RL + 2)))
            seq.append(Ins("v_max_f32 v5, v5, v%d" % (RL + 3)))
            seq.append(Ins("v_cmp_nlt_f32 vcc, v5, %s" % "s%d" % S_HI))
            seq.append(Ins("s_or_b32 s%d, s%d, vcc_lo" % (S_BAD, S_BAD), rdx='vcc'))
            seq.append(Ins("s_or_b32 s%d, s%d, vcc_hi" % (S_BAD, S_BAD), rdx='vcc'))
            seq.append(Ins("v_add_f32 v5, v%d, v%d" % (RL, RL + 1)))
            seq.append(Ins("v_add_f32 v5, v5, v%d" % (RL + 2)))
            seq.append(Ins("v_add_f32 v5, v5, v%d" % (RL + 3)))
            seq.append(Ins("v_cmp_u_f32 vcc, v5, v5"))
            seq.append(Ins("s_or_b32 s%d, s%d, vcc_lo" % (S_BAD, S_BAD), rdx='vcc'))
            seq.append(Ins("s_or_b32 s%d, s%d, vcc_hi" % (S_BAD, S_BAD), rdx='vcc'))
            seq.append(Ins("v_min3_f32 v5, v%d, v%d, v%d" % (RL, RL + 1, RL + 2)))
            seq.append(Ins("v_min_f32 v5, v5, v%d" % (RL + 3)))
            seq.append(Ins("v_cmp_ngt_f32 vcc, v5, %s" % "s%d" % (S_HI + 7)))
            seq.append(Ins("s_or_b32 s%d, s%d, vcc_lo" % (S_BAD, S_BAD), rdx='vcc'))
            seq.append(Ins("s_or_b32 s%d, s%d, vcc_hi" % (S_BAD, S_BAD), rdx='vcc'))
        for tt in range(4): seq.append(Ins("v_rcp_f32 v%d, v%d" % (RL + tt, RL + tt)))
        n0 = len(seq)
        lim = spos[16] - 1 if hd == 0 else X2 - 1
        los += [p0] * n0; his += [lim] * n0
        for dq in range(4):
            rdy = vpos[(m, 2 * dq + 1)] + 3 + 4
            dl = vpos[(16, 2 * dq)] - 1 if hd == 0 else X2 - 1
            for tt in range(4):
                a0, a1 = O + (2 * dq * 4 + tt) * 4, O + ((2 * dq + 1) * 4 + tt) * 4
                for a in (a0, a1):
                    for x in range(4): seq.append(Ins("v_mul_f32 v%d, v%d, v%d" % (a + x, RL + tt, a + x)))
                seq.append(Ins("v_cvt_pk_bf16_f32 v%d, v%d, v%d" % (a0, a0, a0 + 1)))
                seq.append(Ins("v_cvt_pk_bf16_f32 v%d, v%d, v%d" % (a0 + 1, a0 + 2, a0 + 3)))
                seq.append(Ins("v_cvt_pk_bf16_f32 v%d, v%d, v%d" % (a0 + 2, a1, a1 + 1)))
                seq.append(Ins("v_cvt_pk_bf16_f32 v%d, v%d, v%d" % (a0 + 3, a1 + 2, a1 + 3)))
                los += [rdy] * (len(seq) - len(los))
                seq.append(Ins("ds_write_b128 v%d, %s offset:%d" % (V_QR, V(a0, 4), dq * 4096 + tt * 1024),
                               wloc=('Q', 0), cid=('Q', 2 + hd), nparts=16, private=(hd == 0), tag='ow', cost=5))
                los.append(rdy if hd == 0 else max(rdy, X1))
                his += [dl] * (len(seq) - len(his))
        if hd == 1 and not slow:
            seq.append(Ins("v_mov_b32 v5, s%d" % S_BAD))
            seq.append(Ins("v_mov_b32 v4, s%d" % (S_HI + 8)))
            seq.append(Ins("ds_write_b32 v4, v5", wloc=('FL', 0), cid=('FL', 0), tag='ow'))
            los += [p0] * 3; his += [X2 - 1] * 3
        spread(items, seq, p0, max(his), stream='valu', los=los, his=his)
        if hd == 0:
            items.append(Item(Ins("v_mov_b32 v%d, v4" % V_DR), it0[18] - 2, it0[18] - 1, stream='valu'))
            if slow:
                for tt in range(4):
                    items.append(Item(Ins("v_accvgpr_read_b32 v%d, a%d" % (V_QS + tt, 96 + tt)), it0[16] - 1, it0[16] - 1, fixed=True))
    for x in late: items.append(Item(Ins(x), it0[30], it0[31], stream='misc'))
    for x in ("s_mov_b32 s%d, %s" % (S_HI, f2h(2.0 ** 60)), "s_mov_b32 s%d, %s" % (S_HI + 7, f2h(2.0 ** -60)),
              "s_lshl_b32 s%d, s%d, 2" % (S_HI + 8, S_W), "s_add_u32 s%d, s%d, %d" % (S_HI + 8, S_HI + 8, FLG)):
        items.append(Item(Ins(x), it0[14], it0[15], stream='misc'))
    def oread(kap, tt, tag):
        hp, dq = divmod(kap & 7, 4)
        return Ins("ds_read_b128 %s, v%d offset:%d" % (A((kap * 4 + tt) * 4, 4), V_OR, hp * 32768 + dq * 4096 + tt * 1024),
                   rloc=('Q', 0), cid=('Q', 2 + (kap >> 3)), tag=tag)
    p = it0[31]
    for kap in range(8):
        for tt in range(4):
            items.append(Item(oread(kap, tt, 'r1'), p, min(EA + kap * 8 - 5, X1 - 4), tgt=p + 2 + 2 * (kap * 4 + tt), stream='xch'))
    if not slow:
        items.append(Item(Ins("v_mov_b32 v4, %d" % FLG), X2, X2 + 2, stream='flg'))
        items.append(Item(Ins("ds_read_b128 v[%d:%d], v4" % (V_QS, V_QS + 3), rloc=('FL', 0), cid=('FL', 0), tag='r2'), X2 + 1, X2 + 4, stream='flg'))
    for kap in range(8, 16):
        for tt in range(4):
            items.append(Item(oread(kap, tt, 'r2'), X2, min(EA + 128 + (kap - 8) * 8 - 5, bars[x3] - 4), tgt=X2 + 1 + (kap - 8) * 4 + tt, stream='xch'))
    CHK = X2 + 16
    if not slow:
        for x in ("v_or3_b32 v%d, v%d, v%d, v%d" % (V_QS, V_QS, V_QS + 1, V_QS + 2), "v_or_b32 v%d, v%d, v%d" % (V_QS, V_QS, V_QS + 3),
                  "v_readfirstlane_b32 s%d, v%d" % (S_BAD, V_QS)):
            items.append(Item(Ins(x), CHK - 5, CHK - 1, stream='misc'))
        items.append(Item(Ins("s_cmp_lg_u32 s%d, 0" % S_BAD, cost=2, pair="s_cbranch_scc1 L_redo"), CHK + 1, CHK + 1, fixed=True))
    if OPT['pfd']:
        l2_prefetch(items, S_W2, 512 * 1152, 24, 0, 900, [it0[n] + 20 for n in list(range(2, 14)) + list(range(18, 30))], ["v_mov_b32 v24, v249"], vc=247)
    for f in range(2 * (9 * 16 + 4)):
        u, tile = divmod(f, 2)
        dq = u >> 1
        loc = R.loc[200 + dq]
        fu = EA + 4 * f
        bp = BD0 if u < 4 else EA + 32 * (u // 4 - 1) + 13
        frag_items(items, f, fu, fu - 29, bp, ('v', V_FR + 4 * (f % 8)), V_DR + 2 * (loc >> 16) + tile, (loc & 65535) + (u & 1) * 1024,
                   loc, 200 + dq, junk=(u >= 144))
        if f % 2 == 0 and fu <= NM:
            items.append(Item(Ins("WAIT %s, %s" % (V(V_FR + 4 * (f % 8), 4), V(V_FR + 4 * ((f + 1) % 8), 4)), last=True), fu - 1, fu - 1, fixed=True))
    for beta in range(9):
        e = EA + (24 * 8 if beta == 0 else 128 * (beta + 1)) - 1
        seq = part_store(ACC[beta % 2], PK + 16 * (beta % 2), V_SA, S_ST, 8 * beta)
        if beta == 8:
            tail = seq
            break
        spread(items, seq, e + 4, e + (56 if beta == 0 else 100))
    return bb, items, dict(pre=pre, EQ=EQ, EA=EA, it0=it0, LOOP0=LOOP0, NM=NM, tail=tail, yepi=yepi, CHK=CHK)


def gen_attn(c):
    T = V_TMP
    c("s_lshl_b32 s%d, s%d, 10" % (S_T + 2, S_SL))
    build_srd(c, S_W0, 22, 23, add_sgpr=S_T + 2, add_const=-1024, size=576 * 8192 + 1024, size_sub=S_T + 2)
    c("s_lshl_b32 s%d, s%d, 20\ns_add_u32 s%d, s%d, %d" % (S_T + 2, S_SL, S_T + 2, S_T + 2, 1536 * 256))
    build_srd(c, S_W1, 18, 19, add_sgpr=S_T + 2, size=8388608, size_sub=S_T + 2)
    build_srd(c, S_W3, 20, 21, add_sgpr=S_T + 2, add_const=-1024, size=8388608 + 1024, size_sub=S_T + 2)
    c("s_mul_i32 s%d, s%d, %d" % (S_T + 2, S_SL, 512 * 1152))
    build_srd(c, S_W2, 24, 25, add_sgpr=S_T + 2, size=512 * 1152)
    tlb_touch(c, [S_W0], [S_W1, S_W3, S_W2, S_P])
    unit_voff(c, V_D1, 8192, False)
    c("v_add_u32 v%d, 1024, v%d\nv_add_u32 v%d, 256, v%d" % (V_D0, V_D1, V_D1, V_D1))
    bb, items, mk = build(False)
    setup = Code()
    s = setup
    s("v_mov_b32 v249, v%d" % V_LANE)
    if OPT['fused']:
        handoff_setup(s, 250, 251)
        s("v_mov_b32 v248, v54")
    unit_voff(s, V_VD1, 256, True)
    s("v_add_u32 v%d, 1024, v%d\nv_add_u32 v%d, 128, v%d" % (V_VD0, V_VD1, V_VD1, V_VD1))
    unit_voff(s, V_DD0, 1152, True)
    s("v_add_u32 v%d, %d, v%d" % (V_DD1, 32 * 1152 - 1024, V_DD0))
    reader_addr(s, V_RD)
    s("s_lshl_b32 s%d, s%d, 10" % (S_T, S_HH))
    s("v_add_u32 v%d, s%d, v%d" % (V_RD, S_T, V_RD))
    for t in range(1, 4): s("v_xor_b32 v%d, %d, v%d" % (V_RD + t, 32 * t, V_RD))
    for t in range(4): s("v_add_u32 v%d, 0x10000, v%d" % (V_RD + 4 + t, V_RD + t))
    s("v_lshrrev_b32 v%d, 4, v%d\ns_lshl_b32 s%d, s%d, 3\nv_add_u32 v%d, s%d, v%d" % (T, V_LANE, S_T, S_W, T, S_T, T))
    s("v_xor_b32 v%d, v%d, v%d\nv_and_b32 v%d, 15, v%d" % (T + 1, T, V_LANE, T + 1, T + 1))
    s("v_lshlrev_b32 v%d, 8, v%d\nv_lshl_or_b32 v%d, v%d, 4, v%d" % (T, T, V_KD0, T + 1, T))
    s("v_xor_b32 v%d, 64, v%d" % (V_KD1, V_KD0))
    s("v_and_b32 v%d, 15, v%d\nv_lshrrev_b32 v%d, 4, v%d" % (T, V_LANE, T + 1, V_LANE))
    s("v_xor_b32 v%d, v%d, v%d\nv_lshlrev_b32 v%d, 4, v%d\nv_lshl_or_b32 v%d, v%d, 8, v%d" % (T + 2, T, T + 1, T + 2, T + 2, V_KR, T, T + 2))
    for ds in range(1, 4): s("v_xor_b32 v%d, %d, v%d" % (V_KR + ds, 64 * ds, V_KR))
    s("v_lshrrev_b32 v%d, 1, v%d\nv_lshl_add_u32 v%d, v%d, 4, v%d\nv_lshlrev_b32 v%d, 4, v%d" % (T + 2, T + 1, T + 2, T + 2, T, T + 2, T + 2))
    s("v_and_b32 v%d, 1, v%d\nv_lshl_or_b32 v%d, v%d, 3, v%d" % (T + 1, T + 1, T + 2, T + 1, T + 2))
    s("s_lshl_b32 s%d, s%d, 14\ns_add_u32 s%d, s%d, %d\nv_add_u32 v%d, s%d, v%d" % (S_T, S_W, S_T, S_T, QB, V_QW, S_T, T + 2))
    s("v_lshlrev_b32 v%d, 4, v%d\ns_lshl_b32 s%d, s%d, 12\nv_add_u32 v%d, s%d, v%d" % (V_OR, V_LANE, S_T + 1, S_W, V_SA, S_T + 1, V_OR))
    s("v_add_u32 v%d, s%d, v%d" % (V_QR, S_T, V_OR))
    s("s_lshl_b32 s%d, s%d, 14\ns_add_u32 s%d, s%d, %d\nv_add_u32 v%d, s%d, v%d" % (S_T, S_TG, S_T, S_T, QB, V_OR, S_T, V_OR))
    c.add(G.stamp_ins())
    layernorm(c, {('G', 0), ('G', 1)}, setup.p, mk['pre'], 251)
    if OPT['fused']: c("v_mov_b32 v%d, v250\nv_mov_b32 v%d, 0" % (V_FO, V_FV))
    c.add(G.stamp_ins())
    it0, EQ, EA = mk['it0'], mk['EQ'], mk['EA']
    for g in (EQ - 1, it0[14], EA - 1, mk['LOOP0'] - 2):
        for x in G.stamp_ins(): items.append(Item(x, g, g, fixed=True))
    for g in (EA - 1, EA + 103, EA + 191, EA + 255, EA + 319, EA + 382):
        for x in G.stamp_ins('x'): items.append(Item(x, g, g, fixed=True))
    L4 = it0[6] - it0[2]
    MERGE = mk['CHK'] + 8
    plan = [('s', 0, EQ), ('s', EQ, it0[2]), ('l', it0[2], L4, 3, "L_att", 8), ('s', it0[14], it0[18]), ('l', it0[18], L4, 3, "L_att2", 8),
            ('s', it0[30], MERGE), ('s', MERGE, mk['LOOP0']), ('l', mk['LOOP0'], 256, 3, "L_att_d", 16)]
    regs = emit_regions(c, bb, items, plan, 'attn')
    head = list(c.p)
    fast_mid = regs[1] + regs[2] + regs[3] + regs[4] + regs[5]
    common_tail = [Ins("L_merge:")] + regs[6] + regs[7] + mk['tail']
    c.add(regs[0])
    c.slow = None
    if OPT.get('dbg') == 'q':
        c("v_mbcnt_lo_u32_b32 v1, -1, 0\nv_mbcnt_hi_u32_b32 v1, -1, v1")
        G.dump_regs(c, [A(4 * i, 4) for i in range(16)] + [A(A_KF + 4 * i, 4) for i in range(8)] + [V(Y + 4 * i, 4) for i in range(16)] + [V(20, 4)], tmp=5)
        c("L_merge:"); c.traces = [c.p]
        return
    if OPT.get('dbg') == 'it':
        c.add(regs[1])
        c("v_mbcnt_lo_u32_b32 v1, -1, 0\nv_mbcnt_hi_u32_b32 v1, -1, v1")
        G.dump_regs(c, [V(S0 + 4 * i, 4) for i in range(16)] + [V(P0 + 4 * i, 4) for i in range(8)] + [V(O + 4 * i, 4) for i in range(32)] + [A(A_L + 4 * i, 4) for i in range(5)], tmp=5)
        c("L_merge:"); c.traces = [c.p]
        return
    if str(OPT.get('dbg', '')).startswith('r'):
        for r in regs[1:int(OPT['dbg'][1:]) + 1]: c.add(r)
        c("v_mbcnt_lo_u32_b32 v1, -1, 0\nv_mbcnt_hi_u32_b32 v1, -1, v1")
        c("v_mov_b32 v2, s%d" % S_BAD)
        G.dump_regs(c, [A(4 * i, 4) for i in range(64)] + [V(O + 4 * i, 4) for i in range(32)] + [V(64 + 4 * i, 4) for i in range(16)] + [V(4 * i, 4) for i in range(8)], tmp=5)
        c("L_merge:"); c.traces = [c.p]
        return
    c("s_cmp_lg_u32 s%d, 0\ns_cbranch_scc1 L_slow" % S_MODE)
    c.add(fast_mid)
    c.add(common_tail)
    if OPT['fused']: signal_tail(c, V_FO, V_FV)
    c.traces = [c.p]
    c.slow = None
```
